```python
import torch

def _softmax(x, axis=-1):
    return torch.softmax(x, dim=axis)
def _gelu(x):
    return torch.nn.functional.gelu(x, approximate="tanh")
def _silu(x):
    return torch.nn.functional.silu(x)
def _sigmoid(x):
    return torch.sigmoid(x)
def _layernorm(x, axis=-1, eps=1e-5):
    m = x.mean(dim=axis, keepdim=True)
    v = x.var(dim=axis, keepdim=True, unbiased=False)
    return (x - m) / torch.sqrt(v + eps)
def _scatter_add(tgt, idx, src, axis=0):
    return tgt.clone().index_add_(axis, idx, src)
def _segment_sum(src, seg, n):
    out = torch.zeros((n,) + src.shape[1:], dtype=src.dtype)
    return out.index_add_(0, seg, src)
def _pad(x, pw):
    flat = tuple(v for pair in reversed(pw) for v in pair)
    return torch.nn.functional.pad(x, flat)

kernel_name = 'sequential_preLN__ssm_conv_s4d__geglu_ffn__prompt'

def setup_inputs():

    _w = (lambda a: (lambda t: t.to(torch.bfloat16) if t.is_floating_point() else t)(torch.as_tensor(a)))
    def _A_setup():
        Bsz, L, D, N = 1, 2048, 640, 192
        return {
            "u": _w((lambda *s: torch.randn(*s, dtype=torch.bfloat16) * 0.05)(Bsz, L, D)),
            "log_A_real": _w((lambda *s: torch.randn(*s, dtype=torch.bfloat16) * 6.4)(D, N) * 0.5),
            "A_imag": _w((lambda *s: torch.randn(*s, dtype=torch.bfloat16) * 0.05)(D, N) * 3.14),
            "C_real": _w((lambda *s: torch.randn(*s, dtype=torch.bfloat16) * 0.05)(D, N) / N ** 0.5),
            "C_imag": _w((lambda *s: torch.randn(*s, dtype=torch.bfloat16) * 0.05)(D, N) / N ** 0.5),
            "log_dt": _w((lambda *s: torch.randn(*s, dtype=torch.bfloat16) * 0.05)(D) * 0.5 - 4.0),
            "D_skip": _w((lambda *s: torch.randn(*s, dtype=torch.bfloat16) * 0.05)(D)),
        }
    _A_in = _A_setup()

    def _B_setup():
        B, S, D, F = 1, 2048, 640, 1536
        return {
            "x": _w((lambda *s: torch.randn(*s, dtype=torch.bfloat16) * 0.05)(B, S, D)),
            "w_gate": _w((lambda *s: torch.randn(*s, dtype=torch.bfloat16) * 0.05)(D, F)),
            "w_up": _w((lambda *s: torch.randn(*s, dtype=torch.bfloat16) * 0.05)(D, F)),
            "w_down": _w((lambda *s: torch.randn(*s, dtype=torch.bfloat16) * 0.05)(F, D)),
        }
    _B_in = _B_setup()

    return {
        "A_u": _A_in["u"],
        "A_log_A_real": _A_in["log_A_real"],
        "A_A_imag": _A_in["A_imag"],
        "A_C_real": _A_in["C_real"],
        "A_C_imag": _A_in["C_imag"],
        "A_log_dt": _A_in["log_dt"],
        "A_D_skip": _A_in["D_skip"],
        "B_x": _B_in["x"],
        "B_w_gate": _B_in["w_gate"],
        "B_w_up": _B_in["w_up"],
        "B_w_down": _B_in["w_down"],
    }

def reference(A_u, A_log_A_real, A_A_imag, A_C_real, A_C_imag, A_log_dt, A_D_skip, B_x, B_w_gate, B_w_up, B_w_down):
    def _A_ref(u, log_A_real, A_imag, C_real, C_imag, log_dt, D_skip):
        L = u.shape[1]
        dt = torch.exp(log_dt)
        A = -torch.exp(log_A_real) + 1j * A_imag
        C = (C_real + 1j * C_imag) * dt[:, None]
        pos = (lambda x, dt: x.to(dt))(torch.arange(L), log_dt.dtype)
        P = torch.exp((A * dt[:, None])[:, :, None] * pos[None, None, :])
        K = 2.0 * torch.einsum("dn,dnl->dl", C, P).real
        L2 = 2 * L
        u_t = (lambda x, *d: x.permute(*d))(u, 0, 2, 1)
        Kf = (lambda x, *a, **k: torch.fft.rfft(x.float(), *a, **k))(K, L2)
        Uf = (lambda x, *a, **k: torch.fft.rfft(x.float(), *a, **k))(u_t, L2)
        y = (lambda x, *a, **k: torch.fft.irfft(x, *a, **k).to(torch.bfloat16))(Uf * Kf[None, :, :], L2)[:, :, :L]
        y = (lambda x, *d: x.permute(*d))(y, 0, 2, 1)
        return y + u * D_skip[None, None, :]

    def _B_ref(x, w_gate, w_up, w_down):
        return (_gelu(x @ w_gate) * (x @ w_up)) @ w_down

    x = A_u
    h = x + _A_ref(_layernorm(x, axis=-1), A_log_A_real, A_A_imag, A_C_real, A_C_imag, A_log_dt, A_D_skip)
    h2 = h + _B_ref(_layernorm(h, axis=-1), B_w_gate, B_w_up, B_w_down)
    return h2
```

```python
import re

TRANS = ("v_exp_f32", "v_log_f32", "v_rcp_f32", "v_rsq_f32", "v_sqrt_f32", "v_sin_f32", "v_cos_f32")
RX = re.compile(r"\b([vas])(?:\[(\d+):(\d+)\]|(\d+)\b)")


def regs_of(tok):
    out = []
    tok = tok.strip()
    if tok in ("vcc", "vcc_lo", "vcc_hi"):
        return [("s", "vcc")]
    if tok in ("exec", "exec_lo", "exec_hi"):
        return [("s", "exec")]
    if tok == "m0":
        return [("s", "m0")]
    for m in RX.finditer(tok):
        if m.group(4) is not None:
            out.append((m.group(1), int(m.group(4))))
        else:
            out += [(m.group(1), i) for i in range(int(m.group(2)), int(m.group(3)) + 1)]
    return out


class Ins:
    def __init__(s, text):
        s.text = text
        t = text.split(";")[0].strip()
        s.label = t.endswith(":")
        s.op = t.split()[0] if t else ""
        rest = t[len(s.op):].strip()
        ops = [o.strip() for o in rest.split(",")] if rest else []
        s.mods = ""
        if ops:
            p = ops[-1].split()
            if len(p) > 1:
                ops[-1] = p[0]
                s.mods = " ".join(p[1:])
        s.ops = ops
        op = s.op
        s.kind = "other"
        s.dst = []
        s.src = []
        R = [regs_of(o) for o in ops]
        flat = lambda l: [x for y in l for x in y]
        if s.label or op.startswith("."):
            s.kind = "label"
        elif op.startswith("v_mfma"):
            s.kind = "mfma"
            s.dst = R[0]; s.A = R[1]; s.B = R[2]; s.C = R[3]; s.src = R[1] + R[2] + R[3]
            s.passes = 8 if "32x32" in op else 4
        elif op.startswith("v_"):
            s.kind = "valu"
            s.dst = R[0]; s.src = flat(R[1:])
            if op.startswith("v_cmpx"):
                s.dst = s.dst + [("s", "exec")]
            if "_co_" in op:
                s.dst = R[0] + R[1]; s.src = flat(R[2:])
            if op.startswith(("v_fmac", "v_mac", "v_dot2c", "v_pk_fmac", "v_writelane")) or "dpp" in op or "row_" in s.mods or "quad_perm" in s.mods or "sdwa" in op:
                s.src = s.src + R[0]
            if op.startswith("v_permlane"):
                s.dst = R[0] + R[1]; s.src = R[0] + R[1]
            if op.startswith("v_cndmask") and len(ops) == 3:
                s.src = s.src + [("s", "vcc")]
            s.dpp = "row_" in s.mods or "quad_perm" in s.mods or "dpp" in op
        elif op.startswith("ds_"):
            s.kind = "ds"
            if op.startswith(("ds_read", "ds_bpermute", "ds_permute", "ds_swizzle")):
                s.dst = R[0]; s.src = flat(R[1:])
                if "d16" in op: s.src = s.src + R[0]
            else:
                s.src = flat(R)
            if "addtid" in op: s.src = s.src + [("s", "m0")]
        elif op.startswith(("buffer_", "global_")):
            s.kind = "vmem"
            s.lds = " lds" in (" " + s.mods) or "load_lds" in op
            if "load" in op and not s.lds:
                s.dst = R[0]; s.src = flat(R[1:])
                if "d16" in op: s.src = s.src + R[0]
            else:
                s.src = flat(R)
                if s.lds: s.src = s.src + [("s", "m0")]
            s.store = "store" in op
            s.wide = s.store and ("x3" in op or "x4" in op)
            if s.store:
                s.data = R[0] if op.startswith("buffer_") else R[1]
        elif op.startswith(("s_load", "s_buffer_load")):
            s.kind = "smem"; s.dst = R[0]; s.src = flat(R[1:])
        elif op.startswith("s_"):
            s.kind = "salu"
            if op.startswith(("s_cmp", "s_cbranch", "s_branch", "s_waitcnt", "s_nop", "s_barrier", "s_endpgm", "s_setprio", "s_bitcmp")):
                s.src = flat(R)
                if "vcc" in op: s.src = [("s", "vcc")]
            else:
                s.dst = R[0] if R else []; s.src = flat(R[1:])
                if "saveexec" in op: s.dst = s.dst + [("s", "exec")]; s.src = s.src + [("s", "exec")]


class K:
    def __init__(s):
        s.L = []

    def __call__(s, text):
        for ln in text.split("\n"):
            ln = ln.strip()
            if ln:
                s.L.append(ln)

    def tag(s, name):
        s.L.append(f"@tag {name}")

    def waitvm(s, name):
        s.L.append(f"@waitvm {name}")

    def reset(s):
        s.L.append("@reset")

    def finish(s):
        out = []
        vq = []; lq = []; smem = []
        vseq = 0; lseq = 0
        tags = {}
        hist = []
        pos = 0
        lastw = {}
        mfma_c = {}
        stdata = {}

        def emit(t, n=1):
            nonlocal pos
            out.append(t); pos += n

        for ln in s.L:
            if ln.startswith("@tag"):
                tags[ln.split()[1]] = vseq; continue
            if ln.startswith("@waitvm"):
                q = tags[ln.split()[1]]
                n = vseq - q
                if any(x[0] <= q for x in vq):
                    assert n <= 63, ("vmcnt overflow", ln, n)
                    emit(f"s_waitcnt vmcnt({n})")
                    vq = [x for x in vq if x[0] > q]
                continue
            if ln.startswith("@reset"):
                vq = []; lq = []; smem = []; continue
            I = Ins(ln)
            if I.kind == "label":
                out.append(ln); continue
            touch = set(I.src) | set(I.dst)
            wv = None; wl = None
            for (q, rg) in vq:
                if rg & touch: wv = q
            for (q, rg) in lq:
                if rg & touch: wl = q
            if any(rg & touch for rg in smem):
                wl = lseq; smem_all = True
            else:
                smem_all = False
            if wv is not None or wl is not None:
                w = []
                if wv is not None:
                    n = min(vseq - wv, 63); w.append(f"vmcnt({n})"); vq = [x for x in vq if x[0] > vseq - n]
                if wl is not None:
                    n = 0 if (smem_all or smem) else min(lseq - wl, 15)
                    w.append(f"lgkmcnt({n})"); lq = [x for x in lq if x[0] > lseq - n]
                    if n == 0: smem = []
                emit("s_waitcnt " + " ".join(w))
            if I.op == "s_waitcnt":
                m = re.search(r"vmcnt\((\d+)\)", ln)
                if m: vq = [x for x in vq if x[0] > vseq - int(m.group(1))]
                m = re.search(r"lgkmcnt\((\d+)\)", ln)
                if m:
                    lq = [x for x in lq if x[0] > lseq - int(m.group(1))]
                    if int(m.group(1)) == 0: smem = []
            need = 0

            def req(p, ws):
                nonlocal need
                need = max(need, ws - (pos - p - 1))
            for r in set(I.src):
                if r not in lastw: continue
                p, c, x = lastw[r]
                if c == "mfma":
                    if I.kind == "mfma" and r in I.C and r not in I.A and r not in I.B:
                        if x[1] != I.C or x[0] != I.passes: req(p, x[0] + 2)
                    else:
                        req(p, x[0] + 4)
                elif c in ("valu", "trans", "dot"):
                    if r[0] == "s":
                        if r[1] == "exec":
                            if I.kind == "valu": req(p, 2)
                        elif I.kind == "valu": req(p, 4 if I.op.startswith(("v_readlane", "v_writelane")) else 2)
                        elif I.kind == "vmem": req(p, 5)
                    else:
                        if I.kind == "mfma": req(p, 2)
                        if I.kind == "valu":
                            if I.dpp or I.op.startswith("v_permlane"): req(p, 2)
                            if I.op.startswith(("v_readlane", "v_readfirstlane")): req(p, 1)
                            if c == "trans": req(p, 1)
                            if x == "opsel": req(p, 1)
                        if c == "trans" and I.kind != "valu": req(p, 1)
                        if c == "dot" and not (I.op == x and r in I.dst and I.src.count(r) == 1): req(p, 3)
                elif c == "salu" and r == ("s", "m0") and I.kind in ("ds", "vmem"):
                    req(p, 1)
            for r in set(I.dst):
                if r in lastw:
                    p, c, x = lastw[r]
                    if c == "mfma" and I.kind != "mfma": req(p, x[0] + 4)
                    if c == "mfma" and I.kind == "mfma" and (x[1] != I.C): req(p, x[0] + 2)
                    if c == "dot" and I.op != x: req(p, 3)
                if r in mfma_c and I.kind == "valu":
                    p, ps = mfma_c[r]; req(p, ps - 1)
                if r in stdata and I.kind in ("valu", "mfma", "ds", "vmem"):
                    req(stdata[r], 2)
            ex = lastw.get(("s", "exec"))
            if ex and ex[1] == "valu":
                if I.kind == "mfma": req(ex[0], 4)
                if I.kind == "valu" and I.dpp: req(ex[0], 5)
                if I.kind == "valu" and I.op.startswith(("v_readlane", "v_readfirstlane", "v_permlane")): req(ex[0], 4)
            while need > 0:
                n = min(need, 16)
                emit(f"s_nop {n - 1}", n); need -= n
            p = pos
            n = 1
            if I.op == "s_nop": n = int(I.ops[0]) + 1
            emit(ln, n)
            if I.kind == "mfma":
                for r in I.dst: lastw[r] = (p, "mfma", (I.passes, I.dst))
                for r in I.C: mfma_c[r] = (p, I.passes)
            elif I.kind == "valu":
                c = "trans" if I.op.startswith(TRANS) else ("dot" if I.op.startswith("v_dot") else "valu")
                x = I.op if c == "dot" else ("opsel" if ("sdwa" in I.op and "dst_sel:DWORD" not in I.mods and "dst_sel" in I.mods) else None)
                for r in I.dst: lastw[r] = (p, c, x)
            elif I.kind == "salu":
                for r in I.dst: lastw[r] = (p, "salu", None)
            else:
                for r in I.dst: lastw.pop(r, None)
            if I.kind == "vmem":
                vseq += 1
                vq.append((vseq, set(I.dst)))
                if I.wide:
                    for r in I.data: stdata[r] = p
            elif I.kind == "ds":
                lseq += 1
                lq.append((lseq, set(I.dst)))
            elif I.kind == "smem":
                lseq += 1
                smem.append(set(I.dst))
        return out


def vr(a, n=1, f="v"):
    return f"{f}{a}" if n == 1 else f"{f}[{a}:{a + n - 1}]"
```

```python
from asmlib import K, vr
import layout as LY
import math
from gen_cd import fbits
LOG2E = math.log2(math.e)

def mksrd(k, d, slot, nbytes):
    k(f"s_load_dwordx2 s[{d}:{d+1}], s[0:1], {slot}\ns_mov_b32 s{d+2}, {nbytes}\ns_mov_b32 s{d+3}, 0x00020000")

def kA(opt):
    k = K()
    NLN = 256; NKG = 640
    k(f"s_cmp_ge_u32 s2, {NLN+NKG}\ns_cbranch_scc1 A_end")
    mksrd(k, 4, 104, LY.WS_END)
    k("v_lshrrev_b32 v1, 6, v0\nv_and_b32 v2, 63, v0\nv_readfirstlane_b32 s3, v1")
    k(f"s_cmp_ge_u32 s2, {NLN}\ns_cbranch_scc1 A_kgen")
    k("s_cmp_eq_u32 s3, 2\ns_cbranch_scc1 A_pref")
    mksrd(k, 8, 0, 2621440)
    k("v_lshrrev_b32 v3, 4, v0\nv_and_b32 v4, 15, v0\nv_lshlrev_b32 v4, 4, v4")
    k("v_mul_u32_u24 v5, 1280, v3\nv_add_u32 v5, v5, v4\ns_mul_i32 s12, s2, 10240")
    X = 16
    for j in range(5): k(f"buffer_load_dwordx4 {vr(X+4*j,4)}, v5, s[8:11], s12 offen offset:{256*j}")
    k("v_mul_u32_u24 v6, 1344, v3\nv_add_u32 v6, v6, v4")
    k("v_bfe_u32 v7, v0, 2, 2\nv_mul_u32_u24 v7, 1344, v7\nv_and_b32 v8, 3, v0\nv_lshl_add_u32 v7, v8, 3, v7\nv_bfe_u32 v8, v0, 4, 2\nv_lshl_add_u32 v7, v8, 5, v7\nv_mul_u32_u24 v8, 640, v1\nv_add_u32 v7, v7, v8")
    k(f"v_lshlrev_b32 v9, 4, v2\ns_mul_i32 s13, s3, 5120\ns_add_u32 s12, s12, s13\ns_add_u32 s13, s12, 4096")
    k("s_mov_b32 s30, 0x3f803f80\nv_mov_b32 v10, 0\nv_mov_b32 v11, 0\nv_mov_b32 v12, 0\nv_mov_b32 v13, 0")
    for q in range(20):
        k(f"v_dot2c_f32_bf16 v{10+2*(q&1)}, s30, v{X+q}\nv_dot2c_f32_bf16 v{11+2*(q&1)}, v{X+q}, v{X+q}")
    k("v_add_f32 v10, v10, v12\nv_add_f32 v11, v11, v13")
    for r in (8, 4, 2, 1):
        k(f"v_add_f32_dpp v10, v10, v10 row_ror:{r} row_mask:0xf bank_mask:0xf\nv_add_f32_dpp v11, v11, v11 row_ror:{r} row_mask:0xf bank_mask:0xf")
    k(f"v_mul_f32 v10, {fbits(-1/640)}, v10\nv_mul_f32 v11, {fbits(1/640)}, v11\nv_fma_f32 v11, -v10, v10, v11\nv_max_f32 v11, 0, v11")
    k(f"v_cvt_pk_bf16_f32 v11, v10, v11\nv_lshlrev_b32 v10, 16, v11\nv_and_b32 v11, 0xffff0000, v11\nv_add_f32 v11, {fbits(1e-5)}, v11")
    k("v_cvt_pk_bf16_f32 v11, v11, v11\nv_and_b32 v11, 0xffff0000, v11\nv_sqrt_f32 v11, v11\nv_cvt_pk_bf16_f32 v11, v11, v11\nv_and_b32 v11, 0xffff0000, v11")
    k("v_rcp_f32 v12, v11\nv_mul_f32 v14, v10, v12")
    for j in range(5):
        for q in range(4):
            x = X + 4 * j + q; t = 40 + 2 * q
            k(f"v_lshlrev_b32 v{t}, 16, v{x}\nv_and_b32 v{t+1}, 0xffff0000, v{x}")
        for q in range(4):
            t = 40 + 2 * q
            k(f"v_pk_fma_f32 {vr(t,2)}, {vr(t,2)}, v[12:13], v[14:15] op_sel_hi:[1,0,0]")
        for q in range(4):
            k(f"v_cvt_pk_bf16_f32 v{X+4*j+q}, v{40+2*q}, v{41+2*q}")
        k(f"ds_write_b128 v6, {vr(X+4*j,4)} offset:{256*j}")
    k("s_waitcnt lgkmcnt(0)\ns_barrier")
    for j in range(5):
        k(f"ds_read_b64_tr_b16 {vr(X+4*j,2)}, v7 offset:{128*j}\nds_read_b64_tr_b16 {vr(X+4*j+2,2)}, v7 offset:{128*j+4*1344}")
    for j in range(5):
        k(f"buffer_store_dwordx4 {vr(X+4*j,4)}, v9, s[4:7], s{12+j//4} offen offset:{1024*(j%4)} sc1")
    k("s_endpgm")
    k("A_pref:"); k.reset()
    mksrd(k, 8, 64, 1966080); mksrd(k, 12, 72, 1966080); mksrd(k, 16, 80, 1966080)
    k("s_getpc_b64 s[20:21]\nA_pc0:\ns_add_u32 s20, s20, kA_kernel-A_pc0\ns_addc_u32 s21, s21, -1")
    k("s_lshr_b32 s22, s2, 3\ns_lshl_b32 s22, s22, 13\nv_lshlrev_b32 v3, 7, v2\nv_add_u32 v4, s22, v3")
    k("v_min_u32 v4, code_end-kA_kernel, v4\nglobal_load_dword v5, v4, s[20:21]")
    k("s_mul_i32 s22, s2, 7680\ns_waitcnt lgkmcnt(0)")
    for m in range(3): k(f"buffer_load_dword v{6+m}, v3, s[{8+4*m}:{11+4*m}], s22 offen")
    k("s_waitcnt vmcnt(0)\ns_endpgm")
    k("A_kgen:"); k.reset()
    k("s_load_dwordx8 s[8:15], s[0:1], 8\ns_load_dwordx4 s[16:19], s[0:1], 40")
    k(f"s_sub_u32 s2, s2, {NLN}\ns_mul_i32 s20, s2, 384\nv_lshlrev_b32 v3, 1, v0\nv_add_u32 v3, s20, v3\ns_lshl_b32 s21, s2, 1\nv_mov_b32 v4, s21")
    k("s_getpc_b64 s[22:23]\nA_pc1:\ns_add_u32 s22, s22, A_tab-A_pc1\ns_addc_u32 s23, s23, 0\nv_lshlrev_b32 v5, 4, v0")
    k("s_waitcnt lgkmcnt(0)")
    k("global_load_ushort v10, v4, s[16:17]\nglobal_load_ushort v6, v3, s[8:9]\nglobal_load_ushort v7, v3, s[10:11]\nglobal_load_ushort v8, v3, s[12:13]\nglobal_load_ushort v9, v3, s[14:15]\nglobal_load_ushort v11, v4, s[18:19]")
    k("global_load_dwordx4 v[12:15], v5, s[22:23]")
    RS = 288; PB = 16 * RS; WB = 2 * PB; TB = 3 * WB
    k(f"s_mul_i32 s24, s3, {WB}\nv_lshl_add_u32 v16, v2, 2, s24\nv_and_b32 v17, 15, v2\nv_mul_u32_u24 v17, {RS}, v17\nv_lshrrev_b32 v18, 4, v2\nv_lshl_add_u32 v17, v18, 4, v17\nv_add_u32 v17, s24, v17")
    k(f"v_mov_b32 v18, 0x3f80\nds_write_b32 v16, v18 offset:{PB}\nv_mov_b32 v18, 0\nv_mov_b32 v19, {TB+1536}\nds_write_b32 v19, v18")
    k(f"s_mul_i32 s25, s2, 3072\ns_add_u32 s25, s25, {LY.KP}")
    k(f"v_lshlrev_b32 v10, 16, v10\nv_lshlrev_b32 v6, 16, v6\nv_mul_f32 v10, {fbits(LOG2E)}, v10\nv_mul_f32 v6, {fbits(LOG2E)}, v6\nv_exp_f32 v10, v10\nv_exp_f32 v6, v6")
    k("v_lshlrev_b32 v7, 16, v7\nv_cvt_pk_bf16_f32 v6, v6, v10\nv_and_b32 v10, 0xffff0000, v6\nv_lshlrev_b32 v6, 16, v6")
    k(f"v_mul_f32 v6, v6, v10\nv_mul_f32 v7, v7, v10\nv_mul_f32 v6, {fbits(-LOG2E)}, v6\nv_mul_f32 v7, 0.15915494, v7")
    k(f"v_mul_f32 v18, 0x43000000, v6\nv_mul_f32 v19, 0x43000000, v7\nv_fract_f32 v7, v7\nv_fract_f32 v19, v19")
    W = {n: 20 + 2 * i for i, n in enumerate((1, 2, 4, 8, 3, 5, 6, 7))}
    G = {m: 36 + 2 * (m - 1) for m in range(1, 8)}
    k(f"v_exp_f32 v6, v6\nv_exp_f32 v18, v18\nv_cos_f32 v{W[1]}, v7\nv_sin_f32 v{W[1]+1}, v7\nv_cos_f32 v{G[1]}, v19\nv_sin_f32 v{G[1]+1}, v19")
    k("v_lshlrev_b32 v8, 16, v8\nv_lshlrev_b32 v9, 16, v9\nv_add_f32 v10, v10, v10")
    k(f"v_pk_mul_f32 {vr(W[1],2)}, {vr(W[1],2)}, v[6:7] op_sel_hi:[1,0]\nv_pk_mul_f32 {vr(G[1],2)}, {vr(G[1],2)}, v[18:19] op_sel_hi:[1,0]")
    k("v_pk_mul_f32 v[8:9], v[8:9], v[10:11] op_sel_hi:[1,0]")
    tmp = [50, 52, 54, 56]; ti = [0]; cv = [58, 59, 60, 61]; ci = [0]; chain = [0]
    def cm(d, x, y):
        t = tmp[2 * chain[0] + ti[0] % 2]; ti[0] += 1
        return [f"v_pk_mul_f32 {vr(t,2)}, {vr(x,2)}, {vr(y,2)} op_sel:[0,0] op_sel_hi:[0,1]",
                f"v_pk_fma_f32 {vr(d,2)}, {vr(x,2)}, {vr(y,2)}, {vr(t,2)} op_sel:[1,1,0] op_sel_hi:[1,0,1] neg_lo:[0,1,0]"]
    def wr(x, buf, row, neg=False):
        c = cv[2 * chain[0] + ci[0] % 2]; ci[0] += 1
        return [f"v_cvt_pk_bf16_f32 v{c}, v{x}, {'-' if neg else ''}v{x+1}", f"ds_write_b32 v16, v{c} offset:{buf*PB+row*RS}"]
    def zipl(*ls):
        n = max(len(l) for l in ls)
        for i in range(n):
            for l in ls:
                if i < len(l): k(l[i])
    GA, GB, VA, VB = 62, 64, 66, 68
    gl = wr(G[1], 1, 1); prev = G[1]
    for m in range(2, 17):
        d = G.get(m, GA if m & 1 else GB)
        gl += cm(d, prev, G[1]); prev = d
        if m < 16: gl += wr(d, 1, m)
    G16 = prev
    chain[0] = 1
    vl = cm(W[2], W[1], W[1]) + cm(W[4], W[2], W[2]) + cm(W[8], W[4], W[4]) + wr(8, 0, 0, True); prev = 8
    for b in range(1, 16):
        d = VA if b & 1 else VB
        vl += cm(d, prev, W[8]) + wr(d, 0, b, True); prev = d
    zipl(vl, gl)
    VF = 72; UF = 88; D = [104, 108, 112]
    for s in range(4): k(f"ds_read_b128 {vr(VF+4*s,4)}, v17 offset:{64*s}\nds_read_b128 {vr(UF+4*s,4)}, v17 offset:{PB+64*s}")
    a = wr(G16, 0, 0) + wr(W[4], 0, 1) + wr(W[2], 0, 9) + cm(W[6], W[2], W[4]) + wr(W[6], 0, 13)
    chain[0] = 0
    b = cm(W[3], W[1], W[2]) + cm(W[5], W[1], W[4]) + cm(W[7], W[3], W[4])
    zipl(a, b)
    def mm(t, uf):
        for s in range(4): k(f"v_mfma_f32_16x16x32_bf16 {vr(D[t],4)}, {vr(uf+4*s,4)}, {vr(VF+4*s,4)}, {'0' if s==0 else vr(D[t],4)}")
    mm(0, UF)
    jobs = [(W[4], m, 0, 1 + m) for m in range(1, 8)] + [(W[2], m, 0, 9 + m) for m in range(1, 4)] + [(W[6], m, 0, 13 + m) for m in range(1, 3)]
    def run(jobs):
        for i in range(0, len(jobs), 2):
            ls = []
            for j, (w, m, buf, row) in enumerate(jobs[i:i+2]):
                d = (GA, VA)[j]; chain[0] = j
                ls.append(cm(d, w, G[m]) + wr(d, buf, row))
            zipl(*ls)
    run(jobs)
    UF2 = UF
    for s in range(4): k(f"ds_read_b128 {vr(UF2+4*s,4)}, v17 offset:{64*s}")
    chain[0] = 0; a = wr(W[1], 1, 1) + wr(W[5], 1, 3)
    chain[0] = 1; b = wr(W[3], 1, 2) + wr(W[7], 1, 4)
    zipl(a, b)
    run([(W[6], 3, 1, 0)] + [(W[o], 1, 1, 5 + i) for i, o in enumerate((1, 3, 5, 7))])
    for s in range(4): k(f"ds_read_b128 {vr(32+4*s,4)}, v17 offset:{PB+64*s}")
    mm(1, UF2)
    mm(2, 32)
    k("v_lshl_add_u32 v16, v2, 4, s24\nv_lshlrev_b32 v17, 4, v0")
    for t in range(3): k(f"ds_write_b128 v16, {vr(D[t],4)} offset:{1024*t}")
    for i in range(4): k(f"v_and_b32 v{20+2*i}, 0xffff, v{12+i}\nv_lshrrev_b32 v{21+2*i}, 16, v{12+i}")
    k("v_lshlrev_b32 v11, 16, v11\nv_cmp_eq_u32 vcc, 0, v0\nv_lshlrev_b32 v18, 3, v0\nv_cndmask_b32 v11, 0, v11, vcc")
    k("s_waitcnt lgkmcnt(0)\ns_barrier")
    for w in range(3): k(f"ds_read_b128 {vr(72+4*w,4)}, v17 offset:{w*WB}")
    k("v_add_f32 v72, v72, v11")
    k("v_pk_add_f32 v[72:73], v[72:73], v[76:77]\nv_pk_add_f32 v[74:75], v[74:75], v[78:79]\nv_pk_add_f32 v[72:73], v[72:73], v[80:81]\nv_pk_add_f32 v[74:75], v[74:75], v[82:83]")
    k(f"v_cvt_pk_bf16_f32 v72, v72, v73\nv_cvt_pk_bf16_f32 v73, v74, v75\nds_write_b64 v18, v[72:73] offset:{TB}")
    k("s_waitcnt lgkmcnt(0)\ns_barrier")
    for i in range(8): k(f"ds_read_u16 v{28+i}, v{20+i}")
    for i in range(4): k(f"v_lshl_or_b32 v{12+i}, v{29+2*i}, 16, v{28+2*i}")
    k("buffer_store_dwordx4 v[12:15], v5, s[4:7], s25 offen sc1")
    k("A_end:\ns_endpgm")
    data = [".p2align 7", "A_tab:"] + [f".long 0x{x:08x}" for x in LY.gather_table(TB)]
    return dict(name="kA_kernel", code=k.finish(), data=data, grid=NLN + NKG, block=192, lds=TB + 1552, vgpr=116, agpr=0)

def kB(opt):
    k = K()
    UB = 0; KB = 36864; SH = 61440; CSR = SH + 32768; RS = 2112
    k("s_cmp_ge_u32 s2, 240\ns_cbranch_scc1 B_end")
    mksrd(k, 4, 104, LY.WS_END); mksrd(k, 8, 0, 2621440)
    k("s_load_dwordx4 s[40:43], s[0:1], 64\ns_load_dwordx2 s[44:45], s[0:1], 80")
    k("v_lshrrev_b32 v1, 6, v0\nv_and_b32 v2, 63, v0\nv_readfirstlane_b32 s3, v1")
    k("s_lshr_b32 s12, s2, 3\ns_mul_i32 s13, s12, 26\ns_lshr_b32 s13, s13, 8\ns_mul_i32 s14, s13, 10\ns_sub_u32 s12, s12, s14\ns_and_b32 s14, s2, 7\ns_mul_i32 s14, s14, 10\ns_add_u32 s12, s12, s14")
    k("v_lshrrev_b32 v4, 3, v2\nv_and_b32 v5, 7, v2\nv_lshrrev_b32 v6, 4, v2\nv_and_b32 v7, 1, v1\nv_lshl_add_u32 v7, v7, 2, v6\nv_xor_b32 v7, v5, v7\nv_mul_u32_u24 v3, 10240, v4\nv_lshl_add_u32 v3, v7, 4, v3")
    k(f"s_lshl_b32 s15, s12, 7\ns_mul_i32 s16, s3, 81920\ns_add_u32 s15, s15, s16\ns_lshl_b32 s17, s3, 10\ns_add_u32 s17, s17, 4096")
    k("v_lshlrev_b32 v8, 4, v2")
    k(f"s_lshl_b32 s18, s12, 3\ns_add_u32 s18, s18, s3\ns_mul_i32 s18, s18, 3072\ns_add_u32 s18, s18, {LY.KP}\ns_mul_i32 s19, s3, 3072\ns_add_u32 s19, s19, {KB}")
    k("s_waitcnt lgkmcnt(0)")
    k("s_mov_b32 m0, s17\ns_nop 0\nbuffer_load_dwordx4 v3, s[4:7], s15 offen lds")
    k(f"s_add_u32 m0, s17, 8192\ns_add_u32 s16, s15, {8*81920}\nbuffer_load_dwordx4 v3, s[4:7], s16 offen lds")
    k("s_mov_b32 m0, s19\ns_nop 0")
    for i in range(3): k(f"buffer_load_dwordx4 v8, s[4:7], s18 offen offset:{1024*i} lds")
    k(f"s_cmp_eq_u32 s13, 0\ns_cbranch_scc1 B_u1\ns_add_u32 m0, s17, 16384\ns_add_u32 s16, s15, {16*81920}\nbuffer_load_dwordx4 v3, s[4:7], s16 offen lds")
    k(f"s_cmp_eq_u32 s13, 1\ns_cbranch_scc1 B_u1\ns_add_u32 m0, s17, 24576\ns_add_u32 s16, s15, {24*81920}\nbuffer_load_dwordx4 v3, s[4:7], s16 offen lds")
    k("B_u1:")
    k(f"s_lshl_b32 s20, s3, 12\ns_add_u32 s20, s20, {SH}")
    k("s_mov_b32 s26, 1966080\ns_mov_b32 s27, 0x00020000\ns_mov_b32 s30, 1966080\ns_mov_b32 s31, 0x00020000")
    k("s_cmp_ge_u32 s2, 120\ns_cbranch_scc1 B_s1")
    k("s_mul_i32 s21, s2, 52\ns_lshr_b32 s21, s21, 8\ns_cmp_ge_u32 s2, 64\ns_cbranch_scc0 B_s0\ns_sub_u32 s21, s2, 60\ns_mul_i32 s21, s21, 52\ns_lshr_b32 s21, s21, 8\ns_add_u32 s21, s21, 12\nB_s0:")
    k("s_mul_i32 s22, s21, 5\ns_sub_u32 s22, s2, s22\ns_lshl_b32 s23, s22, 3\ns_add_u32 s23, s23, s3")
    k("s_mov_b32 s24, s40\ns_mov_b32 s25, s41\ns_mov_b32 s28, s42\ns_mov_b32 s29, s43")
    k("v_and_b32 v9, 2, v4\nv_xor_b32 v9, v9, v5\nv_mul_u32_u24 v10, 3072, v4\nv_lshl_add_u32 v9, v9, 4, v10\nv_xor_b32 v10, 64, v9")
    k(f"s_mul_i32 s32, s23, {16*3072}\ns_lshl_b32 s33, s21, 7\ns_add_u32 s32, s32, s33\ns_add_u32 s33, s32, {8*3072}")
    for i in range(4):
        k(f"s_add_u32 m0, s20, {1024*i}\ns_nop 0\nbuffer_load_dwordx4 v{9+i//2}, s[{24+4*(i//2)}:{27+4*(i//2)}], s{32+(i&1)} offen lds")
    k("s_branch B_s2")
    k("B_s1:\ns_cmp_ge_u32 s2, 180\ns_cbranch_scc1 B_s2")
    k("s_sub_u32 s22, s2, 120\ns_mul_i32 s21, s22, 26\ns_lshr_b32 s21, s21, 8\ns_mul_i32 s23, s21, 10\ns_sub_u32 s22, s22, s23\ns_lshl_b32 s23, s21, 3\ns_add_u32 s23, s23, s3")
    k("s_mov_b32 s24, s44\ns_mov_b32 s25, s45")
    k("v_and_b32 v9, 2, v4\nv_lshlrev_b32 v9, 1, v9\nv_bfe_u32 v10, v4, 2, 1\nv_lshl_add_u32 v9, v10, 1, v9\nv_xor_b32 v9, v9, v5\nv_mul_u32_u24 v10, 1280, v4\nv_lshl_add_u32 v9, v9, 4, v10")
    k(f"s_mul_i32 s32, s23, {32*1280}\ns_lshl_b32 s33, s22, 7\ns_add_u32 s32, s32, s33")
    for i in range(4):
        k(f"s_add_u32 m0, s20, {1024*i}\ns_add_u32 s33, s32, {8*1280*i}\nbuffer_load_dwordx4 v9, s[24:27], s33 offen lds")
    k("B_s2:")
    k.reset()
    k("s_lshl_b32 s34, s13, 9\ns_add_u32 s34, s34, 512\ns_cmp_eq_u32 s13, 0\ns_cselect_b32 s34, 0, s34")
    k("v_add_u32 v11, s34, v0\nv_lshlrev_b32 v12, 4, v11\nv_mul_u32_u24 v11, 1280, v11\ns_lshl_b32 s35, s12, 4")
    XR = 16
    k(f"buffer_load_dwordx4 {vr(XR,4)}, v11, s[8:11], s35 offen\ns_add_u32 s35, s35, {512*1280}\ns_cmp_eq_u32 s13, 0\ns_cselect_b32 s35, s35, 0x7000000\nbuffer_load_dwordx4 {vr(XR+4,4)}, v11, s[8:11], s35 offen")
    k(f"s_lshl_b32 s36, s12, 15\ns_add_u32 s36, s36, {LY.H}\ns_add_u32 s37, s36, 8192")
    k("v_mov_b32 v24, 0\nv_mov_b32 v25, 0\nv_lshlrev_b32 v13, 3, v0\nds_write_b64 v13, v[24:25]")
    AU = 26
    k("v_and_b32 v13, 15, v2")
    k("v_lshl_add_u32 v14, v13, 1, v6")
    for m in range(5):
        off = 32 - 2 + 4 * m if m < 4 else 32 - 3
        k(f"v_add_u32 v15, {off}, v14\nv_bfe_u32 v24, v15, 1, 3\nv_xor_b32 v24, v24, v1\nv_lshlrev_b32 v15, 7, v15\nv_lshl_add_u32 v{AU+m}, v24, 4, v15")
    k(f"v_sub_u32 v15, 15, v13\nv_lshrrev_b32 v15, 1, v15\nv_lshl_add_u32 v15, v6, 2, v15\nv_and_b32 v24, 1, v13\nv_xor_b32 v24, 1, v24\nv_mul_u32_u24 v24, 464, v24\nv_add_u32 v15, v15, v24\nv_lshl_add_u32 v31, v15, 2, s19\nv_add_u32 v32, 512, v31")
    k(f"v_sub_u32 v15, 295, v13\nv_lshl_add_u32 v15, v6, 2, v15\nv_lshl_add_u32 v33, v15, 2, s19")
    k(f"s_mul_i32 s38, s3, {RS}\ns_add_u32 s38, s38, {SH}\nv_lshlrev_b32 v15, 5, v13\nv_lshl_add_u32 v15, v6, 3, v15\nv_add_u32 v34, s38, v15")
    k(f"v_bfe_u32 v15, v2, 2, 2\nv_mul_u32_u24 v15, {RS}, v15\nv_and_b32 v24, 3, v2\nv_lshl_add_u32 v15, v24, 3, v15\nv_lshrrev_b32 v24, 4, v0\nv_lshl_add_u32 v15, v24, 5, v15\nv_add_u32 v35, {SH}, v15")
    MK = {n: 36 + 4 * i for i, n in enumerate("abcdoes")}
    F = 64
    k("v_lshlrev_b32 v15, 3, v6\nv_sub_u32 v15, v13, v15\nv_add_u32 v24, 15, v15\nv_add_u32 v15, 16, v15\nv_and_b32 v15, 0xffff, v15\nv_lshl_or_b32 v15, v24, 16, v15\ns_mov_b32 s39, 0x3f803f80")
    for c in range(3, 21): k(f"v_pk_sub_i16 v{F+c-3}, v15, {c} op_sel_hi:[1,0]")
    for c in range(3, 21): k(f"v_pk_ashrrev_i16 v{F+c-3}, 15, v{F+c-3} op_sel_hi:[0,1]")
    win = dict(a=(3, 6), b=(6, 11), c=(11, 14), d=(6, 11), o=(5, 12), e=(4, 13), s=(3, 5))
    MK["d"] = MK["b"]
    for n in "abcoe":
        lo, hi = win[n]
        for p in range(4): k(f"v_bitop3_b32 v{MK[n]+p}, v{F+lo+2*p-3}, v{F+hi+2*p-3}, s39 bitop3:0x28")
    for p in range(4): k(f"v_xor_b32 v{MK['s']+p}, v{F+2*p}, v{F+2+2*p}")
    k("s_waitcnt vmcnt(2)")
    FR = 84
    k("s_cmp_ge_u32 s2, 180\ns_cbranch_scc1 B_p2\ns_cmp_ge_u32 s2, 120\ns_cbranch_scc1 B_p1")
    k("v_bfe_u32 v64, v2, 4, 1\nv_lshrrev_b32 v65, 5, v2\nv_bfe_u32 v66, v2, 2, 2\nv_and_b32 v67, 3, v2")
    k("v_mul_u32_u24 v68, 2112, v64\nv_lshl_add_u32 v68, v65, 10, v68\nv_lshl_add_u32 v68, v66, 7, v68\nv_lshl_add_u32 v68, v67, 3, v68\nv_and_b32 v66, 2, v66\nv_lshl_add_u32 v68, v66, 4, v68\nv_add_u32 v68, s20, v68")
    for w in range(1, 4): k(f"v_xor_b32 v{68+w}, {32*w}, v68")
    for w in range(4):
        for e in range(2): k(f"ds_read_b64_tr_b16 {vr(FR+4*w+2*e,2)}, v{68+w} offset:{512*e}")
    k(f"s_mul_i32 s32, s21, {4*41984}\ns_lshl_b32 s33, s23, 10\ns_add_u32 s32, s32, {LY.W1P}\ns_add_u32 s33, s33, s32")
    for w in range(4): k(f"v_mov_b32 v{72+w}, 0")
    for w in range(4):
        if w: k(f"s_add_u32 s33, s33, 41984")
        k(f"buffer_store_dwordx4 {vr(FR+4*w,4)}, v8, s[4:7], s33 offen sc1")
    for q in range(4):
        for w in range(4): k(f"v_dot2c_f32_bf16 v{72+w}, s39, v{FR+4*w+q}")
    k(f"v_lshlrev_b32 v64, 4, v0\nds_write_b128 v64, v[72:75] offset:{CSR-65536+65536 if CSR < 65536 else 0}" if CSR < 65536 else f"v_lshlrev_b32 v64, 4, v0\nv_add_u32 v64, {CSR}, v64\nds_write_b128 v64, v[72:75]")
    k("s_branch B_p2")
    k("B_p1:"); k.reset()
    k("v_bfe_u32 v66, v2, 2, 2\nv_and_b32 v67, 3, v2\nv_lshrrev_b32 v65, 5, v2\nv_and_b32 v64, 1, v6")
    k("v_lshlrev_b32 v68, 11, v65\nv_lshl_add_u32 v68, v64, 9, v68\nv_lshl_add_u32 v68, v66, 7, v68\nv_add_u32 v68, s20, v68")
    k("v_and_b32 v66, 2, v66\nv_lshlrev_b32 v66, 5, v66\nv_lshl_add_u32 v66, v64, 5, v66")
    for vv in range(2):
        k(f"s_lshl_b32 s32, s22, 1\ns_add_u32 s32, s32, {vv}\ns_mul_i32 s33, s32, 52\ns_lshr_b32 s33, s33, 8\ns_mul_i32 s33, s33, 5\ns_sub_u32 s32, s32, s33\ns_cmp_eq_u32 s32, 2\ns_cselect_b32 s32, 3, 4\ns_cselect_b32 s33, 32, 8")
        k(f"v_lshlrev_b32 v69, s32, v67\nv_add_u32 v69, {64*vv}, v69\nv_add_u32 v70, s33, v69\nv_xor_b32 v69, v69, v66\nv_xor_b32 v70, v70, v66\nv_add_u32 v69, v69, v68\nv_add_u32 v70, v70, v68")
        for e in range(2):
            for e2 in range(2): k(f"ds_read_b64_tr_b16 {vr(FR+8*vv+4*e+2*e2,2)}, v{69+e} offset:{1024*e2}")
    for i in range(4):
        k(f"s_lshl_b32 s32, s22, 2\ns_add_u32 s32, s32, {i}\ns_mul_i32 s33, s32, 52\ns_lshr_b32 s33, s33, 8\ns_mul_i32 s46, s33, 5\ns_sub_u32 s32, s32, s46")
        k(f"s_and_b32 s46, s33, 1\ns_sub_u32 s32, s32, s46\ns_cselect_b32 s32, 4, s32\ns_mul_i32 s33, s33, 48\ns_add_u32 s33, s33, s23\ns_mul_i32 s33, s33, 5\ns_add_u32 s33, s33, s32\ns_lshl_b32 s33, s33, 10\ns_add_u32 s33, s33, {LY.WDP}")
        k(f"buffer_store_dwordx4 {vr(FR+4*i,4)}, v8, s[4:7], s33 offen sc1")
    k("B_p2:"); k.reset()
    k("s_waitcnt lgkmcnt(0)\ns_barrier")
    k("s_cmp_ge_u32 s2, 120\ns_cbranch_scc1 B_c1\ns_cmp_ge_u32 s3, 2\ns_cbranch_scc1 B_c1")
    k(f"v_and_b32 v64, 31, v0\nv_lshrrev_b32 v65, 5, v0\nv_lshlrev_b32 v64, 4, v64\nv_lshl_add_u32 v66, v65, 2, v64\nv_add_u32 v66, {CSR}, v66")
    for j in range(8): k(f"ds_read2st64_b32 {vr(68+2*j,2)}, v66 offset0:{4*j} offset1:{4*j+2}")
    k(f"v_mul_u32_u24 v65, 41984, v65\nv_add_u32 v64, v64, v65\ns_add_u32 s32, s32, 40960\ns_lshl_b32 s33, s22, 2")
    for j in range(1, 8): k(f"v_pk_add_f32 v[68:69], v[68:69], {vr(68+2*j,2)}")
    k("v_add_f32 v68, v68, v69\nv_cvt_pk_bf16_f32 v69, v68, v68\nv_and_b32 v69, 0xffff0000, v69\nv_sub_f32 v70, v68, v69\nv_cvt_pk_bf16_f32 v68, v69, v70")
    k("s_cmp_eq_u32 s22, 4\ns_cbranch_scc1 B_c0\ns_add_u32 s32, s32, s33\nbuffer_store_dword v68, v64, s[4:7], s32 offen sc1\ns_branch B_c1")
    k("B_c0:\nv_mov_b32 v69, 0\nv_mov_b32 v70, 0\nv_mov_b32 v71, 0\nbuffer_store_dwordx4 v[68:71], v64, s[4:7], s32 offen offset:512 sc1\ns_nop 1")
    k("B_c1:"); k.reset()
    k("s_cmp_eq_u32 s13, 1\ns_cbranch_scc1 B_t1\ns_cmp_eq_u32 s13, 2\ns_cbranch_scc1 B_t2")
    maxv = 0
    for third, tiles in enumerate(([0, 1, 2, 3], [4, 5], [6, 7])):
        k(f"B_t{third}:"); k.reset()
        ACC = {T: 64 + 4 * i for i, T in enumerate(tiles)}
        pool = list(range(80, 256, 4))
        def ld(v, r):
            if v[0] == "B":
                b = v[1]; return [f"ds_read_b128 {vr(r,4)}, v{AU+b%4} offset:{(b//4)*2048}"] if b >= 0 else [f"ds_read_b128 {vr(r,4)}, v{NEG+b%4} offset:{(b//4+2)*2048 if b%4 else 0}"]
            if v[0] == "B24": return [f"ds_read_b128 {vr(r,4)}, v30 offset:{v[1]*4096}"]
            if v[0] == "A":
                o = 16 * (16 - v[1]); a = 31
                if o >= 128: o -= 128; a = 32
            else:
                o = {"oe": 112, "ab": 128, "cd": 176}[v[0]] - 16 * v[1]; a = 33
            return [f"ds_read2_b32 {vr(r,2)}, v{a} offset0:{o} offset1:{o+1}", f"ds_read2_b32 {vr(r+2,2)}, v{a} offset0:{o+2} offset1:{o+3}"]
        NEG = 20 + 0
        if third == 0:
            NEG = pool.pop(0)
            for m in range(4): k(f"v_subrev_u32 v{NEG+m}, {4096 if m else 2048}, v{AU+m}")
        else:
            k(f"v_lshlrev_b32 v24, 0, s19\nds_read_b32 v24, v24 offset:{456*4}")
        full = []
        for q in range(17):
            for T in reversed(tiles):
                if 8 * T - q >= -7: full.append(("M", T, ("A", q), ("B", 8 * T - q)))
        sops = []; tops = []
        for Tp in range(8):
            for pr, Ds in (("ab", (2, 3, 4)), ("cd", (2, 3, 4)), ("oe", (4, 5, 6, 7))):
                us = [T for T in tiles if T - Tp in Ds]
                if not us: continue
                sops.append((pr, Tp))
                for T in us: tops.append(("M", T, ("P", pr, Tp), (pr, T - Tp)))
        spec = [("M", T, ("spec",), ("B", 8 * (T - 4))) for T in tiles if T >= 4]
        ops = []
        fi = 0
        for i, (pr, Tp) in enumerate(sops):
            for n in pr: ops.append(("S", n, Tp, ("B24", Tp) if n in "de" else ("B", 8 * Tp)))
            ops += full[fi:fi + 2]; fi += 2
            ops.append(("cvt", pr, Tp))
        ops += spec + full[fi:fi + 4] + tops + full[fi + 4:]
        def vals(o):
            if o[0] == "M": return [v for v in o[2:] if v[0] not in ("P", "spec")]
            if o[0] == "S": return [o[3]]
            return []
        last = {}
        for i, o in enumerate(ops):
            for v in vals(o): last[v] = i
            if o[0] == "M" and o[2][0] == "P": last[o[2]] = i
        reg = {}; started = set(); LA = opt.get("bla", 5)
        def prefetch(i):
            if i < len(ops):
                for v in vals(ops[i]):
                    if v not in reg:
                        reg[v] = pool.pop(0)
                        for s in ld(v, reg[v]): k(s)
        for i in range(LA): prefetch(i)
        specdone = False
        for i, o in enumerate(ops):
            if o[0] == "S":
                r = pool.pop(0); reg[("S", o[1], o[2])] = r
                k(f"v_mfma_f32_16x16x32_bf16 {vr(r,4)}, {vr(reg[o[3]],4)}, {vr(MK[o[1]],4)}, 0")
            elif o[0] == "cvt":
                r0 = reg.pop(("S", o[1][0], o[2])); r1 = reg.pop(("S", o[1][1], o[2]))
                for p in range(4): k(f"v_cvt_pk_bf16_f32 v{r0+p}, v{r0+p}, v{r1+p}")
                reg[("P", o[1], o[2])] = r0; pool.append(r1)
            else:
                T = o[1]
                if o[2][0] == "spec":
                    if not specdone:
                        for p in range(4): k(f"v_and_b32 v{MK['s']+p}, v{MK['s']+p}, v24")
                        specdone = True
                    a = MK["s"]
                else: a = reg[o[2]]
                k(f"v_mfma_f32_16x16x32_bf16 {vr(ACC[T],4)}, {vr(a,4)}, {vr(reg[o[3]],4)}, {vr(ACC[T],4) if T in started else '0'}")
                started.add(T)
            for v in list(reg):
                if last.get(v) == i: pool.append(reg.pop(v))
            prefetch(i + LA)
        for i, T in enumerate(tiles):
            a = ACC[T]
            k(f"v_cvt_pk_bf16_f32 v{a}, v{a}, v{a+1}\nv_cvt_pk_bf16_f32 v{a+1}, v{a+2}, v{a+3}\nds_write_b64 v34, {vr(a,2)} offset:{512*i}")
        k("s_waitcnt lgkmcnt(0)\ns_barrier")
        nr = len(tiles) // 2
        for rnd in range(nr):
            k(f"ds_read_b64_tr_b16 {vr(80+4*rnd,2)}, v35 offset:{1024*rnd}\nds_read_b64_tr_b16 {vr(82+4*rnd,2)}, v35 offset:{1024*rnd+4*RS}")
        k("s_waitcnt vmcnt(0)")
        for rnd in range(nr):
            for p in range(4):
                x = XR + 4 * rnd + p; y = 80 + 4 * rnd + p
                k(f"v_lshlrev_b32 v90, 16, v{x}\nv_and_b32 v91, 0xffff0000, v{x}\nv_lshlrev_b32 v92, 16, v{y}\nv_and_b32 v93, 0xffff0000, v{y}\nv_add_f32 v90, v90, v92\nv_add_f32 v91, v91, v93\nv_cvt_pk_bf16_f32 v{y}, v90, v91")
            k(f"buffer_store_dwordx4 {vr(80+4*rnd,4)}, v12, s[4:7], s{36+rnd} offen sc1")
        k("s_endpgm")
    k("B_end:\ns_endpgm")
    return dict(name="kB_kernel", code=k.finish(), grid=240, block=512, lds=CSR + 8192, vgpr=256, agpr=0)
```

```python
from asmlib import K, vr
import layout as LY
import struct, math
def fbits(x): return "0x%08x" % struct.unpack("<I", struct.pack("<f", x))[0]

def srd(k, d, base, nbytes):
    k(f"s_mov_b32 s{d}, s{base}\ns_mov_b32 s{d+1}, s{base+1}\ns_mov_b32 s{d+2}, {nbytes}\ns_mov_b32 s{d+3}, 0x00020000")

def kD(opt):
    k = K()
    NS = 7
    k("s_cmp_ge_u32 s2, 256\ns_cbranch_scc1 D_end")
    k("s_load_dwordx2 s[4:5], s[0:1], 104\ns_load_dwordx2 s[8:9], s[0:1], 88")
    k("v_lshrrev_b32 v1, 6, v0\nv_and_b32 v0, 63, v0\nv_readfirstlane_b32 s12, v1")
    k("s_and_b32 s13, s2, 7\ns_lshr_b32 s14, s2, 3\ns_and_b32 s15, s14, 3\ns_lshl_b32 s13, s13, 2\ns_add_u32 s13, s13, s15\ns_lshr_b32 s14, s14, 2")
    k("v_and_b32 v2, 15, v0\nv_lshrrev_b32 v3, 4, v0")
    k("v_lshlrev_b32 v4, 4, v0")
    k("v_lshlrev_b32 v5, 9, v3\nv_lshl_add_u32 v5, v2, 4, v5")
    k("v_lshlrev_b32 v6, 15, v3\nv_lshl_add_u32 v6, v2, 4, v6")
    k("v_lshrrev_b32 v7, 1, v3\nv_lshlrev_b32 v7, 15, v7\nv_lshl_add_u32 v7, v2, 4, v7\nv_and_b32 v8, 1, v3\nv_lshl_add_u32 v7, v8, 3, v7")
    k(f"s_lshr_b32 s16, s12, 1\ns_lshl_b32 s17, s13, 1\ns_add_u32 s16, s16, s17\ns_mul_i32 s16, s16, 98304\ns_and_b32 s17, s12, 1\ns_lshl_b32 s17, s17, 8\ns_add_u32 s16, s16, s17\ns_add_u32 s16, s16, {LY.ACT}")
    k(f"s_mul_i32 s19, s12, 5120\ns_mul_i32 s18, s14, 245760\ns_add_u32 s18, s18, s19\ns_add_u32 s18, s18, {LY.WDP}")
    k(f"s_lshl_b32 s21, s13, 2\ns_add_u32 s21, s21, s12\ns_mul_i32 s20, s14, 327680\ns_lshl_b32 s22, s21, 8\ns_add_u32 s20, s20, s22\ns_add_u32 s20, s20, {LY.H}")
    k(f"s_mov_b32 s6, {LY.WS_END}\ns_mov_b32 s7, 0x00020000\ns_mov_b32 s10, 2621440\ns_mov_b32 s11, 0x00020000")
    k("s_waitcnt lgkmcnt(0)")
    HB = 12; ACC = 24; WR = 44; NW = 10; AR = WR + 4 * NW
    def issue(g):
        sl = g % NS
        L = []
        L.append(f"s_add_u32 m0, s19, {sl*20480}\ns_add_u32 s24, s18, {g*20480}")
        for n in range(4): L.append(f"buffer_load_dwordx4 v4, s[4:7], s24 offen offset:{n*1024} lds")
        L.append(f"s_add_u32 m0, s19, {sl*20480+4096}\ns_add_u32 s24, s24, 4096")
        L.append(f"buffer_load_dwordx4 v4, s[4:7], s24 offen lds")
        for h in range(2):
            L.append(f"s_add_u32 s25, s16, {(4*g+2*h)*2048}")
            for q in range(2):
                L.append(f"buffer_load_dwordx4 {vr(AR+16*sl+8*h+4*q,4)}, v5, s[4:7], s25 offen offset:{q*2048}")
        L.append(f"@tag g{g}")
        return L
    k("s_and_b32 s28, s14, 1\ns_xor_b32 s29, s28, 1\ns_lshl_b32 s30, s28, 16\ns_lshl_b32 s31, s29, 18\ns_add_u32 s30, s30, s20\ns_add_u32 s31, s31, s20")
    k(f"buffer_load_dwordx4 {vr(HB,4)}, v6, s[4:7], s30 offen")
    k(f"s_add_u32 s23, s30, {4*32768}\nbuffer_load_dwordx4 {vr(HB+4,4)}, v6, s[4:7], s23 offen")
    k(f"buffer_load_dwordx2 {vr(HB+8,2)}, v7, s[4:7], s31 offen")
    for g in range(6):
        for x in issue(g): k(x)
    k("v_add_u32 v8, 61440, v4\nv_add_u32 v9, 122880, v4")
    k("v_mul_u32_u24 v10, 1280, v2\nv_lshl_add_u32 v11, v3, 3, v10\nv_lshl_add_u32 v10, v3, 4, v10")
    k("s_mul_i32 s26, s21, 20480\ns_mul_i32 s27, s14, 160\ns_add_u32 s26, s26, s27\ns_lshl_b32 s28, s28, 5\ns_lshl_b32 s29, s29, 7\ns_add_u32 s27, s26, s29\ns_add_u32 s26, s26, s28")
    for n in range(5):
        for r in range(4):
            e = (4 * (n & 1) + r) if n < 4 else r
            src = HB + 4 * (n // 2) + e // 2
            k(f"v_and_b32 v{ACC+4*n+r}, 0xffff0000, v{src}" if e & 1 else f"v_lshlrev_b32 v{ACC+4*n+r}, 16, v{src}")
    wi = 0
    for g in range(12):
        sl = g % NS
        k.waitvm(f"g{g}")
        k("s_barrier")
        nxt = issue(g + 6) if g + 6 < 12 else []
        def rd(j):
            off = sl * 20480 + j * 1024
            a = 4 if off < 61440 else (8 if off < 122880 else 9)
            off -= {4: 0, 8: 61440, 9: 122880}[a]
            return f"ds_read_b128 {vr(WR+4*((20*g+j)%NW),4)}, v{a} offset:{off}"
        LA = 8
        for j in range(LA): k(rd(j))
        for j in range(20):
            kk, n = divmod(j, 5)
            k(f"v_mfma_f32_16x16x32_bf16 {vr(ACC+4*n,4)}, {vr(WR+4*((20*g+j)%NW),4)}, {vr(AR+16*sl+4*kk,4)}, {vr(ACC+4*n,4)}")
            if j + LA < 20: k(rd(j + LA))
            if nxt and j >= 1: k(nxt.pop(0))
        for x in nxt: k(x)
    for p in range(2):
        for i in range(4):
            n = 2 * p + i // 2
            k(f"v_cvt_pk_bf16_f32 v{HB+4*p+i}, v{ACC+4*n+2*(i&1)}, v{ACC+4*n+2*(i&1)+1}")
        k(f"buffer_store_dwordx4 {vr(HB+4*p,4)}, v10, s[8:11], s26 offen offset:{64*p}")
    for i in range(2): k(f"v_cvt_pk_bf16_f32 v{HB+8+i}, v{ACC+16+2*i}, v{ACC+17+2*i}")
    k(f"buffer_store_dwordx2 {vr(HB+8,2)}, v11, s[8:11], s27 offen")
    k("D_end:\ns_endpgm")
    return dict(name="kD_kernel", code=k.finish(), grid=256, block=256, lds=NS * 20480, vgpr=AR + 16 * NS, agpr=0)

def kC(opt):
    k = K()
    k("s_cmp_ge_u32 s2, 256\ns_cbranch_scc1 C_end")
    k("s_load_dwordx2 s[4:5], s[0:1], 104")
    k("v_lshrrev_b32 v1, 6, v0\nv_and_b32 v0, 63, v0\nv_readfirstlane_b32 s12, v1")
    if opt.get("cmap", 0) == 0:
        k("s_and_b32 s13, s2, 7\ns_lshr_b32 s14, s2, 3\ns_and_b32 s15, s14, 1\ns_lshl_b32 s13, s13, 1\ns_add_u32 s13, s13, s15\ns_lshr_b32 s14, s14, 1")
    else:
        k("s_and_b32 s13, s2, 6\ns_lshr_b32 s14, s2, 3\ns_and_b32 s15, s14, 3\ns_lshl_b32 s13, s13, 1\ns_add_u32 s13, s13, s15\ns_lshr_b32 s14, s14, 2\ns_and_b32 s15, s2, 1\ns_lshl_b32 s15, s15, 3\ns_add_u32 s14, s14, s15")
    k("v_lshlrev_b32 v4, 4, v0")
    k("v_and_b32 v2, 31, v0\nv_lshrrev_b32 v3, 5, v0\nv_lshlrev_b32 v5, 15, v3\nv_lshl_add_u32 v5, v2, 4, v5")
    k(f"s_lshl_b32 s21, s13, 2\ns_add_u32 s21, s21, s12\ns_lshl_b32 s16, s21, 9\ns_add_u32 s16, s16, {LY.H}")
    k(f"s_mul_i32 s17, s14, {6*41984}\ns_add_u32 s17, s17, {LY.W1P}")
    k(f"s_lshr_b32 s22, s12, 1\ns_and_b32 s23, s12, 1\ns_lshl_b32 s23, s23, 11\ns_mul_i32 s18, s22, 41984\ns_add_u32 s18, s18, s23\ns_add_u32 s18, s18, s17")
    k(f"s_mul_i32 s19, s22, 40960\ns_add_u32 s19, s19, s23")
    k(f"s_lshl_b32 s20, s12, 11\ns_add_u32 s28, s17, s20")
    k(f"s_mov_b32 s6, {LY.WS_END}\ns_mov_b32 s7, 0x00020000")
    k("s_waitcnt lgkmcnt(0)")
    HF = 96
    ACCS = [8, 24, 40]
    T = 56
    CS = 0; WR = 24; NW = 16
    def issue1(g):
        L = [f"s_add_u32 m0, s19, {g*4096}\ns_add_u32 s24, s18, {g*4096}"]
        for q in range(2): L.append(f"buffer_load_dwordx4 v4, s[4:7], s24 offen offset:{q*1024} lds")
        for q in range(4):
            ks = 4 * g + q
            L.append(f"s_add_u32 s25, s16, {ks*65536}\nbuffer_load_dwordx4 {vr(HF+4*ks,4)}, v5, s[4:7], s25 offen")
        L.append(f"@tag g{g}")
        return L
    def issueT(t, c):
        L = [f"s_add_u32 m0, s20, {(t%4)*40960+c*8192}\ns_add_u32 s24, s28, {t*41984+c*8192}"]
        for q in range(2): L.append(f"buffer_load_dwordx4 v4, s[4:7], s24 offen offset:{q*1024} lds")
        L.append(f"@tag t{t}c{c}")
        return L
    for g in range(10):
        for x in issue1(g): k(x)
    pend = []
    for t in range(6):
        pend.append(f"s_add_u32 s24, s17, {t*41984+40960}\nbuffer_load_dwordx4 {vr(CS+4*t,4,'a')}, v4, s[4:7], s24 offen")
    for t in (2, 3):
        for c in range(5): pend += issueT(t, c)
    k("v_add_u32 v6, 61440, v4\nv_add_u32 v7, 122880, v4")
    S1, S2 = T, T + 1
    k(f"v_mov_b32 v{S1}, 0\nv_mov_b32 v{S2}, 0\nv_mov_b32 v{T+2}, 0\nv_mov_b32 v{T+3}, 0\ns_mov_b32 s30, 0x3f803f80")
    cnt = [0]
    def rd(t, ks):
        off = (t % 4) * 40960 + ks * 1024
        a = 4 if off < 61440 else (6 if off < 122880 else 7)
        off -= {4: 0, 6: 61440, 7: 122880}[a]
        r = WR + 4 * (cnt[0] % NW); cnt[0] += 1
        return f"ds_read_b128 {vr(r,4,'a')}, v{a} offset:{off}", r
    def mf(acc, a, b, first, af="a"):
        return f"v_mfma_f32_32x32x16_bf16 {vr(acc,16)}, {vr(a,4,af)}, {vr(b,4)}, {'0' if first else vr(acc,16)}"
    for g in range(10):
        k.waitvm(f"g{g}")
        k("s_barrier")
        rr = []
        for q in range(4):
            for t in range(2):
                s, r = rd(t, 4 * g + q); k(s); rr.append(r)
        for q in range(16):
            h = HF + 16 * g + q
            k(f"v_dot2c_f32_bf16 v{S1+2*(q&1)}, s30, v{h}")
            k(f"v_dot2c_f32_bf16 v{S2+2*(q&1)}, v{h}, v{h}")
        for q in range(4):
            for t in range(2):
                k(mf(ACCS[t], rr[2*q+t], HF + 4 * (4 * g + q), g == 0 and q == 0))
                if pend and g >= 1:
                    k(pend.pop(0))
                    while pend and pend[0].startswith("@tag"): k(pend.pop(0))
    assert not pend
    MB = T + 4; C0 = T + 8; C1 = T + 9; Q = T + 10; X = T + 12
    st = []
    st.append(f"v_add_f32 v{S1}, v{S1}, v{S1+2}\nv_add_f32 v{S2}, v{S2}, v{S2+2}")
    st.append(f"v_mov_b32 v{S1+2}, v{S1}\nv_mov_b32 v{S2+2}, v{S2}")
    st.append(f"v_permlane32_swap_b32 v{S1}, v{S1+2}\nv_permlane32_swap_b32 v{S2}, v{S2+2}")
    st.append(f"v_add_f32 v{S1}, v{S1}, v{S1+2}\nv_add_f32 v{S2}, v{S2}, v{S2+2}")
    st.append(f"v_mul_f32 v{S1}, {fbits(-1/640)}, v{S1}\nv_mul_f32 v{S2}, {fbits(1/640)}, v{S2}")
    st.append(f"v_cvt_pk_bf16_f32 v{MB}, v{S1}, v{S1}\nv_fma_f32 v{S2}, -v{S1}, v{S1}, v{S2}")
    st.append(f"v_mov_b32 v{MB+1}, v{MB}\nv_mov_b32 v{MB+2}, v{MB}\nv_mov_b32 v{MB+3}, v{MB}\nv_max_f32 v{S2}, 0, v{S2}")
    st.append(f"v_cvt_pk_bf16_f32 v{S2}, v{S2}, v{S2}\nv_and_b32 v{S2}, 0xffff0000, v{S2}\nv_add_f32 v{S2}, {fbits(1e-5)}, v{S2}")
    st.append(f"v_cvt_pk_bf16_f32 v{S2}, v{S2}, v{S2}\nv_and_b32 v{S2}, 0xffff0000, v{S2}\nv_sqrt_f32 v{S2}, v{S2}")
    st.append(f"v_cvt_pk_bf16_f32 v{S2}, v{S2}, v{S2}\nv_and_b32 v{S2}, 0xffff0000, v{S2}")
    K0 = -2 * math.sqrt(2 / math.pi) * math.log2(math.e)
    st.append(f"v_rcp_f32 v{S1}, v{S2}\nv_mul_f32 v{Q}, v{S2}, v{S2}")
    st.append(f"v_mul_f32 v{C0}, {fbits(K0)}, v{S1}\nv_mul_f32 v{C1}, v{S1}, v{S1}\nv_mul_f32 v{C1}, {fbits(0.044715)}, v{C1}\nv_mul_f32 v{C1}, v{C1}, v{C0}")
    st.append(f"s_mul_i32 s26, s21, 96\ns_mul_i32 s27, s14, 6\ns_add_u32 s26, s26, s27\ns_lshl_b32 s26, s26, 10\ns_add_u32 s26, s26, {LY.ACT}\ns_add_u32 s27, s26, 4096")
    def epi(t):
        a = ACCS[t % 3]
        L = []
        O = X + 16 + 4 * (t & 1)
        for half in range(2):
            vs = range(4 * half, 4 * half + 4)
            x = lambda i: X + (i & 3) + 8 * half
            y = lambda i: X + 4 + (i & 3) + 8 * half
            for i in vs: L.append(f"v_mul_f32 v{x(i)}, v{a+i}, v{a+i}")
            for i in vs: L.append(f"v_fma_f32 v{x(i)}, v{x(i)}, v{C1}, v{C0}")
            for i in vs: L.append(f"v_mul_f32 v{x(i)}, v{x(i)}, v{a+i}")
            for i in vs: L.append(f"v_exp_f32 v{x(i)}, v{x(i)}")
            for i in vs: L.append(f"v_mul_f32 v{y(i)}, v{a+i}, v{a+8+i}")
            for i in vs: L.append(f"v_fma_f32 v{x(i)}, v{x(i)}, v{Q}, v{Q}")
            for i in vs: L.append(f"v_rcp_f32 v{x(i)}, v{x(i)}")
            for i in vs: L.append(f"v_mul_f32 v{y(i)}, v{y(i)}, v{x(i)}")
            for i in range(2): L.append(f"v_cvt_pk_bf16_f32 v{O+2*half+i}, v{y(2*i)}, v{y(2*i+1)}")
        L.append(f"buffer_store_dwordx4 {vr(O,4)}, v4, s[4:7], s{26+t//4} offen offset:{(t%4)*1024} sc1")
        return L
    cost = lambda s: 2 if s.startswith(("v_exp", "v_rcp", "v_sqrt")) else 1
    fill = []
    for s in st: fill += s.split("\n")
    fill.append("@corr")
    LA = 6
    seq = [(t, ks) for t in range(2, 6) for ks in range(40)]
    waits = {(2, 0): "t2c0", (2, 8): "t2c1", (2, 16): "t2c4", (3, 0): "t3c4", (4, 0): "t4c4", (5, 0): "t5c4"}
    regs = {}
    def do_rd(i):
        t, ks = seq[i]
        if (t, ks) in waits:
            k.waitvm(waits[(t, ks)]); k("s_barrier")
            if (t, ks) == (2, 0):
                for tt in (4, 5):
                    for c in range(5): pend.extend(issueT(tt, c))
        s, r = rd(t, ks); k(s); regs[i] = r
    for i in range(LA): do_rd(i)
    for i, (t, ks) in enumerate(seq):
        acc = ACCS[t % 3]
        if ks == 0:
            while any(f"#e{t-3}" in f for f in fill): k(fill.pop(0).split("#")[0])
        k(mf(acc, regs[i], HF + 4 * ks, ks == 0))
        budget = 4
        if i + LA < len(seq): do_rd(i + LA); budget -= 1
        if pend:
            x = pend.pop(0); k(x); budget -= len(x.split("\n"))
            while pend and pend[0].startswith("@tag"): k(pend.pop(0))
        while fill and budget > 0:
            f = fill.pop(0)
            if f == "@corr":
                for tt in range(2): k(mf(ACCS[tt], CS + 4 * tt, MB, False))
                fill += ["s_nop 0"] * 3
                for tt in range(2): fill += [e + f"#e{tt}" for e in epi(tt)]
                break
            k(f.split("#")[0]); budget -= cost(f)
        if ks == 39:
            k(mf(acc, CS + 4 * t, MB, False))
            if not fill: fill += ["s_nop 0"] * 6
            fill += [e + f"#e{t}" for e in epi(t)]
    for f in fill: k(f.split("#")[0])
    k("C_end:\ns_endpgm")
    return dict(name="kC_kernel", code=k.finish(), grid=256, block=256, lds=163840, vgpr=256, agpr=WR + 4 * NW)
```

```python
import re

TRANS = ("v_exp_f32", "v_log_f32", "v_rcp_f32", "v_rsq_f32", "v_sqrt_f32", "v_sin_f32", "v_cos_f32")
RX = re.compile(r"\b([vas])(?:\[(\d+):(\d+)\]|(\d+)\b)")


def regs_of(tok):
    out = []
    tok = tok.strip()
    if tok in ("vcc", "vcc_lo", "vcc_hi"):
        return [("s", "vcc")]
    if tok in ("exec", "exec_lo", "exec_hi"):
        return [("s", "exec")]
    if tok == "m0":
        return [("s", "m0")]
    for m in RX.finditer(tok):
        if m.group(4) is not None:
            out.append((m.group(1), int(m.group(4))))
        else:
            out += [(m.group(1), i) for i in range(int(m.group(2)), int(m.group(3)) + 1)]
    return out


class Ins:
    def __init__(s, text):
        s.text = text
        t = text.split(";")[0].strip()
        s.label = t.endswith(":")
        s.op = t.split()[0] if t else ""
        rest = t[len(s.op):].strip()
        ops = [o.strip() for o in rest.split(",")] if rest else []
        s.mods = ""
        if ops:
            p = ops[-1].split()
            if len(p) > 1:
                ops[-1] = p[0]
                s.mods = " ".join(p[1:])
        s.ops = ops
        op = s.op
        s.kind = "other"
        s.dst = []
        s.src = []
        R = [regs_of(o) for o in ops]
        flat = lambda l: [x for y in l for x in y]
        if s.label or op.startswith("."):
            s.kind = "label"
        elif op.startswith("v_mfma"):
            s.kind = "mfma"
            s.dst = R[0]; s.A = R[1]; s.B = R[2]; s.C = R[3]; s.src = R[1] + R[2] + R[3]
            s.passes = 8 if "32x32" in op else 4
        elif op.startswith("v_"):
            s.kind = "valu"
            s.dst = R[0]; s.src = flat(R[1:])
            if op.startswith("v_cmpx"):
                s.dst = s.dst + [("s", "exec")]
            if "_co_" in op:
                s.dst = R[0] + R[1]; s.src = flat(R[2:])
            if op.startswith(("v_fmac", "v_mac", "v_dot2c", "v_pk_fmac", "v_writelane")) or "dpp" in op or "row_" in s.mods or "quad_perm" in s.mods or "sdwa" in op:
                s.src = s.src + R[0]
            if op.startswith("v_permlane"):
                s.dst = R[0] + R[1]; s.src = R[0] + R[1]
            if op.startswith("v_cndmask") and len(ops) == 3:
                s.src = s.src + [("s", "vcc")]
            s.dpp = "row_" in s.mods or "quad_perm" in s.mods or "dpp" in op
        elif op.startswith("ds_"):
            s.kind = "ds"
            if op.startswith(("ds_read", "ds_bpermute", "ds_permute", "ds_swizzle")):
                s.dst = R[0]; s.src = flat(R[1:])
                if "d16" in op: s.src = s.src + R[0]
            else:
                s.src = flat(R)
            if "addtid" in op: s.src = s.src + [("s", "m0")]
        elif op.startswith(("buffer_", "global_")):
            s.kind = "vmem"
            s.lds = " lds" in (" " + s.mods) or "load_lds" in op
            if "load" in op and not s.lds:
                s.dst = R[0]; s.src = flat(R[1:])
                if "d16" in op: s.src = s.src + R[0]
            else:
                s.src = flat(R)
                if s.lds: s.src = s.src + [("s", "m0")]
            s.store = "store" in op
            s.wide = s.store and ("x3" in op or "x4" in op)
            if s.store:
                s.data = R[0] if op.startswith("buffer_") else R[1]
        elif op.startswith(("s_load", "s_buffer_load", "s_memrealtime", "s_memtime")):
            s.kind = "smem"; s.dst = R[0]; s.src = flat(R[1:])
        elif op.startswith("s_"):
            s.kind = "salu"
            if op.startswith(("s_cmp", "s_cbranch", "s_branch", "s_waitcnt", "s_nop", "s_barrier", "s_endpgm", "s_setprio", "s_bitcmp")):
                s.src = flat(R)
                if "vcc" in op: s.src = [("s", "vcc")]
            else:
                s.dst = R[0] if R else []; s.src = flat(R[1:])
                if "saveexec" in op: s.dst = s.dst + [("s", "exec")]; s.src = s.src + [("s", "exec")]


class K:
    def __init__(s):
        s.L = []

    def __call__(s, text):
        for ln in text.split("\n"):
            ln = ln.strip()
            if ln:
                s.L.append(ln)

    def tag(s, name):
        s.L.append(f"@tag {name}")

    def waitvm(s, name):
        s.L.append(f"@waitvm {name}")

    def st_init(s, on, kidx):
        s.on = on; s.kidx = kidx
        if on:
            s("s_mov_b32 s78, s2\nv_lshrrev_b32 v1, 6, v0\ns_nop 0\nv_readfirstlane_b32 s79, v1")
            for i in range(8): s(f"s_mov_b32 s{80+2*i}, 0")
            s.stamp(0)

    def stamp(s, i):
        if s.on: s(f"{'s_memtime' if s.on == 2 else 's_memrealtime'} s[{80+2*i}:{81+2*i}]")

    def end(s, wait=True):
        if s.on:
            s.stamp(6)
            s("s_waitcnt vmcnt(0)")
            s.stamp(7)
            s(f"s_add_u32 s78, s78, {s.kidx*1024}\ns_lshl_b32 s78, s78, 3\ns_add_u32 s78, s78, s79\ns_lshl_b32 s78, s78, 5\ns_add_u32 s78, s78, 0x1298000")
            s("s_waitcnt lgkmcnt(0)\nv_mov_b32 v8, 0\ns_mov_b64 exec, 1")
            for i in range(8): s(f"v_mov_b32 v{i}, s{80+2*i}")
            s("buffer_store_dwordx4 v[0:3], v8, s[4:7], s78 offen\nbuffer_store_dwordx4 v[4:7], v8, s[4:7], s78 offen offset:16")
        s("s_endpgm")

    def reset(s):
        s.L.append("@reset")

    def finish(s):
        out = []
        vq = []; lq = []; smem = []
        vseq = 0; lseq = 0
        tags = {}
        hist = []
        pos = 0
        lastw = {}
        mfma_c = {}
        stdata = {}

        def emit(t, n=1):
            nonlocal pos
            out.append(t); pos += n

        for ln in s.L:
            if ln.startswith("@tag"):
                tags[ln.split()[1]] = vseq; continue
            if ln.startswith("@waitvm"):
                q = tags[ln.split()[1]]
                n = vseq - q
                if any(x[0] <= q for x in vq):
                    assert n <= 63, ("vmcnt overflow", ln, n)
                    emit(f"s_waitcnt vmcnt({n})")
                    vq = [x for x in vq if x[0] > q]
                continue
            if ln.startswith("!"):
                emit(ln[1:]); continue
            if ln.startswith("@reset"):
                vq = []; lq = []; smem = []; continue
            I = Ins(ln)
            if I.kind == "label":
                out.append(ln); continue
            touch = set(I.src) | set(I.dst)
            wv = None; wl = None
            for (q, rg) in vq:
                if rg & touch: wv = q
            for (q, rg) in lq:
                if rg & touch: wl = q
            if any(rg & touch for rg in smem):
                wl = lseq; smem_all = True
            else:
                smem_all = False
            if wv is not None or wl is not None:
                w = []
                if wv is not None:
                    n = min(vseq - wv, 63); w.append(f"vmcnt({n})"); vq = [x for x in vq if x[0] > vseq - n]
                if wl is not None:
                    n = 0 if (smem_all or smem) else min(lseq - wl, 15)
                    w.append(f"lgkmcnt({n})"); lq = [x for x in lq if x[0] > lseq - n]
                    if n == 0: smem = []
                emit("s_waitcnt " + " ".join(w))
            if I.op == "s_waitcnt":
                m = re.search(r"vmcnt\((\d+)\)", ln)
                if m: vq = [x for x in vq if x[0] > vseq - int(m.group(1))]
                m = re.search(r"lgkmcnt\((\d+)\)", ln)
                if m:
                    lq = [x for x in lq if x[0] > lseq - int(m.group(1))]
                    if int(m.group(1)) == 0: smem = []
            need = 0

            def req(p, ws):
                nonlocal need
                need = max(need, ws - (pos - p - 1))
            for r in set(I.src):
                if r not in lastw: continue
                p, c, x = lastw[r]
                if c == "mfma":
                    if I.kind == "mfma" and r in I.C and r not in I.A and r not in I.B:
                        if x[1] != I.C or x[0] != I.passes: req(p, x[0] + 2)
                    else:
                        req(p, x[0] + 4)
                elif c in ("valu", "trans", "dot"):
                    if r[0] == "s":
                        if r[1] == "exec":
                            if I.kind == "valu": req(p, 2)
                        elif I.kind == "valu": req(p, 4 if I.op.startswith(("v_readlane", "v_writelane")) else 2)
                        elif I.kind == "vmem": req(p, 5)
                    else:
                        if I.kind == "mfma": req(p, 2)
                        if I.kind == "valu":
                            if I.dpp or I.op.startswith("v_permlane"): req(p, 2)
                            if I.op.startswith(("v_readlane", "v_readfirstlane")): req(p, 1)
                            if c == "trans": req(p, 1)
                            if x == "opsel": req(p, 1)
                        if c == "trans" and I.kind != "valu": req(p, 1)
                        if c == "dot" and not (I.op == x and r in I.dst and I.src.count(r) == 1): req(p, 3)
                elif c == "salu" and r == ("s", "m0") and I.kind in ("ds", "vmem"):
                    req(p, 1)
            for r in set(I.dst):
                if r in lastw:
                    p, c, x = lastw[r]
                    if c == "mfma" and I.kind != "mfma": req(p, x[0] + 4)
                    if c == "mfma" and I.kind == "mfma" and (x[1] != I.C): req(p, x[0] + 2)
                    if c == "dot" and I.op != x: req(p, 3)
                if r in mfma_c and I.kind == "valu":
                    p, ps = mfma_c[r]; req(p, ps - 1)
                if r in stdata and I.kind in ("valu", "mfma", "ds", "vmem"):
                    req(stdata[r], 2)
            ex = lastw.get(("s", "exec"))
            if ex and ex[1] == "valu":
                if I.kind == "mfma": req(ex[0], 4)
                if I.kind == "valu" and I.dpp: req(ex[0], 5)
                if I.kind == "valu" and I.op.startswith(("v_readlane", "v_readfirstlane", "v_permlane")): req(ex[0], 4)
            while need > 0:
                n = min(need, 16)
                emit(f"s_nop {n - 1}", n); need -= n
            p = pos
            n = 1
            if I.op == "s_nop": n = int(I.ops[0]) + 1
            emit(ln, n)
            if I.kind == "mfma":
                for r in I.dst: lastw[r] = (p, "mfma", (I.passes, I.dst))
                for r in I.C: mfma_c[r] = (p, I.passes)
            elif I.kind == "valu":
                c = "trans" if I.op.startswith(TRANS) else ("dot" if I.op.startswith("v_dot") else "valu")
                x = I.op if c == "dot" else ("opsel" if ("sdwa" in I.op and "dst_sel:DWORD" not in I.mods and "dst_sel" in I.mods) else None)
                for r in I.dst: lastw[r] = (p, c, x)
            elif I.kind == "salu":
                for r in I.dst: lastw[r] = (p, "salu", None)
            else:
                for r in I.dst: lastw.pop(r, None)
            if I.kind == "vmem":
                vseq += 1
                vq.append((vseq, set(I.dst)))
                if I.wide:
                    for r in I.data: stdata[r] = p
            elif I.kind == "ds":
                lseq += 1
                lq.append((lseq, set(I.dst)))
            elif I.kind == "smem":
                lseq += 1
                smem.append(set(I.dst))
        return out


def vr(a, n=1, f="v"):
    return f"{f}{a}" if n == 1 else f"{f}[{a}:{a + n - 1}]"
```

```python
from asmlib import K, vr
import layout as LY
import math
from gen_cd import fbits
LOG2E = math.log2(math.e)

def mksrd(k, d, slot, nbytes):
    k(f"s_load_dwordx2 s[{d}:{d+1}], s[0:1], {slot}\ns_mov_b32 s{d+2}, {nbytes}\ns_mov_b32 s{d+3}, 0x00020000")

def kA(opt):
    k = K()
    NLN = 256; NKG = 640
    k(f"s_cmp_ge_u32 s2, {NLN+NKG}\ns_cbranch_scc1 A_end")
    k.st_init(opt.get("st"), 0)
    mksrd(k, 4, 104, LY.WS_END)
    k("v_lshrrev_b32 v1, 6, v0\nv_and_b32 v2, 63, v0\nv_readfirstlane_b32 s3, v1")
    k(f"s_cmp_ge_u32 s2, {NLN}\ns_cbranch_scc1 A_kgen")
    SC = lambda n: " sc1" if opt.get("sc" + n, 1) else ""
    XS = 10752
    k("s_load_dwordx4 s[40:43], s[0:1], 64\ns_load_dwordx2 s[44:45], s[0:1], 80")
    k("v_lshlrev_b32 v9, 4, v2\ns_mov_b32 s30, 0x3f803f80")
    k("s_cmp_eq_u32 s3, 2\ns_cbranch_scc1 A_pref")
    mksrd(k, 8, 0, 2621440)
    k("v_lshrrev_b32 v3, 4, v0\nv_and_b32 v4, 15, v0\nv_lshlrev_b32 v4, 4, v4")
    k("v_mul_u32_u24 v5, 1280, v3\nv_add_u32 v5, v5, v4\ns_mul_i32 s12, s2, 10240")
    X = 16
    for j in range(5): k(f"buffer_load_dwordx4 {vr(X+4*j,4)}, v5, s[8:11], s12 offen offset:{256*j}")
    k.stamp(1)
    k("v_mul_u32_u24 v6, 1344, v3\nv_add_u32 v6, v6, v4")
    k("v_bfe_u32 v7, v0, 2, 2\nv_mul_u32_u24 v7, 1344, v7\nv_and_b32 v8, 3, v0\nv_lshl_add_u32 v7, v8, 3, v7\nv_bfe_u32 v8, v0, 4, 2\nv_lshl_add_u32 v7, v8, 5, v7\nv_mul_u32_u24 v8, 640, v1\nv_add_u32 v7, v7, v8")
    k(f"s_mul_i32 s13, s3, 5120\ns_add_u32 s12, s12, s13\ns_add_u32 s13, s12, 4096\ns_add_u32 s14, s12, {LY.XT}\ns_add_u32 s15, s13, {LY.XT}")
    k("v_mov_b32 v10, 0\nv_mov_b32 v11, 0\nv_mov_b32 v12, 0\nv_mov_b32 v13, 0")
    for q in range(20):
        k(f"v_dot2c_f32_bf16 v{10+2*(q&1)}, s30, v{X+q}\nv_dot2c_f32_bf16 v{11+2*(q&1)}, v{X+q}, v{X+q}")
        if q % 4 == 3: k(f"ds_write_b128 v6, {vr(X+q-3,4)} offset:{XS+64*(q-3)}")
    k.stamp(2)
    k("v_add_f32 v10, v10, v12\nv_add_f32 v11, v11, v13")
    for r in (8, 4, 2, 1):
        k(f"v_add_f32_dpp v10, v10, v10 row_ror:{r} row_mask:0xf bank_mask:0xf\nv_add_f32_dpp v11, v11, v11 row_ror:{r} row_mask:0xf bank_mask:0xf")
    k(f"v_mul_f32 v10, {fbits(-1/640)}, v10\nv_mul_f32 v11, {fbits(1/640)}, v11\nv_fma_f32 v11, -v10, v10, v11\nv_max_f32 v11, 0, v11")
    k(f"v_cvt_pk_bf16_f32 v11, v10, v11\nv_lshlrev_b32 v10, 16, v11\nv_and_b32 v11, 0xffff0000, v11\nv_add_f32 v11, {fbits(1e-5)}, v11")
    k("v_cvt_pk_bf16_f32 v11, v11, v11\nv_and_b32 v11, 0xffff0000, v11\nv_sqrt_f32 v11, v11\nv_cvt_pk_bf16_f32 v11, v11, v11\nv_and_b32 v11, 0xffff0000, v11")
    k("v_rcp_f32 v12, v11\nv_mul_f32 v14, v10, v12")
    for j in range(5):
        for q in range(4):
            x = X + 4 * j + q; t = 40 + 2 * q
            k(f"v_lshlrev_b32 v{t}, 16, v{x}\nv_and_b32 v{t+1}, 0xffff0000, v{x}")
        for q in range(4):
            t = 40 + 2 * q
            k(f"v_pk_fma_f32 {vr(t,2)}, {vr(t,2)}, v[12:13], v[14:15] op_sel_hi:[1,0,0]")
        for q in range(4):
            k(f"v_cvt_pk_bf16_f32 v{X+4*j+q}, v{40+2*q}, v{41+2*q}")
        k(f"ds_write_b128 v6, {vr(X+4*j,4)} offset:{256*j}")
    k("s_waitcnt lgkmcnt(0)\ns_barrier")
    for h in range(2):
        for j in range(5):
            k(f"ds_read_b64_tr_b16 {vr(X+20*h+4*j,2)}, v7 offset:{XS*h+128*j}\nds_read_b64_tr_b16 {vr(X+20*h+4*j+2,2)}, v7 offset:{XS*h+128*j+4*1344}")
    for h in range(2 if opt.get("xt", 1) else 1):
        for j in range(5):
            k(f"buffer_store_dwordx4 {vr(X+20*h+4*j,4)}, v9, s[4:7], s{12+2*h+j//4} offen offset:{1024*(j%4)}{SC('u')}")
    k("s_branch A_shuf")
    k("A_pref:"); k.reset()
    k("s_getpc_b64 s[20:21]\nA_pc0:\ns_add_u32 s20, s20, kA_kernel-A_pc0\ns_addc_u32 s21, s21, -1")
    k("s_lshr_b32 s22, s2, 3\ns_lshl_b32 s22, s22, 13\nv_lshlrev_b32 v3, 7, v2\nv_add_u32 v4, s22, v3")
    k("v_min_u32 v4, code_end-kA_kernel, v4\nglobal_load_dword v110, v4, s[20:21]")
    k(f"s_lshl_b32 s22, s2, 8\ns_add_u32 s22, s22, {LY.FLG}\nv_lshlrev_b32 v4, 2, v2\nv_mov_b32 v5, 0\ns_waitcnt lgkmcnt(0)")
    k("s_cmp_ge_u32 s2, 32\ns_cbranch_scc1 A_nz\nbuffer_store_dword v5, v4, s[4:7], s22 offen\nA_nz:")
    k("s_barrier")
    k("A_shuf:"); k.reset()
    k.stamp(3)
    BIG = 0x7000000
    if not opt.get("shuf", 0):
        k("s_cmp_eq_u32 s3, 1\ns_cselect_b32 s24, s42, s40\ns_cselect_b32 s25, s43, s41\ns_cmp_eq_u32 s3, 2\ns_cselect_b32 s24, s44, s24\ns_cselect_b32 s25, s45, s25")
        k("s_mov_b32 s26, 1966080\ns_mov_b32 s27, 0x00020000\ns_mul_i32 s22, s2, 7680\nv_lshlrev_b32 v3, 7, v2")
        if opt.get("pf", 1): k("buffer_load_dword v60, v3, s[24:27], s22 offen")
        k("s_waitcnt vmcnt(0)")
        k.end()
    LD = 56; FR = 16
    k("v_lshrrev_b32 v4, 3, v2\nv_and_b32 v5, 7, v2\ns_lshl_b32 s20, s3, 12\nv_add_u32 v15, s20, v9")
    k("s_mov_b32 s26, 1966080\ns_mov_b32 s27, 0x00020000\ns_mov_b32 s34, 1966080\ns_mov_b32 s35, 0x00020000")
    k("s_cmp_ge_u32 s2, 192\ns_cbranch_scc1 A_wd")
    k("s_lshr_b32 s21, s2, 3\ns_and_b32 s22, s2, 7\ns_mul_i32 s23, s22, 5\ns_add_u32 s23, s23, 2\ns_sub_u32 s23, s23, s3")
    k("s_mov_b32 s24, s40\ns_mov_b32 s25, s41\ns_mov_b32 s32, s42\ns_mov_b32 s33, s43")
    k("v_and_b32 v10, 2, v4\nv_xor_b32 v10, v10, v5\nv_mul_u32_u24 v11, 3072, v4\nv_lshl_add_u32 v10, v10, 4, v11\nv_xor_b32 v11, 64, v10")
    k(f"s_mul_i32 s36, s23, {16*3072}\ns_lshl_b32 s37, s21, 7\ns_add_u32 s36, s36, s37\ns_add_u32 s37, s36, {8*3072}")
    k(f"s_cmp_eq_u32 s3, 0\ns_cselect_b32 s46, {BIG}, 0\ns_add_u32 s38, s36, s46\ns_add_u32 s38, s38, {48*3072}\ns_add_u32 s39, s38, {8*3072}")
    for t in range(2):
        for i in range(4): k(f"buffer_load_dwordx4 {vr(LD+16*t+4*i,4)}, v{10+i//2}, s[{24+8*(i//2)}:{27+8*(i//2)}], s{36+2*t+(i&1)} offen")
    k("v_bfe_u32 v3, v2, 4, 1\nv_lshrrev_b32 v6, 5, v2\nv_bfe_u32 v7, v2, 2, 2\nv_and_b32 v8, 3, v2")
    k("v_mul_u32_u24 v48, 2112, v3\nv_lshl_add_u32 v48, v6, 10, v48\nv_lshl_add_u32 v48, v7, 7, v48\nv_lshl_add_u32 v48, v8, 3, v48\nv_and_b32 v7, 2, v7\nv_lshl_add_u32 v48, v7, 4, v48\nv_add_u32 v48, s20, v48")
    for w in range(1, 4): k(f"v_xor_b32 v{48+w}, {32*w}, v48")
    for w in range(4): k(f"v_mov_b32 v{52+w}, 0")
    k(f"s_mul_i32 s47, s21, {4*41984}\ns_lshl_b32 s36, s23, 10\ns_add_u32 s47, s47, {LY.W1P}\ns_add_u32 s36, s36, s47\ns_add_u32 s37, s36, s46")
    k("s_waitcnt lgkmcnt(0)\ns_barrier")
    for t in range(2):
        for i in range(4): k(f"ds_write_b128 v15, {vr(LD+16*t+4*i,4)} offset:{1024*i}")
        for w in range(4):
            for e in range(2): k(f"ds_read_b64_tr_b16 {vr(FR+16*t+4*w+2*e,2)}, v{48+w} offset:{512*e}")
        for w in range(4):
            if w: k(f"s_add_u32 s{36+t}, s{36+t}, 41984")
            k(f"buffer_store_dwordx4 {vr(FR+16*t+4*w,4)}, v9, s[4:7], s{36+t} offen offset:{3072*t}{SC('w')}")
        for q in range(4):
            for w in range(4): k(f"v_dot2c_f32_bf16 v{52+w}, s30, v{FR+16*t+4*w+q}")
    CSR = 12288
    k(f"v_lshlrev_b32 v3, 4, v0\nds_write_b128 v3, v[52:55] offset:{CSR}")
    k(f"v_and_b32 v4, 31, v0\nv_lshrrev_b32 v5, 5, v0\nv_lshlrev_b32 v4, 4, v4\nv_lshl_add_u32 v6, v5, 2, v4\nv_mul_u32_u24 v5, 41984, v5\nv_add_u32 v4, v4, v5")
    k("s_lshr_b32 s36, s22, 2\ns_lshl_b32 s36, s36, 9\ns_and_b32 s37, s22, 3\ns_lshl_b32 s37, s37, 2\ns_add_u32 s36, s36, s37\ns_add_u32 s36, s36, s47\ns_add_u32 s36, s36, 40960")
    k("s_waitcnt lgkmcnt(0)\ns_barrier\ns_cmp_eq_u32 s3, 2\ns_cbranch_scc1 A_fin")
    for j in range(3): k(f"ds_read2st64_b32 {vr(56+2*j,2)}, v6 offset0:{CSR//256+4*j} offset1:{CSR//256+4*j+2}")
    k("v_pk_add_f32 v[56:57], v[56:57], v[58:59]\nv_pk_add_f32 v[56:57], v[56:57], v[60:61]")
    k("v_add_f32 v56, v56, v57\nv_cvt_pk_bf16_f32 v57, v56, v56\nv_and_b32 v57, 0xffff0000, v57\nv_sub_f32 v58, v56, v57\nv_cvt_pk_bf16_f32 v56, v57, v58")
    k("buffer_store_dword v56, v4, s[4:7], s36 offen")
    k("A_fin:")
    k.end()
    k("A_wd:"); k.reset()
    k(f"s_mov_b32 s24, s44\ns_mov_b32 s25, s45\ns_mov_b32 s28, {LY.WDP}")
    k("v_and_b32 v10, 2, v4\nv_lshlrev_b32 v10, 1, v10\nv_bfe_u32 v11, v4, 2, 1\nv_lshl_add_u32 v10, v11, 1, v10\nv_xor_b32 v10, v10, v5\nv_mul_u32_u24 v11, 1280, v4\nv_lshl_add_u32 v10, v10, 4, v11")
    k("s_sub_u32 s21, s2, 192\ns_mul_i32 s21, s21, 3\ns_add_u32 s21, s21, s3\ns_mul_i32 s21, s21, 3")
    for t in range(3):
        S, CB = 50 + 2 * t, 51 + 2 * t
        k(f"s_add_u32 s22, s21, {t}\ns_mul_i32 s{S}, s22, 6554\ns_lshr_b32 s{S}, s{S}, 16\ns_mul_i32 s23, s{S}, 10\ns_sub_u32 s{CB}, s22, s23")
        k(f"s_mul_i32 s36, s{S}, {32*1280}\ns_lshl_b32 s37, s{CB}, 7\ns_add_u32 s36, s36, s37")
        for i in range(4):
            if i: k(f"s_add_u32 s36, s36, {8*1280}")
            k(f"buffer_load_dwordx4 {vr(LD+16*t+4*i,4)}, v10, s[24:27], s36 offen")
    k("v_bfe_u32 v7, v2, 2, 2\nv_and_b32 v8, 3, v2\nv_lshrrev_b32 v6, 5, v2\nv_bfe_u32 v3, v2, 4, 1")
    k("v_lshlrev_b32 v48, 11, v6\nv_lshl_add_u32 v48, v3, 9, v48\nv_lshl_add_u32 v48, v7, 7, v48\nv_add_u32 v48, s20, v48")
    k("v_and_b32 v7, 2, v7\nv_lshlrev_b32 v7, 5, v7\nv_lshl_add_u32 v7, v3, 5, v7")
    k("s_waitcnt lgkmcnt(0)\ns_barrier")
    for t in range(3):
        S, CB = 50 + 2 * t, 51 + 2 * t
        F = FR + 16 * (t & 1)
        for vv in range(2):
            k(f"s_lshl_b32 s36, s{CB}, 1\ns_add_u32 s36, s36, {vv}\ns_mul_i32 s37, s36, 52\ns_lshr_b32 s37, s37, 8\ns_mul_i32 s37, s37, 5\ns_sub_u32 s36, s36, s37\ns_cmp_eq_u32 s36, 2\ns_cselect_b32 s36, 3, 4\ns_cselect_b32 s37, 32, 8")
            a = 49 + 2 * vv
            k(f"v_lshlrev_b32 v{a}, s36, v8\nv_add_u32 v{a}, {64*vv}, v{a}\nv_add_u32 v{a+1}, s37, v{a}\nv_xor_b32 v{a}, v{a}, v7\nv_xor_b32 v{a+1}, v{a+1}, v7\nv_add_u32 v{a}, v{a}, v48\nv_add_u32 v{a+1}, v{a+1}, v48")
        for i in range(4): k(f"ds_write_b128 v15, {vr(LD+16*t+4*i,4)} offset:{1024*i}")
        for i in range(4):
            for e2 in range(2): k(f"ds_read_b64_tr_b16 {vr(F+4*i+2*e2,2)}, v{49+i} offset:{1024*e2}")
        k(f"s_cmp_ge_u32 s{S}, 48\ns_cselect_b32 s39, {BIG}, s28")
        for i in range(4):
            k(f"s_lshl_b32 s36, s{CB}, 2\ns_add_u32 s36, s36, {i}\ns_mul_i32 s37, s36, 52\ns_lshr_b32 s37, s37, 8\ns_mul_i32 s38, s37, 5\ns_sub_u32 s36, s36, s38")
            k(f"s_and_b32 s38, s37, 1\ns_sub_u32 s36, s36, s38\ns_cselect_b32 s36, 4, s36\ns_mul_i32 s37, s37, 48\ns_add_u32 s37, s37, s{S}\ns_mul_i32 s37, s37, 5\ns_add_u32 s37, s37, s36\ns_lshl_b32 s37, s37, 10\ns_add_u32 s37, s37, s39")
            k(f"buffer_store_dwordx4 {vr(F+4*i,4)}, v9, s[4:7], s37 offen{SC('w')}")
    k.end()
    k("A_kgen:"); k.reset()
    k("s_load_dwordx8 s[8:15], s[0:1], 8\ns_load_dwordx4 s[16:19], s[0:1], 40")
    k(f"s_sub_u32 s2, s2, {NLN}\ns_mul_i32 s20, s2, 384\nv_lshlrev_b32 v3, 1, v0\nv_add_u32 v3, s20, v3\ns_lshl_b32 s21, s2, 1\nv_mov_b32 v4, s21")
    k("s_getpc_b64 s[22:23]\nA_pc1:\ns_add_u32 s22, s22, A_tab-A_pc1\ns_addc_u32 s23, s23, 0\nv_lshlrev_b32 v5, 4, v0")
    k("s_waitcnt lgkmcnt(0)")
    k("global_load_ushort v10, v4, s[16:17]\nglobal_load_ushort v6, v3, s[8:9]\nglobal_load_ushort v7, v3, s[10:11]\nglobal_load_ushort v8, v3, s[12:13]\nglobal_load_ushort v9, v3, s[14:15]\nglobal_load_ushort v11, v4, s[18:19]")
    k("global_load_dwordx4 v[12:15], v5, s[22:23]")
    k.stamp(1)
    RS = 288; PB = 16 * RS; WB = 2 * PB; TB = 3 * WB
    k(f"s_mul_i32 s24, s3, {WB}\nv_lshl_add_u32 v16, v2, 2, s24\nv_and_b32 v17, 15, v2\nv_mul_u32_u24 v17, {RS}, v17\nv_lshrrev_b32 v18, 4, v2\nv_lshl_add_u32 v17, v18, 4, v17\nv_add_u32 v17, s24, v17")
    k(f"v_mov_b32 v18, 0x3f80\nds_write_b32 v16, v18 offset:{PB}\nv_mov_b32 v18, 0\nv_mov_b32 v19, {TB+1536}\nds_write_b32 v19, v18")
    k(f"s_mul_i32 s25, s2, 3072\ns_add_u32 s25, s25, {LY.KP}")
    k(f"v_lshlrev_b32 v10, 16, v10\nv_lshlrev_b32 v6, 16, v6\nv_mul_f32 v10, {fbits(LOG2E)}, v10\nv_mul_f32 v6, {fbits(LOG2E)}, v6\nv_exp_f32 v10, v10\nv_exp_f32 v6, v6")
    k("v_lshlrev_b32 v7, 16, v7\nv_cvt_pk_bf16_f32 v6, v6, v10\nv_and_b32 v10, 0xffff0000, v6\nv_lshlrev_b32 v6, 16, v6")
    k(f"v_mul_f32 v6, v6, v10\nv_mul_f32 v7, v7, v10\nv_mul_f32 v6, {fbits(-LOG2E)}, v6\nv_mul_f32 v7, 0.15915494, v7")
    k(f"v_mul_f32 v18, 0x43000000, v6\nv_mul_f32 v19, 0x43000000, v7\nv_fract_f32 v7, v7\nv_fract_f32 v19, v19")
    k.stamp(2)
    W = {n: 20 + 2 * i for i, n in enumerate((1, 2, 4, 8, 3, 5, 6, 7))}
    G = {m: 36 + 2 * (m - 1) for m in range(1, 8)}
    k(f"v_exp_f32 v6, v6\nv_exp_f32 v18, v18\nv_cos_f32 v{W[1]}, v7\nv_sin_f32 v{W[1]+1}, v7\nv_cos_f32 v{G[1]}, v19\nv_sin_f32 v{G[1]+1}, v19")
    k("v_lshlrev_b32 v8, 16, v8\nv_lshlrev_b32 v9, 16, v9\nv_add_f32 v10, v10, v10")
    k(f"v_pk_mul_f32 {vr(W[1],2)}, {vr(W[1],2)}, v[6:7] op_sel_hi:[1,0]\nv_pk_mul_f32 {vr(G[1],2)}, {vr(G[1],2)}, v[18:19] op_sel_hi:[1,0]")
    k("v_pk_mul_f32 v[8:9], v[8:9], v[10:11] op_sel_hi:[1,0]")
    tmp = [50, 52, 54, 56]; ti = [0]; cv = [58, 59, 60, 61]; ci = [0]; chain = [0]
    def cm(d, x, y):
        t = tmp[2 * chain[0] + ti[0] % 2]; ti[0] += 1
        return [f"v_pk_mul_f32 {vr(t,2)}, {vr(x,2)}, {vr(y,2)} op_sel:[0,0] op_sel_hi:[0,1]",
                f"v_pk_fma_f32 {vr(d,2)}, {vr(x,2)}, {vr(y,2)}, {vr(t,2)} op_sel:[1,1,0] op_sel_hi:[1,0,1] neg_lo:[0,1,0]"]
    def wr(x, buf, row, neg=False):
        c = cv[2 * chain[0] + ci[0] % 2]; ci[0] += 1
        return [f"v_cvt_pk_bf16_f32 v{c}, v{x}, {'-' if neg else ''}v{x+1}", f"ds_write_b32 v16, v{c} offset:{buf*PB+row*RS}"]
    def zipl(*ls):
        n = max(len(l) for l in ls)
        for i in range(n):
            for l in ls:
                if i < len(l): k(l[i])
    GA, GB, VA, VB = 62, 64, 66, 68
    gl = wr(G[1], 1, 1); prev = G[1]
    for m in range(2, 17):
        d = G.get(m, GA if m & 1 else GB)
        gl += cm(d, prev, G[1]); prev = d
        if m < 16: gl += wr(d, 1, m)
    G16 = prev
    chain[0] = 1
    vl = cm(W[2], W[1], W[1]) + cm(W[4], W[2], W[2]) + cm(W[8], W[4], W[4]) + wr(8, 0, 0, True); prev = 8
    for b in range(1, 16):
        d = VA if b & 1 else VB
        vl += cm(d, prev, W[8]) + wr(d, 0, b, True); prev = d
    zipl(vl, gl)
    k.stamp(3)
    VF = 72; UF = 88; D = [104, 108, 112]
    for s in range(4): k(f"ds_read_b128 {vr(VF+4*s,4)}, v17 offset:{64*s}\nds_read_b128 {vr(UF+4*s,4)}, v17 offset:{PB+64*s}")
    a = wr(G16, 0, 0) + wr(W[4], 0, 1) + wr(W[2], 0, 9) + cm(W[6], W[2], W[4]) + wr(W[6], 0, 13)
    chain[0] = 0
    b = cm(W[3], W[1], W[2]) + cm(W[5], W[1], W[4]) + cm(W[7], W[3], W[4])
    zipl(a, b)
    def mm(t, uf):
        for s in range(4): k(f"v_mfma_f32_16x16x32_bf16 {vr(D[t],4)}, {vr(uf+4*s,4)}, {vr(VF+4*s,4)}, {'0' if s==0 else vr(D[t],4)}")
    mm(0, UF)
    jobs = [(W[4], m, 0, 1 + m) for m in range(1, 8)] + [(W[2], m, 0, 9 + m) for m in range(1, 4)] + [(W[6], m, 0, 13 + m) for m in range(1, 3)]
    def run(jobs):
        for i in range(0, len(jobs), 2):
            ls = []
            for j, (w, m, buf, row) in enumerate(jobs[i:i+2]):
                d = (GA, VA)[j]; chain[0] = j
                ls.append(cm(d, w, G[m]) + wr(d, buf, row))
            zipl(*ls)
    run(jobs)
    UF2 = UF
    for s in range(4): k(f"ds_read_b128 {vr(UF2+4*s,4)}, v17 offset:{64*s}")
    chain[0] = 0; a = wr(W[1], 1, 1) + wr(W[5], 1, 3)
    chain[0] = 1; b = wr(W[3], 1, 2) + wr(W[7], 1, 4)
    zipl(a, b)
    run([(W[6], 3, 1, 0)] + [(W[o], 1, 1, 5 + i) for i, o in enumerate((1, 3, 5, 7))])
    for s in range(4): k(f"ds_read_b128 {vr(32+4*s,4)}, v17 offset:{PB+64*s}")
    mm(1, UF2)
    mm(2, 32)
    k.stamp(4)
    k("v_lshl_add_u32 v16, v2, 4, s24\nv_lshlrev_b32 v17, 4, v0")
    for t in range(3): k(f"ds_write_b128 v16, {vr(D[t],4)} offset:{1024*t}")
    for i in range(4): k(f"v_and_b32 v{20+2*i}, 0xffff, v{12+i}\nv_lshrrev_b32 v{21+2*i}, 16, v{12+i}")
    k("v_lshlrev_b32 v11, 16, v11\nv_cmp_eq_u32 vcc, 0, v0\nv_lshlrev_b32 v18, 3, v0\nv_cndmask_b32 v11, 0, v11, vcc")
    k("s_waitcnt lgkmcnt(0)\ns_barrier")
    for w in range(3): k(f"ds_read_b128 {vr(72+4*w,4)}, v17 offset:{w*WB}")
    k("v_add_f32 v72, v72, v11")
    k("v_pk_add_f32 v[72:73], v[72:73], v[76:77]\nv_pk_add_f32 v[74:75], v[74:75], v[78:79]\nv_pk_add_f32 v[72:73], v[72:73], v[80:81]\nv_pk_add_f32 v[74:75], v[74:75], v[82:83]")
    k(f"v_cvt_pk_bf16_f32 v72, v72, v73\nv_cvt_pk_bf16_f32 v73, v74, v75\nds_write_b64 v18, v[72:73] offset:{TB}")
    k("s_waitcnt lgkmcnt(0)\ns_barrier")
    for i in range(8): k(f"ds_read_u16 v{28+i}, v{20+i}")
    for i in range(4): k(f"v_lshl_or_b32 v{12+i}, v{29+2*i}, 16, v{28+2*i}")
    k("buffer_store_dwordx4 v[12:15], v5, s[4:7], s25 offen" + SC('k'))
    k.end()
    k("A_end:\ns_endpgm")
    data = [".p2align 7", "A_tab:"] + [f".long 0x{x:08x}" for x in LY.gather_table(TB)]
    return dict(name="kA_kernel", code=k.finish(), data=data, grid=NLN + NKG, block=192, lds=TB + 1552, vgpr=116, agpr=0)

def kB(opt):
    k = K()
    UB = 0; KB = 36864; XB = 61440; SH = XB + 16384; RS = 2112; SB = SH + 8 * RS; CSR = SB + 32768; BIG = 0x7000000; LD = 240
    SC = lambda n: " sc1" if opt.get("sc" + n, 1) else ""
    k("s_cmp_ge_u32 s2, 240\ns_cbranch_scc1 B_end")
    k.st_init(opt.get("st"), 1)
    mksrd(k, 4, 104, LY.WS_END)
    k("s_load_dwordx4 s[40:43], s[0:1], 64\ns_load_dwordx2 s[44:45], s[0:1], 80")
    k("v_lshrrev_b32 v1, 6, v0\nv_and_b32 v2, 63, v0\nv_readfirstlane_b32 s3, v1")
    k("s_lshr_b32 s12, s2, 3\ns_mul_i32 s13, s12, 26\ns_lshr_b32 s13, s13, 8\ns_mul_i32 s14, s13, 10\ns_sub_u32 s12, s12, s14\ns_and_b32 s14, s2, 7\ns_mul_i32 s14, s14, 10\ns_add_u32 s12, s12, s14")
    k("v_lshrrev_b32 v4, 3, v2\nv_and_b32 v5, 7, v2\nv_lshrrev_b32 v6, 4, v2\nv_and_b32 v7, 1, v1\nv_lshl_add_u32 v7, v7, 2, v6\nv_xor_b32 v7, v5, v7\nv_mul_u32_u24 v3, 10240, v4\nv_lshl_add_u32 v3, v7, 4, v3")
    k(f"s_lshl_b32 s15, s12, 7\ns_mul_i32 s16, s3, 81920\ns_add_u32 s15, s15, s16\ns_lshl_b32 s17, s3, 10\ns_add_u32 s17, s17, 4096")
    k("v_lshlrev_b32 v8, 4, v2")
    k(f"s_lshl_b32 s18, s12, 3\ns_add_u32 s18, s18, s3\ns_mul_i32 s18, s18, 3072\ns_add_u32 s18, s18, {LY.KP}\ns_mul_i32 s19, s3, 3072\ns_add_u32 s19, s19, {KB}")
    k("s_waitcnt lgkmcnt(0)")
    k("s_mov_b32 m0, s17\ns_nop 0\nbuffer_load_dwordx4 v3, s[4:7], s15 offen lds")
    k(f"s_add_u32 m0, s17, 8192\ns_add_u32 s16, s15, {8*81920}\nbuffer_load_dwordx4 v3, s[4:7], s16 offen lds")
    k("s_mov_b32 m0, s19\ns_nop 0")
    for i in range(3): k(f"buffer_load_dwordx4 v8, s[4:7], s18 offen offset:{1024*i} lds")
    k(f"s_cmp_eq_u32 s13, 0\ns_cbranch_scc1 B_u1\ns_add_u32 m0, s17, 16384\ns_add_u32 s16, s15, {16*81920}\nbuffer_load_dwordx4 v3, s[4:7], s16 offen lds")
    k(f"s_cmp_eq_u32 s13, 1\ns_cbranch_scc1 B_u1\ns_add_u32 m0, s17, 24576\ns_add_u32 s16, s15, {24*81920}\nbuffer_load_dwordx4 v3, s[4:7], s16 offen lds")
    k("B_u1:")
    k("s_lshl_b32 s34, s13, 9\ns_add_u32 s34, s34, 512\ns_cmp_eq_u32 s13, 0\ns_cselect_b32 s34, 0, s34")
    k(f"s_mul_i32 s35, s34, 1280\ns_add_u32 s35, s35, s15\ns_add_u32 m0, s17, {XB-4096}\ns_add_u32 s35, s35, {LY.XT}\nbuffer_load_dwordx4 v3, s[4:7], s35 offen lds")
    k(f"s_cmp_lg_u32 s13, 0\ns_cbranch_scc1 B_x1\ns_add_u32 m0, s17, {XB-4096+8192}\ns_add_u32 s35, s35, {8*81920}\nbuffer_load_dwordx4 v3, s[4:7], s35 offen lds\nB_x1:")
    k("v_add_u32 v11, s34, v0\nv_lshlrev_b32 v12, 4, v11")
    k(f"s_lshl_b32 s20, s3, 12\ns_add_u32 s20, s20, {SB}\nv_add_u32 v21, s20, v8")
    k("s_mov_b32 s26, 1966080\ns_mov_b32 s27, 0x00020000\ns_mov_b32 s30, 1966080\ns_mov_b32 s31, 0x00020000")
    k("s_cmp_eq_u32 s13, 2\ns_cbranch_scc1 B_s1")
    k("s_mul_i32 s21, s2, 205\ns_lshr_b32 s21, s21, 10\ns_mul_i32 s22, s21, 5\ns_sub_u32 s22, s2, s22\ns_lshl_b32 s23, s22, 3\ns_add_u32 s23, s23, s3")
    k(f"s_mov_b32 s24, s40\ns_mov_b32 s25, s41\ns_mov_b32 s28, s42\ns_mov_b32 s29, s43\ns_cmp_ge_u32 s2, 120\ns_cselect_b32 s46, {BIG}, 0")
    k("v_and_b32 v9, 2, v4\nv_xor_b32 v9, v9, v5\nv_mul_u32_u24 v10, 3072, v4\nv_lshl_add_u32 v9, v9, 4, v10\nv_xor_b32 v10, 64, v9")
    k(f"s_mul_i32 s48, s23, {16*3072}\ns_lshl_b32 s49, s21, 7\ns_add_u32 s48, s48, s49\ns_add_u32 s48, s48, s46\ns_add_u32 s49, s48, {8*3072}\ns_mov_b32 s50, s48\ns_mov_b32 s51, s49")
    def shld():
        for i in range(4): k(f"buffer_load_dwordx4 {vr(LD+4*i,4)}, v{9+i//2}, s[{24+4*(i//2)}:{27+4*(i//2)}], s{48+i} offen")
    if opt.get("shpre", 0): shld()
    k("v_bfe_u32 v64, v2, 4, 1\nv_lshrrev_b32 v65, 5, v2\nv_bfe_u32 v66, v2, 2, 2\nv_and_b32 v67, 3, v2")
    k("v_mul_u32_u24 v17, 2112, v64\nv_lshl_add_u32 v17, v65, 10, v17\nv_lshl_add_u32 v17, v66, 7, v17\nv_lshl_add_u32 v17, v67, 3, v17\nv_and_b32 v66, 2, v66\nv_lshl_add_u32 v17, v66, 4, v17\nv_add_u32 v17, s20, v17")
    for w in range(1, 4): k(f"v_xor_b32 v{17+w}, {32*w}, v17")
    k(f"s_mul_i32 s47, s21, {4*41984}\ns_add_u32 s47, s47, {LY.W1P}\ns_add_u32 s47, s47, s46\ns_lshl_b32 s52, s23, 10\ns_add_u32 s52, s52, s47\ns_add_u32 s53, s52, 41984\ns_add_u32 s54, s53, 41984\ns_add_u32 s55, s54, 41984")
    k("s_branch B_s2")
    k("B_s1:")
    k("s_sub_u32 s22, s2, 160\ns_mul_i32 s21, s22, 205\ns_lshr_b32 s21, s21, 11\ns_mul_i32 s23, s21, 10\ns_sub_u32 s22, s22, s23\ns_lshl_b32 s23, s21, 3\ns_add_u32 s23, s23, s3")
    k(f"s_mov_b32 s24, s44\ns_mov_b32 s25, s45\ns_mov_b32 s28, s44\ns_mov_b32 s29, s45\ns_mov_b32 s46, {LY.WDP}\ns_cmp_ge_u32 s23, 48\ns_cselect_b32 s46, {BIG}, s46")
    k("v_and_b32 v9, 2, v4\nv_lshlrev_b32 v9, 1, v9\nv_bfe_u32 v10, v4, 2, 1\nv_lshl_add_u32 v9, v10, 1, v9\nv_xor_b32 v9, v9, v5\nv_mul_u32_u24 v10, 1280, v4\nv_lshl_add_u32 v9, v9, 4, v10\nv_mov_b32 v10, v9")
    k(f"s_mul_i32 s48, s23, {32*1280}\ns_lshl_b32 s49, s22, 7\ns_add_u32 s48, s48, s49\ns_add_u32 s49, s48, 10240\ns_add_u32 s50, s49, 10240\ns_add_u32 s51, s50, 10240")
    if opt.get("shpre", 0): shld()
    k("v_bfe_u32 v66, v2, 2, 2\nv_and_b32 v67, 3, v2\nv_lshrrev_b32 v65, 5, v2\nv_and_b32 v64, 1, v6")
    k("v_lshlrev_b32 v68, 11, v65\nv_lshl_add_u32 v68, v64, 9, v68\nv_lshl_add_u32 v68, v66, 7, v68\nv_add_u32 v68, s20, v68")
    k("v_and_b32 v66, 2, v66\nv_lshlrev_b32 v66, 5, v66\nv_lshl_add_u32 v66, v64, 5, v66")
    for vv in range(2):
        a_ = 17 + 2 * vv
        k(f"s_lshl_b32 s32, s22, 1\ns_add_u32 s32, s32, {vv}\ns_mul_i32 s33, s32, 52\ns_lshr_b32 s33, s33, 8\ns_mul_i32 s33, s33, 5\ns_sub_u32 s32, s32, s33\ns_cmp_eq_u32 s32, 2\ns_cselect_b32 s32, 3, 4\ns_cselect_b32 s33, 32, 8")
        k(f"v_lshlrev_b32 v{a_}, s32, v67\nv_add_u32 v{a_}, {64*vv}, v{a_}\nv_add_u32 v{a_+1}, s33, v{a_}\nv_xor_b32 v{a_}, v{a_}, v66\nv_xor_b32 v{a_+1}, v{a_+1}, v66\nv_add_u32 v{a_}, v{a_}, v68\nv_add_u32 v{a_+1}, v{a_+1}, v68")
    for i in range(4):
        k(f"s_lshl_b32 s32, s22, 2\ns_add_u32 s32, s32, {i}\ns_mul_i32 s33, s32, 52\ns_lshr_b32 s33, s33, 8\ns_mul_i32 s47, s33, 5\ns_sub_u32 s32, s32, s47")
        k(f"s_and_b32 s47, s33, 1\ns_sub_u32 s32, s32, s47\ns_cselect_b32 s32, 4, s32\ns_mul_i32 s33, s33, 48\ns_add_u32 s33, s33, s23\ns_mul_i32 s33, s33, 5\ns_add_u32 s33, s33, s32\ns_lshl_b32 s33, s33, 10\ns_add_u32 s{52+i}, s33, s46")
    k("B_s2:")
    k(f"s_lshl_b32 s36, s12, 15\ns_add_u32 s36, s36, {LY.H}\ns_add_u32 s37, s36, 8192")
    k.stamp(1)
    k("v_mov_b32 v24, 0\nv_mov_b32 v25, 0\nv_lshlrev_b32 v13, 3, v0\nds_write_b64 v13, v[24:25]")
    AU = 26
    k("v_and_b32 v13, 15, v2")
    k("v_lshl_add_u32 v14, v13, 1, v6")
    for m in range(5):
        off = 32 - 2 + 4 * m if m < 4 else 32 - 3
        k(f"v_add_u32 v15, {off}, v14\nv_bfe_u32 v24, v15, 1, 3\nv_xor_b32 v24, v24, v1\nv_lshlrev_b32 v15, 7, v15\nv_lshl_add_u32 v{AU+m}, v24, 4, v15")
    k(f"v_sub_u32 v15, 15, v13\nv_lshrrev_b32 v15, 1, v15\nv_lshl_add_u32 v15, v6, 2, v15\nv_and_b32 v24, 1, v13\nv_xor_b32 v24, 1, v24\nv_mul_u32_u24 v24, 464, v24\nv_add_u32 v15, v15, v24\nv_lshl_add_u32 v31, v15, 2, s19\nv_add_u32 v32, 512, v31")
    k(f"v_sub_u32 v15, 295, v13\nv_lshl_add_u32 v15, v6, 2, v15\nv_lshl_add_u32 v33, v15, 2, s19")
    k(f"s_mul_i32 s38, s3, {RS}\ns_add_u32 s38, s38, {SH}\nv_lshlrev_b32 v15, 5, v13\nv_lshl_add_u32 v15, v6, 3, v15\nv_add_u32 v34, s38, v15")
    k(f"v_bfe_u32 v15, v2, 2, 2\nv_mul_u32_u24 v15, {RS}, v15\nv_and_b32 v24, 3, v2\nv_lshl_add_u32 v15, v24, 3, v15\nv_lshrrev_b32 v24, 4, v0\nv_lshl_add_u32 v15, v24, 5, v15\nv_add_u32 v35, {SH}, v15")
    MK = {n: 36 + 4 * i for i, n in enumerate("abcdoes")}
    F = 64
    k("v_lshlrev_b32 v15, 3, v6\nv_sub_u32 v15, v13, v15\nv_add_u32 v24, 15, v15\nv_add_u32 v15, 16, v15\nv_and_b32 v15, 0xffff, v15\nv_lshl_or_b32 v15, v24, 16, v15\ns_mov_b32 s39, 0x3f803f80")
    for c in range(3, 21): k(f"v_pk_sub_i16 v{F+c-3}, v15, {c} op_sel_hi:[1,0]")
    for c in range(3, 21): k(f"v_pk_ashrrev_i16 v{F+c-3}, 15, v{F+c-3} op_sel_hi:[0,1]")
    win = dict(a=(3, 6), b=(6, 11), c=(11, 14), d=(6, 11), o=(5, 12), e=(4, 13), s=(3, 5))
    MK["d"] = MK["b"]
    for n in "abcoe":
        lo, hi = win[n]
        for p in range(4): k(f"v_bitop3_b32 v{MK[n]+p}, v{F+lo+2*p-3}, v{F+hi+2*p-3}, s39 bitop3:0x28")
    for p in range(4): k(f"v_xor_b32 v{MK['s']+p}, v{F+2*p}, v{F+2+2*p}")
    k(f"v_lshrrev_b32 v15, 1, v6\nv_lshl_add_u32 v15, v13, 1, v15\nv_lshlrev_b32 v15, 7, v15\nv_and_b32 v24, 7, v13\nv_xor_b32 v24, v24, v1\nv_lshl_add_u32 v15, v24, 4, v15\nv_and_b32 v24, 1, v6\nv_lshl_add_u32 v15, v24, 3, v15\nv_add_u32 v16, {XB}, v15")
    k.stamp(2)
    k(f"s_waitcnt vmcnt({4 if opt.get('shpre', 0) else 0}) lgkmcnt(0)")
    k.stamp(3)
    k("s_barrier")
    k.stamp(4); k("s_waitcnt lgkmcnt(0)" if k.on else ""); k.reset()
    k("s_cmp_eq_u32 s13, 1\ns_cbranch_scc1 B_t1\ns_cmp_eq_u32 s13, 2\ns_cbranch_scc1 B_t2")
    maxv = 0
    for third, tiles in enumerate(([0, 1, 2, 3], [4, 5], [6, 7])):
        k(f"B_t{third}:"); k.reset()
        ACC = {T: 64 + 4 * i for i, T in enumerate(tiles)}
        pool = list(range(80, LD, 4))
        def ld(v, r):
            if v[0] == "B":
                b = v[1]; return [f"ds_read_b128 {vr(r,4)}, v{AU+b%4} offset:{(b//4)*2048}"] if b >= 0 else [f"ds_read_b128 {vr(r,4)}, v{NEG+b%4} offset:{(b//4+2)*2048 if b%4 else 0}"]
            if v[0] == "B24": return [f"ds_read_b128 {vr(r,4)}, v30 offset:{v[1]*4096}"]
            if v[0] == "A":
                o = 16 * (16 - v[1]); a = 31
                if o >= 128: o -= 128; a = 32
            else:
                o = {"oe": 112, "ab": 128, "cd": 176}[v[0]] - 16 * v[1]; a = 33
            return [f"ds_read2_b32 {vr(r,2)}, v{a} offset0:{o} offset1:{o+1}", f"ds_read2_b32 {vr(r+2,2)}, v{a} offset0:{o+2} offset1:{o+3}"]
        NEG = 20 + 0
        if third == 0:
            NEG = pool.pop(0)
            for m in range(4): k(f"v_subrev_u32 v{NEG+m}, {4096 if m else 2048}, v{AU+m}")
        else:
            k(f"v_lshlrev_b32 v24, 0, s19\nds_read_b32 v24, v24 offset:{456*4}")
        full = []
        for q in range(17):
            for T in reversed(tiles):
                if 8 * T - q >= -7: full.append(("M", T, ("A", q), ("B", 8 * T - q)))
        sops = []; tops = []
        for Tp in range(8):
            for pr, Ds in (("ab", (2, 3, 4)), ("cd", (2, 3, 4)), ("oe", (4, 5, 6, 7))):
                us = [T for T in tiles if T - Tp in Ds]
                if not us: continue
                sops.append((pr, Tp))
                for T in us: tops.append(("M", T, ("P", pr, Tp), (pr, T - Tp)))
        spec = [("M", T, ("spec",), ("B", 8 * (T - 4))) for T in tiles if T >= 4]
        ops = []
        fi = 0
        for i, (pr, Tp) in enumerate(sops):
            for n in pr: ops.append(("S", n, Tp, ("B24", Tp) if n in "de" else ("B", 8 * Tp)))
            ops += full[fi:fi + 2]; fi += 2
            ops.append(("cvt", pr, Tp))
        ops += spec + full[fi:fi + 4] + tops + full[fi + 4:]
        def vals(o):
            if o[0] == "M": return [v for v in o[2:] if v[0] not in ("P", "spec")]
            if o[0] == "S": return [o[3]]
            return []
        last = {}
        for i, o in enumerate(ops):
            for v in vals(o): last[v] = i
            if o[0] == "M" and o[2][0] == "P": last[o[2]] = i
        reg = {}; started = set(); LA = opt.get("bla", 5)
        def prefetch(i):
            if i < len(ops):
                for v in vals(ops[i]):
                    if v not in reg:
                        reg[v] = pool.pop(0)
                        for s in ld(v, reg[v]): k(s)
        for i, T in enumerate(tiles): k(f"ds_read_b64 {vr(ACC[T]+2,2)}, v16 offset:{4096*i}")
        for i in range(LA): prefetch(i)
        for T in tiles:
            a = ACC[T]
            k(f"v_lshlrev_b32 v{a}, 16, v{a+2}\nv_and_b32 v{a+1}, 0xffff0000, v{a+2}\nv_lshlrev_b32 v{a+2}, 16, v{a+3}\nv_and_b32 v{a+3}, 0xffff0000, v{a+3}")
            started.add(T)
        specdone = False
        sh = []; P0 = opt.get("shpos", 45)
        for i, o in enumerate(ops):
            if i == 1 and not opt.get("shpre", 0): shld()
            if i == P0:
                k("s_waitcnt vmcnt(0)")
                sh = [f"ds_write_b128 v21, {vr(LD+4*j,4)} offset:{1024*j}" for j in range(4)]
                for j in range(4):
                    for e in range(2): sh.append(f"ds_read_b64_tr_b16 {vr(LD+4*j+2*e,2)}, v{17+j} offset:{(1024 if third == 2 else 512)*e}")
                sh += [""] * 2
                for j in range(4): sh.append(f"buffer_store_dwordx4 {vr(LD+4*j,4)}, v8, s[4:7], s{52+j} offen{SC('w')}")
                if third < 2:
                    sh.append("\n".join([f"v_mov_b32 v{17+w}, 0" for w in range(3)] + ["v_mov_b32 v16, 0"] + [f"v_dot2c_f32_bf16 v{16+w}, s39, v{LD+4*w+q}" for q in range(4) for w in range(4)]))
                    sh.append(f"v_lshlrev_b32 v20, 4, v0\nv_add_u32 v20, {CSR}, v20\nds_write_b128 v20, v[16:19]")
            if sh: k(sh.pop(0))
            if o[0] == "S":
                r = pool.pop(0); reg[("S", o[1], o[2])] = r
                k(f"v_mfma_f32_16x16x32_bf16 {vr(r,4)}, {vr(reg[o[3]],4)}, {vr(MK[o[1]],4)}, 0")
            elif o[0] == "cvt":
                r0 = reg.pop(("S", o[1][0], o[2])); r1 = reg.pop(("S", o[1][1], o[2]))
                for p in range(4): k(f"v_cvt_pk_bf16_f32 v{r0+p}, v{r0+p}, v{r1+p}")
                reg[("P", o[1], o[2])] = r0; pool.append(r1)
            else:
                T = o[1]
                if o[2][0] == "spec":
                    if not specdone:
                        for p in range(4): k(f"v_and_b32 v{MK['s']+p}, v{MK['s']+p}, v24")
                        specdone = True
                    a = MK["s"]
                else: a = reg[o[2]]
                k(f"v_mfma_f32_16x16x32_bf16 {vr(ACC[T],4)}, {vr(a,4)}, {vr(reg[o[3]],4)}, {vr(ACC[T],4) if T in started else '0'}")
                started.add(T)
            for v in list(reg):
                if last.get(v) == i: pool.append(reg.pop(v))
            prefetch(i + LA)
        assert not sh
        for i, T in enumerate(tiles):
            a = ACC[T]
            k(f"v_cvt_pk_bf16_f32 v{a}, v{a}, v{a+1}\nv_cvt_pk_bf16_f32 v{a+1}, v{a+2}, v{a+3}\nds_write_b64 v34, {vr(a,2)} offset:{512*i}")
        k("s_waitcnt lgkmcnt(0)\ns_barrier")
        k.stamp(5)
        nr = len(tiles) // 2
        for rnd in range(nr):
            k(f"ds_read_b64_tr_b16 {vr(80+4*rnd,2)}, v35 offset:{1024*rnd}\nds_read_b64_tr_b16 {vr(82+4*rnd,2)}, v35 offset:{1024*rnd+4*RS}")
        for rnd in range(nr):
            k(f"buffer_store_dwordx4 {vr(80+4*rnd,4)}, v12, s[4:7], s{36+rnd} offen" + (" sc1" if opt.get("sch", 1) else ""))
        if third < 2:
            k(f"s_cmp_ge_u32 s3, 2\ns_cbranch_scc1 B_c1{third}")
            k(f"v_and_b32 v64, 31, v0\nv_lshrrev_b32 v65, 5, v0\nv_lshlrev_b32 v64, 4, v64\nv_lshl_add_u32 v66, v65, 2, v64\nv_add_u32 v66, {CSR}, v66")
            for j in range(8): k(f"ds_read2st64_b32 {vr(100+2*j,2)}, v66 offset0:{4*j} offset1:{4*j+2}")
            k(f"v_mul_u32_u24 v65, 41984, v65\nv_add_u32 v64, v64, v65\ns_add_u32 s32, s47, 40960\ns_lshl_b32 s33, s22, 2")
            for j in range(1, 8): k(f"v_pk_add_f32 v[100:101], v[100:101], {vr(100+2*j,2)}")
            k("v_add_f32 v68, v100, v101\nv_cvt_pk_bf16_f32 v69, v68, v68\nv_and_b32 v69, 0xffff0000, v69\nv_sub_f32 v70, v68, v69\nv_cvt_pk_bf16_f32 v68, v69, v70")
            k(f"s_cmp_eq_u32 s22, 4\ns_cbranch_scc1 B_c0{third}\ns_add_u32 s32, s32, s33\nbuffer_store_dword v68, v64, s[4:7], s32 offen\ns_branch B_c1{third}")
            k(f"B_c0{third}:\nv_mov_b32 v69, 0\nv_mov_b32 v70, 0\nv_mov_b32 v71, 0\nbuffer_store_dwordx4 v[68:71], v64, s[4:7], s32 offen offset:512\ns_nop 1")
            k(f"B_c1{third}:")
        k.end()
    k("B_end:\ns_endpgm")
    return dict(name="kB_kernel", code=k.finish(), grid=240, block=512, lds=CSR + 8192, vgpr=256, agpr=0)
```

```python
from asmlib import K, vr
import layout as LY
import struct, math
def fbits(x): return "0x%08x" % struct.unpack("<I", struct.pack("<f", x))[0]

def srd(k, d, base, nbytes):
    k(f"s_mov_b32 s{d}, s{base}\ns_mov_b32 s{d+1}, s{base+1}\ns_mov_b32 s{d+2}, {nbytes}\ns_mov_b32 s{d+3}, 0x00020000")

def kD(opt):
    k = K()
    NS = 7
    k("s_cmp_ge_u32 s2, 256\ns_cbranch_scc1 D_end")
    k.st_init(opt.get("st"), 3)
    k("s_load_dwordx2 s[4:5], s[0:1], 104\ns_load_dwordx2 s[8:9], s[0:1], 88")
    k("v_lshrrev_b32 v1, 6, v0\nv_and_b32 v0, 63, v0\nv_readfirstlane_b32 s12, v1")
    k("s_and_b32 s13, s2, 7\ns_lshr_b32 s14, s2, 3\ns_and_b32 s15, s14, 3\ns_lshl_b32 s13, s13, 2\ns_add_u32 s13, s13, s15\ns_lshr_b32 s14, s14, 2")
    k("v_and_b32 v2, 15, v0\nv_lshrrev_b32 v3, 4, v0")
    k("v_lshlrev_b32 v4, 4, v0")
    k("v_lshlrev_b32 v5, 9, v3\nv_lshl_add_u32 v5, v2, 4, v5")
    k("v_lshlrev_b32 v6, 15, v3\nv_lshl_add_u32 v6, v2, 4, v6")
    k("v_lshrrev_b32 v7, 1, v3\nv_lshlrev_b32 v7, 15, v7\nv_lshl_add_u32 v7, v2, 4, v7\nv_and_b32 v8, 1, v3\nv_lshl_add_u32 v7, v8, 3, v7")
    k(f"s_lshr_b32 s16, s12, 1\ns_lshl_b32 s17, s13, 1\ns_add_u32 s16, s16, s17\ns_mul_i32 s16, s16, 98304\ns_and_b32 s17, s12, 1\ns_lshl_b32 s17, s17, 8\ns_add_u32 s16, s16, s17\ns_add_u32 s16, s16, {LY.ACT}")
    k(f"s_mul_i32 s19, s12, 5120\ns_mul_i32 s18, s14, 245760\ns_add_u32 s18, s18, s19\ns_add_u32 s18, s18, {LY.WDP}")
    k(f"s_lshl_b32 s21, s13, 2\ns_add_u32 s21, s21, s12\ns_mul_i32 s20, s14, 327680\ns_lshl_b32 s22, s21, 8\ns_add_u32 s20, s20, s22\ns_add_u32 s20, s20, {LY.H}")
    k(f"s_mov_b32 s6, {LY.WS_END}\ns_mov_b32 s7, 0x00020000\ns_mov_b32 s10, 2621440\ns_mov_b32 s11, 0x00020000")
    k("s_waitcnt lgkmcnt(0)")
    HB = 12; ACC = 24; WR = 44; NW = 10; AR = WR + 4 * NW
    def issue(g):
        sl = g % NS
        L = []
        L.append(f"s_add_u32 m0, s19, {sl*20480}\ns_add_u32 s24, s18, {g*20480}")
        for n in range(4): L.append(f"buffer_load_dwordx4 v4, s[4:7], s24 offen offset:{n*1024} lds")
        L.append(f"s_add_u32 m0, s19, {sl*20480+4096}\ns_add_u32 s24, s24, 4096")
        L.append(f"buffer_load_dwordx4 v4, s[4:7], s24 offen lds")
        for h in range(2):
            L.append(f"s_add_u32 s25, s16, {(4*g+2*h)*2048}")
            for q in range(2):
                L.append(f"buffer_load_dwordx4 {vr(AR+16*sl+8*h+4*q,4)}, v5, s[4:7], s25 offen offset:{q*2048}")
        L.append(f"@tag g{g}")
        return L
    k("s_and_b32 s28, s14, 1\ns_xor_b32 s29, s28, 1\ns_lshl_b32 s30, s28, 16\ns_lshl_b32 s31, s29, 18\ns_add_u32 s30, s30, s20\ns_add_u32 s31, s31, s20")
    k(f"buffer_load_dwordx4 {vr(HB,4)}, v6, s[4:7], s30 offen")
    k(f"s_add_u32 s23, s30, {4*32768}\nbuffer_load_dwordx4 {vr(HB+4,4)}, v6, s[4:7], s23 offen")
    k(f"buffer_load_dwordx2 {vr(HB+8,2)}, v7, s[4:7], s31 offen")
    DL = opt.get("dla", 2)
    for g in range(DL):
        for x in issue(g): k(x)
    k.stamp(1)
    k("v_add_u32 v8, 61440, v4\nv_add_u32 v9, 122880, v4")
    k("v_mul_u32_u24 v10, 1280, v2\nv_lshl_add_u32 v11, v3, 3, v10\nv_lshl_add_u32 v10, v3, 4, v10")
    k("s_mul_i32 s26, s21, 20480\ns_mul_i32 s27, s14, 160\ns_add_u32 s26, s26, s27\ns_lshl_b32 s28, s28, 5\ns_lshl_b32 s29, s29, 7\ns_add_u32 s27, s26, s29\ns_add_u32 s26, s26, s28")
    for n in range(5):
        for r in range(4):
            e = (4 * (n & 1) + r) if n < 4 else r
            src = HB + 4 * (n // 2) + e // 2
            k(f"v_and_b32 v{ACC+4*n+r}, 0xffff0000, v{src}" if e & 1 else f"v_lshlrev_b32 v{ACC+4*n+r}, 16, v{src}")
    wi = 0
    for g in range(12):
        sl = g % NS
        k.waitvm(f"g{g}")
        k("s_barrier")
        if g in (0, 4, 8, 11): k.stamp(2 + (0, 4, 8, 11).index(g))
        nxt = issue(g + DL) if g + DL < 12 else []
        def rd(j):
            off = sl * 20480 + j * 1024
            a = 4 if off < 61440 else (8 if off < 122880 else 9)
            off -= {4: 0, 8: 61440, 9: 122880}[a]
            return f"ds_read_b128 {vr(WR+4*((20*g+j)%NW),4)}, v{a} offset:{off}"
        LA = 8
        for j in range(LA): k(rd(j))
        for j in range(20):
            kk, n = divmod(j, 5)
            k(f"v_mfma_f32_16x16x32_bf16 {vr(ACC+4*n,4)}, {vr(WR+4*((20*g+j)%NW),4)}, {vr(AR+16*sl+4*kk,4)}, {vr(ACC+4*n,4)}")
            if j + LA < 20: k(rd(j + LA))
            if j % 2 == 1:
                while nxt:
                    x = nxt.pop(0); k(x)
                    if "buffer_load" in x: break
        for x in nxt: k(x)
    for p in range(2):
        for i in range(4):
            n = 2 * p + i // 2
            k(f"v_cvt_pk_bf16_f32 v{HB+4*p+i}, v{ACC+4*n+2*(i&1)}, v{ACC+4*n+2*(i&1)+1}")
        k(f"buffer_store_dwordx4 {vr(HB+4*p,4)}, v10, s[8:11], s26 offen offset:{64*p}")
    for i in range(2): k(f"v_cvt_pk_bf16_f32 v{HB+8+i}, v{ACC+16+2*i}, v{ACC+17+2*i}")
    k(f"buffer_store_dwordx2 {vr(HB+8,2)}, v11, s[8:11], s27 offen")
    k.end()
    k("D_end:\ns_endpgm")
    return dict(name="kD_kernel", code=k.finish(), grid=256, block=256, lds=NS * 20480, vgpr=AR + 16 * NS, agpr=0)

def kC(opt):
    k = K()
    k("s_cmp_ge_u32 s2, 256\ns_cbranch_scc1 C_end")
    k.st_init(opt.get("st"), 2)
    k("s_load_dwordx2 s[4:5], s[0:1], 104")
    k("v_lshrrev_b32 v1, 6, v0\nv_and_b32 v0, 63, v0\nv_readfirstlane_b32 s12, v1")
    if opt.get("cmap", 1) == 0:
        k("s_and_b32 s13, s2, 7\ns_lshr_b32 s14, s2, 3\ns_and_b32 s15, s14, 1\ns_lshl_b32 s13, s13, 1\ns_add_u32 s13, s13, s15\ns_lshr_b32 s14, s14, 1")
    else:
        k("s_and_b32 s13, s2, 6\ns_lshr_b32 s14, s2, 3\ns_and_b32 s15, s14, 3\ns_lshl_b32 s13, s13, 1\ns_add_u32 s13, s13, s15\ns_lshr_b32 s14, s14, 2\ns_and_b32 s15, s2, 1\ns_lshl_b32 s15, s15, 3\ns_add_u32 s14, s14, s15")
    k("v_lshlrev_b32 v4, 4, v0")
    k("v_and_b32 v2, 31, v0\nv_lshrrev_b32 v3, 5, v0\nv_lshlrev_b32 v5, 15, v3\nv_lshl_add_u32 v5, v2, 4, v5")
    k(f"s_lshl_b32 s21, s13, 2\ns_add_u32 s21, s21, s12\ns_lshl_b32 s16, s21, 9\ns_add_u32 s16, s16, {LY.H}")
    k(f"s_mul_i32 s17, s14, {6*41984}\ns_add_u32 s17, s17, {LY.W1P}")
    k(f"s_lshr_b32 s22, s12, 1\ns_and_b32 s23, s12, 1\ns_lshl_b32 s23, s23, 11\ns_mul_i32 s18, s22, 41984\ns_add_u32 s18, s18, s23\ns_add_u32 s18, s18, s17")
    k(f"s_mul_i32 s19, s22, 40960\ns_add_u32 s19, s19, s23")
    k(f"s_lshl_b32 s20, s12, 11\ns_add_u32 s28, s17, s20")
    k(f"s_mov_b32 s6, {LY.WS_END}\ns_mov_b32 s7, 0x00020000")
    k("s_waitcnt lgkmcnt(0)")
    HF = 96
    ACCS = [8, 24, 40]
    T = 56
    CS = 0; WR = 24; NW = 16
    def issue1(g):
        L = [f"s_add_u32 m0, s19, {g*4096}\ns_add_u32 s24, s18, {g*4096}"]
        for q in range(2): L.append(f"buffer_load_dwordx4 v4, s[4:7], s24 offen offset:{q*1024} lds")
        for q in range(4):
            ks = 4 * g + q
            L.append(f"s_add_u32 s25, s16, {ks*65536}\nbuffer_load_dwordx4 {vr(HF+4*ks,4)}, v5, s[4:7], s25 offen")
        L.append(f"@tag g{g}")
        return L
    def issueT(t, c):
        L = [f"s_add_u32 m0, s20, {(t%4)*40960+c*8192}\ns_add_u32 s24, s28, {t*41984+c*8192}"]
        for q in range(2): L.append(f"buffer_load_dwordx4 v4, s[4:7], s24 offen offset:{q*1024} lds")
        L.append(f"@tag t{t}c{c}")
        return L
    CL = opt.get("cla", 3)
    for g in range(CL):
        for x in issue1(g): k(x)
    pend = []
    for g in range(CL, 10): pend += issue1(g)
    csl = lambda t: f"s_add_u32 s24, s17, {t*41984+40960}\nbuffer_load_dwordx4 {vr(CS+4*t,4,'a')}, v4, s[4:7], s24 offen"
    for c in range(5):
        pend += issueT(2, c)
        if c == 1: pend += [csl(0), csl(1)]
    for c in range(5): pend += issueT(3, c)
    for t in range(2, 6): pend.append(csl(t))
    k.stamp(1)
    k("v_add_u32 v6, 61440, v4\nv_add_u32 v7, 122880, v4")
    S1, S2 = T, T + 1
    k(f"v_mov_b32 v{S1}, 0\nv_mov_b32 v{S2}, 0\nv_mov_b32 v{T+2}, 0\nv_mov_b32 v{T+3}, 0\ns_mov_b32 s30, 0x3f803f80")
    cnt = [0]
    def pop1():
        n = 0
        while pend:
            x = pend.pop(0); k(x); n += len(x.split("\n"))
            if "buffer_load" in x: break
        while pend and pend[0].startswith("@tag"): k(pend.pop(0))
        return n
    def rd(t, ks):
        off = (t % 4) * 40960 + ks * 1024
        a = 4 if off < 61440 else (6 if off < 122880 else 7)
        off -= {4: 0, 6: 61440, 7: 122880}[a]
        r = WR + 4 * (cnt[0] % NW); cnt[0] += 1
        return f"ds_read_b128 {vr(r,4,'a')}, v{a} offset:{off}", r
    def mf(acc, a, b, first, af="a"):
        return f"v_mfma_f32_32x32x16_bf16 {vr(acc,16)}, {vr(a,4,af)}, {vr(b,4)}, {'0' if first else vr(acc,16)}"
    for g in range(10):
        k.waitvm(f"g{g}")
        k("s_barrier")
        if g in (0, 9): k.stamp(2 + (0, 9).index(g))
        rr = []
        for q in range(4):
            for t in range(2):
                s, r = rd(t, 4 * g + q); k(s); rr.append(r)
        for q in range(16):
            h = HF + 16 * g + q
            k(f"v_dot2c_f32_bf16 v{S1+2*(q&1)}, s30, v{h}")
            k(f"v_dot2c_f32_bf16 v{S2+2*(q&1)}, v{h}, v{h}")
            if q in (1, 9): pop1()
        for q in range(4):
            for t in range(2):
                k(mf(ACCS[t], rr[2*q+t], HF + 4 * (4 * g + q), g == 0 and q == 0))
                if t == 0: pop1()
    MB = T + 4; C0 = T + 8; C1 = T + 9; Q = T + 10; X = T + 12
    st = []
    st.append(f"v_add_f32 v{S1}, v{S1}, v{S1+2}\nv_add_f32 v{S2}, v{S2}, v{S2+2}")
    st.append(f"v_mov_b32 v{S1+2}, v{S1}\nv_mov_b32 v{S2+2}, v{S2}")
    st.append(f"v_permlane32_swap_b32 v{S1}, v{S1+2}\nv_permlane32_swap_b32 v{S2}, v{S2+2}")
    st.append(f"v_add_f32 v{S1}, v{S1}, v{S1+2}\nv_add_f32 v{S2}, v{S2}, v{S2+2}")
    st.append(f"v_mul_f32 v{S1}, {fbits(-1/640)}, v{S1}\nv_mul_f32 v{S2}, {fbits(1/640)}, v{S2}")
    st.append(f"v_cvt_pk_bf16_f32 v{MB}, v{S1}, v{S1}\nv_fma_f32 v{S2}, -v{S1}, v{S1}, v{S2}")
    st.append(f"v_mov_b32 v{MB+1}, v{MB}\nv_mov_b32 v{MB+2}, v{MB}\nv_mov_b32 v{MB+3}, v{MB}\nv_max_f32 v{S2}, 0, v{S2}")
    st.append(f"v_cvt_pk_bf16_f32 v{S2}, v{S2}, v{S2}\nv_and_b32 v{S2}, 0xffff0000, v{S2}\nv_add_f32 v{S2}, {fbits(1e-5)}, v{S2}")
    st.append(f"v_cvt_pk_bf16_f32 v{S2}, v{S2}, v{S2}\nv_and_b32 v{S2}, 0xffff0000, v{S2}\nv_sqrt_f32 v{S2}, v{S2}")
    st.append(f"v_cvt_pk_bf16_f32 v{S2}, v{S2}, v{S2}\nv_and_b32 v{S2}, 0xffff0000, v{S2}")
    K0 = -2 * math.sqrt(2 / math.pi) * math.log2(math.e)
    st.append(f"v_rcp_f32 v{S1}, v{S2}\nv_mul_f32 v{Q}, v{S2}, v{S2}")
    st.append(f"v_mul_f32 v{C0}, {fbits(K0)}, v{S1}\nv_mul_f32 v{C1}, v{S1}, v{S1}\nv_mul_f32 v{C1}, {fbits(0.044715)}, v{C1}\nv_mul_f32 v{C1}, v{C1}, v{C0}")
    st.append(f"s_mul_i32 s26, s21, 96\ns_mul_i32 s27, s14, 6\ns_add_u32 s26, s26, s27\ns_lshl_b32 s26, s26, 10\ns_add_u32 s26, s26, {LY.ACT}\ns_add_u32 s27, s26, 4096")
    def epi(t):
        a = ACCS[t % 3]
        L = []
        O = X + 16 + 4 * (t & 1)
        for half in range(2):
            vs = range(4 * half, 4 * half + 4)
            x = lambda i: X + (i & 3) + 8 * half
            y = lambda i: X + 4 + (i & 3) + 8 * half
            for i in vs: L.append(f"v_mul_f32 v{x(i)}, v{a+i}, v{a+i}")
            for i in vs: L.append(f"v_fma_f32 v{x(i)}, v{x(i)}, v{C1}, v{C0}")
            for i in vs: L.append(f"v_mul_f32 v{x(i)}, v{x(i)}, v{a+i}")
            for i in vs: L.append(f"v_exp_f32 v{x(i)}, v{x(i)}")
            for i in vs: L.append(f"v_mul_f32 v{y(i)}, v{a+i}, v{a+8+i}")
            for i in vs: L.append(f"v_fma_f32 v{x(i)}, v{x(i)}, v{Q}, v{Q}")
            for i in vs: L.append(f"v_rcp_f32 v{x(i)}, v{x(i)}")
            for i in vs: L.append(f"v_mul_f32 v{y(i)}, v{y(i)}, v{x(i)}")
            for i in range(2): L.append(f"v_cvt_pk_bf16_f32 v{O+2*half+i}, v{y(2*i)}, v{y(2*i+1)}")
        L.append(f"buffer_store_dwordx4 {vr(O,4)}, v4, s[4:7], s{26+t//4} offen offset:{(t%4)*1024}" + (" sc1" if opt.get("sca", 1) else ""))
        return L
    cost = lambda s: 2 if s.startswith(("v_exp", "v_rcp", "v_sqrt")) else 1
    fill = []
    for s in st: fill += s.split("\n")
    fill.append("@corr")
    LA = 6
    seq = [(t, ks) for t in range(2, 6) for ks in range(40)]
    waits = {(2, 0): "t2c0", (2, 8): "t2c1", (2, 16): "t2c2", (2, 24): "t2c4", (3, 0): "t3c1", (3, 16): "t3c4", (4, 0): "t4c4", (5, 0): "t5c4"}
    regs = {}
    def do_rd(i):
        t, ks = seq[i]
        if (t, ks) in waits:
            k.waitvm(waits[(t, ks)]); k("s_barrier")
            if (t, ks) in ((3, 0), (5, 0)): k.stamp(4 if t == 3 else 5)
            if (t, ks) == (2, 0):
                for tt in (4, 5):
                    for c in range(5): pend.extend(issueT(tt, c))
        s, r = rd(t, ks); k(s); regs[i] = r
    for i in range(LA): do_rd(i)
    for i, (t, ks) in enumerate(seq):
        acc = ACCS[t % 3]
        if ks == 0:
            while any(f"#e{t-3}" in f for f in fill): k(fill.pop(0).split("#")[0])
        k(mf(acc, regs[i], HF + 4 * ks, ks == 0))
        budget = 4
        if i + LA < len(seq): do_rd(i + LA); budget -= 1
        if i % 2 == 0: budget -= pop1()
        while fill and budget > 0:
            f = fill.pop(0)
            if f == "@corr":
                for tt in range(2): k(mf(ACCS[tt], CS + 4 * tt, MB, False))
                fill += ["s_nop 0"] * 3
                for tt in range(2): fill += [e + f"#e{tt}" for e in epi(tt)]
                break
            k(f.split("#")[0]); budget -= cost(f)
        if ks == 39:
            k(mf(acc, CS + 4 * t, MB, False))
            if not fill: fill += ["s_nop 0"] * 6
            fill += [e + f"#e{t}" for e in epi(t)]
    for f in fill: k(f.split("#")[0])
    k.end()
    k("C_end:\ns_endpgm")
    return dict(name="kC_kernel", code=k.finish(), grid=256, block=256, lds=163840, vgpr=256, agpr=WR + 4 * NW)
```

```python
from asmlib import K, vr
import layout as LY
import struct, math
def fbits(x): return "0x%08x" % struct.unpack("<I", struct.pack("<f", x))[0]

def srd(k, d, base, nbytes):
    k(f"s_mov_b32 s{d}, s{base}\ns_mov_b32 s{d+1}, s{base+1}\ns_mov_b32 s{d+2}, {nbytes}\ns_mov_b32 s{d+3}, 0x00020000")

def kD(opt):
    k = K()
    NS = 7
    k("s_cmp_ge_u32 s2, 256\ns_cbranch_scc1 D_end")
    k.st_init(opt.get("st"), 3)
    k("s_load_dwordx2 s[4:5], s[0:1], 104\ns_load_dwordx2 s[8:9], s[0:1], 88")
    k("v_lshrrev_b32 v1, 6, v0\nv_and_b32 v0, 63, v0\nv_readfirstlane_b32 s12, v1")
    k("s_and_b32 s13, s2, 7\ns_lshr_b32 s14, s2, 3\ns_and_b32 s15, s14, 3\ns_lshl_b32 s13, s13, 2\ns_add_u32 s13, s13, s15\ns_lshr_b32 s14, s14, 2")
    k("v_and_b32 v2, 15, v0\nv_lshrrev_b32 v3, 4, v0")
    k("v_lshlrev_b32 v4, 4, v0")
    k("v_lshlrev_b32 v5, 9, v3\nv_lshl_add_u32 v5, v2, 4, v5")
    k("v_lshlrev_b32 v6, 15, v3\nv_lshl_add_u32 v6, v2, 4, v6")
    k("v_lshrrev_b32 v7, 1, v3\nv_lshlrev_b32 v7, 15, v7\nv_lshl_add_u32 v7, v2, 4, v7\nv_and_b32 v8, 1, v3\nv_lshl_add_u32 v7, v8, 3, v7")
    k(f"s_lshr_b32 s16, s12, 1\ns_lshl_b32 s17, s13, 1\ns_add_u32 s16, s16, s17\ns_mul_i32 s16, s16, 98304\ns_and_b32 s17, s12, 1\ns_lshl_b32 s17, s17, 8\ns_add_u32 s16, s16, s17\ns_add_u32 s16, s16, {LY.ACT}")
    k(f"s_mul_i32 s19, s12, 5120\ns_mul_i32 s18, s14, 245760\ns_add_u32 s18, s18, s19\ns_add_u32 s18, s18, {LY.WDP}")
    k(f"s_lshl_b32 s21, s13, 2\ns_add_u32 s21, s21, s12\ns_mul_i32 s20, s14, 327680\ns_lshl_b32 s22, s21, 8\ns_add_u32 s20, s20, s22\ns_add_u32 s20, s20, {LY.H}")
    k(f"s_mov_b32 s6, {LY.WS_END}\ns_mov_b32 s7, 0x00020000\ns_mov_b32 s10, 2621440\ns_mov_b32 s11, 0x00020000")
    k("s_waitcnt lgkmcnt(0)")
    HB = 12; ACC = 24; WR = 44; NW = 10; AR = WR + 4 * NW
    def issue(g):
        sl = g % NS
        L = []
        L.append(f"s_add_u32 m0, s19, {sl*20480}\ns_add_u32 s24, s18, {g*20480}")
        for n in range(4): L.append(f"buffer_load_dwordx4 v4, s[4:7], s24 offen offset:{n*1024} lds")
        L.append(f"s_add_u32 m0, s19, {sl*20480+4096}\ns_add_u32 s24, s24, 4096")
        L.append(f"buffer_load_dwordx4 v4, s[4:7], s24 offen lds")
        for h in range(2):
            L.append(f"s_add_u32 s25, s16, {(4*g+2*h)*2048}")
            for q in range(2):
                L.append(f"buffer_load_dwordx4 {vr(AR+16*sl+8*h+4*q,4)}, v5, s[4:7], s25 offen offset:{q*2048}")
        L.append(f"@tag g{g}")
        return L
    k("s_and_b32 s28, s14, 1\ns_xor_b32 s29, s28, 1\ns_lshl_b32 s30, s28, 16\ns_lshl_b32 s31, s29, 18\ns_add_u32 s30, s30, s20\ns_add_u32 s31, s31, s20")
    k(f"buffer_load_dwordx4 {vr(HB,4)}, v6, s[4:7], s30 offen")
    k(f"s_add_u32 s23, s30, {4*32768}\nbuffer_load_dwordx4 {vr(HB+4,4)}, v6, s[4:7], s23 offen")
    k(f"buffer_load_dwordx2 {vr(HB+8,2)}, v7, s[4:7], s31 offen")
    DL = opt.get("dla", 2)
    for g in range(DL):
        for x in issue(g): k(x)
    k.stamp(1)
    k("v_add_u32 v8, 61440, v4\nv_add_u32 v9, 122880, v4")
    k("v_mul_u32_u24 v10, 1280, v2\nv_lshl_add_u32 v11, v3, 3, v10\nv_lshl_add_u32 v10, v3, 4, v10")
    k("s_mul_i32 s26, s21, 20480\ns_mul_i32 s27, s14, 160\ns_add_u32 s26, s26, s27\ns_lshl_b32 s28, s28, 5\ns_lshl_b32 s29, s29, 7\ns_add_u32 s27, s26, s29\ns_add_u32 s26, s26, s28")
    for n in range(5):
        for r in range(4):
            e = (4 * (n & 1) + r) if n < 4 else r
            src = HB + 4 * (n // 2) + e // 2
            k(f"v_and_b32 v{ACC+4*n+r}, 0xffff0000, v{src}" if e & 1 else f"v_lshlrev_b32 v{ACC+4*n+r}, 16, v{src}")
    wi = 0
    for g in range(12):
        sl = g % NS
        k.waitvm(f"g{g}")
        k("s_barrier")
        if g in (0, 4, 8, 11): k.stamp(2 + (0, 4, 8, 11).index(g))
        nxt = issue(g + DL) if g + DL < 12 else []
        def rd(j):
            off = sl * 20480 + j * 1024
            a = 4 if off < 61440 else (8 if off < 122880 else 9)
            off -= {4: 0, 8: 61440, 9: 122880}[a]
            return f"ds_read_b128 {vr(WR+4*((20*g+j)%NW),4)}, v{a} offset:{off}"
        LA = 8
        for j in range(LA): k(rd(j))
        for j in range(20):
            kk, n = divmod(j, 5)
            k(f"v_mfma_f32_16x16x32_bf16 {vr(ACC+4*n,4)}, {vr(WR+4*((20*g+j)%NW),4)}, {vr(AR+16*sl+4*kk,4)}, {vr(ACC+4*n,4)}")
            if j + LA < 20: k(rd(j + LA))
            if j % 2 == 1:
                while nxt:
                    x = nxt.pop(0); k(x)
                    if "buffer_load" in x: break
        for x in nxt: k(x)
    for p in range(2):
        for i in range(4):
            n = 2 * p + i // 2
            k(f"v_cvt_pk_bf16_f32 v{HB+4*p+i}, v{ACC+4*n+2*(i&1)}, v{ACC+4*n+2*(i&1)+1}")
        k(f"buffer_store_dwordx4 {vr(HB+4*p,4)}, v10, s[8:11], s26 offen offset:{64*p}")
    for i in range(2): k(f"v_cvt_pk_bf16_f32 v{HB+8+i}, v{ACC+16+2*i}, v{ACC+17+2*i}")
    k(f"buffer_store_dwordx2 {vr(HB+8,2)}, v11, s[8:11], s27 offen")
    k.end()
    k("D_end:\ns_endpgm")
    return dict(name="kD_kernel", code=k.finish(), grid=256, block=256, lds=NS * 20480, vgpr=AR + 16 * NS, agpr=0)

def bodyC(k, opt, fused=None, hooks={}):
    NP = opt.get("np", 3)
    stamp = (lambda i: k.stamp(1) if i == 3 else None) if fused else k.stamp
    k("s_load_dwordx2 s[4:5], s[0:1], 104")
    k("v_lshrrev_b32 v1, 6, v0\nv_and_b32 v0, 63, v0\nv_readfirstlane_b32 s12, v1")
    cm = opt.get("cmap", 1)
    if cm == 0:
        k("s_and_b32 s13, s2, 7\ns_lshr_b32 s14, s2, 3\ns_and_b32 s15, s14, 1\ns_lshl_b32 s13, s13, 1\ns_add_u32 s13, s13, s15\ns_lshr_b32 s14, s14, 1")
    elif cm == 1:
        k("s_and_b32 s13, s2, 6\ns_lshr_b32 s14, s2, 3\ns_and_b32 s15, s14, 3\ns_lshl_b32 s13, s13, 1\ns_add_u32 s13, s13, s15\ns_lshr_b32 s14, s14, 2\ns_and_b32 s15, s2, 1\ns_lshl_b32 s15, s15, 3\ns_add_u32 s14, s14, s15")
    else:
        k("s_and_b32 s13, s2, 4\ns_lshr_b32 s14, s2, 3\ns_and_b32 s15, s14, 7\ns_lshl_b32 s13, s13, 1\ns_add_u32 s13, s13, s15\ns_lshr_b32 s14, s14, 3\ns_and_b32 s15, s2, 3\ns_lshl_b32 s15, s15, 2\ns_add_u32 s14, s14, s15")
    k("v_lshlrev_b32 v4, 4, v0")
    k("v_and_b32 v2, 31, v0\nv_lshrrev_b32 v3, 5, v0\nv_lshlrev_b32 v5, 15, v3\nv_lshl_add_u32 v5, v2, 4, v5")
    k(f"s_lshl_b32 s21, s13, 2\ns_add_u32 s21, s21, s12\ns_lshl_b32 s16, s21, 9\ns_add_u32 s16, s16, {LY.H}")
    k(f"s_mul_i32 s17, s14, {6*41984}\ns_add_u32 s17, s17, {LY.W1P}")
    k(f"s_lshl_b32 s19, s12, 10\ns_add_u32 s18, s17, s19")
    k(f"s_lshl_b32 s20, s12, 11\nv_add_u32 v1, s19, v4")
    ROT = opt.get("rot", 0)
    if ROT: k("s_and_b32 s38, s13, 3\ns_and_b32 s39, s14, 7\ns_add_u32 s38, s38, s39\ns_mul_i32 s39, s38, 52\ns_lshr_b32 s39, s39, 8\ns_mul_i32 s39, s39, 5\ns_sub_u32 s38, s38, s39")
    else: k("s_mov_b32 s38, 0")
    def rotc(c):
        o = "" if c == 0 else "s_add_u32 s38, s38, 1\ns_cmp_eq_u32 s38, 5\ns_cselect_b32 s38, 0, s38\n"
        return o + f"s_lshl_b32 s39, s38, 19\ns_add_u32 s{40+c}, s16, s39\ns_lshl_b32 s39, s38, 13\ns_add_u32 s{46+c}, s18, s39"
    k(rotc(0))
    k(f"s_mov_b32 s6, {LY.WS_END}\ns_mov_b32 s7, 0x00020000")
    k("s_waitcnt lgkmcnt(0)")
    HF = 96; ACCS = [8, 24, 40, 56]; T = 72
    CS = 0; WR = 24; NW = 12
    hsc = " sc1" if opt.get("hsc") else ""
    def issue1(g):
        L = []
        hl = lambda q: f"s_add_u32 s25, s{40+g//2}, {(4*(g&1)+q)*65536}\nbuffer_load_dwordx4 {vr(HF+4*(4*g+q),4)}, v5, s[4:7], s25 offen{hsc}"
        for t in range(NP): L.append(f"s_add_u32 m0, s19, {t*40960+g*4096}\ns_add_u32 s24, s{46+g//2}, {t*41984+(g&1)*4096}\nbuffer_load_dwordx4 v4, s[4:7], s24 offen lds")
        L.append(f"@tag g{g}")
        for q in range(4): L.append(hl(q))
        return L
    def issueT(t, c):
        L = [f"@need {t-4} {c}"] if t >= 4 else []
        L.append(f"s_add_u32 m0, s20, {(t%4)*40960+c*8192}\ns_add_u32 s24, s{46+c}, {t*41984}\nbuffer_load_dwordx4 v1, s[4:7], s24 offen lds")
        L.append(f"buffer_load_dwordx4 v1, s[4:7], s24 offen offset:1024 lds")
        L.append(f"@tag t{t}c{c}")
        return L
    CL = opt.get("cla", 2)
    for g in range(CL):
        if g == 2: k(rotc(1))
        for x in issue1(g): k(x)
    for c in range(1 if CL <= 2 else 2, 5): k(rotc(c))
    pend = []
    ex = fused(k) if fused else []
    WP = opt.get("wp1", 1) if fused else 0
    for g in range(CL, 10):
        pend += issue1(g)
        for _ in range(WP): pend.append(ex.pop(0))
    csl = lambda t: f"s_add_u32 s24, s17, {t*41984+40960}\nbuffer_load_dwordx4 {vr(CS+4*t,4,'a')}, v4, s[4:7], s24 offen"
    for t in range(NP, 6):
        for c in range(5):
            pend += issueT(t, c)
            if t == NP and c == 1: pend += [csl(tt) for tt in range(NP)]
        pend.append(csl(t))
    pend += ex
    stamp(1)
    k("v_add_u32 v6, 61440, v4\nv_add_u32 v7, 122880, v4")
    S1, S2 = T, T + 1
    k(f"v_mov_b32 v{S1}, 0\nv_mov_b32 v{S2}, 0\nv_mov_b32 v{T+2}, 0\nv_mov_b32 v{T+3}, 0\ns_mov_b32 s30, 0x3f803f80")
    cnt = [0]; done = {}; safe = set(); corr_done = []
    def pop1():
        n = 0
        while pend:
            if pend[0] == "@needc":
                if not corr_done: return n
                pend.pop(0); continue
            if pend[0].startswith("@need"):
                _, t, c = pend[0].split()
                if not all((int(t), ks) in safe for ks in range(8 * int(c), 8 * int(c) + 8)): return n
                pend.pop(0); continue
            x = pend.pop(0); k(x); n += len(x.split("\n"))
            if "buffer_load" in x: break
        while pend and pend[0].startswith("@tag"): k(pend.pop(0))
        return n
    def rd(t, ks):
        off = (t % 4) * 40960 + ks * 1024
        a = 4 if off < 61440 else (6 if off < 122880 else 7)
        off -= {4: 0, 6: 61440, 7: 122880}[a]
        r = WR + 4 * (cnt[0] % NW); cnt[0] += 1
        return f"ds_read_b128 {vr(r,4,'a')}, v{a} offset:{off}", r
    def mf(acc, a, b, first):
        return f"v_mfma_f32_32x32x16_bf16 {vr(acc,16)}, {vr(a,4,'a')}, {vr(b,4)}, {'0' if first else vr(acc,16)}"
    MB = T + 4; C0 = T + 8; C1 = T + 9; Q = T + 10; X = T + 12; O = T + 20
    st = []
    st.append(f"v_add_f32 v{S1}, v{S1}, v{S1+2}\nv_add_f32 v{S2}, v{S2}, v{S2+2}")
    st.append(f"v_mov_b32 v{S1+2}, v{S1}\nv_mov_b32 v{S2+2}, v{S2}")
    st.append(f"s_mul_i32 s26, s21, 96\ns_mul_i32 s27, s14, 6")
    st.append(f"v_permlane32_swap_b32 v{S1}, v{S1+2}\nv_permlane32_swap_b32 v{S2}, v{S2+2}")
    st.append(f"v_add_f32 v{S1}, v{S1}, v{S1+2}\nv_add_f32 v{S2}, v{S2}, v{S2+2}")
    st.append(f"v_mul_f32 v{S1}, {fbits(-1/640)}, v{S1}\nv_mul_f32 v{S2}, {fbits(1/640)}, v{S2}")
    st.append(f"v_cvt_pk_bf16_f32 v{MB}, v{S1}, v{S1}\nv_fma_f32 v{S2}, -v{S1}, v{S1}, v{S2}")
    st.append(f"v_mov_b32 v{MB+1}, v{MB}\nv_mov_b32 v{MB+2}, v{MB}\nv_mov_b32 v{MB+3}, v{MB}\nv_max_f32 v{S2}, 0, v{S2}")
    st.append(f"v_cvt_pk_bf16_f32 v{S2}, v{S2}, v{S2}\n@corr\nv_and_b32 v{S2}, 0xffff0000, v{S2}\nv_add_f32 v{S2}, {fbits(1e-5)}, v{S2}")
    st.append(f"v_cvt_pk_bf16_f32 v{S2}, v{S2}, v{S2}\nv_and_b32 v{S2}, 0xffff0000, v{S2}\nv_sqrt_f32 v{S2}, v{S2}\ns_add_u32 s26, s26, s27")
    st.append(f"v_cvt_pk_bf16_f32 v{S2}, v{S2}, v{S2}\nv_and_b32 v{S2}, 0xffff0000, v{S2}")
    K0 = -2 * math.sqrt(2 / math.pi) * math.log2(math.e)
    st.append(f"v_rcp_f32 v{S1}, v{S2}\nv_mul_f32 v{Q}, v{S2}, v{S2}")
    st.append(f"v_mul_f32 v{C0}, {fbits(K0)}, v{S1}\nv_mul_f32 v{C1}, v{S1}, v{S1}\nv_mul_f32 v{C1}, {fbits(0.044715)}, v{C1}\nv_mul_f32 v{C1}, v{C1}, v{C0}")
    st.append(f"s_lshl_b32 s26, s26, 10\ns_add_u32 s26, s26, {LY.ACT}\ns_add_u32 s27, s26, 4096")
    accof = lambda t: ACCS[t % (NP + 1)]
    sca = {0: "", 1: " sc1", 2: " nt", 3: " sc0"}[opt.get("sca", 1)]
    def epi(t):
        a = accof(t)
        L = []
        for half in range(2):
            vs = range(4 * half, 4 * half + 4)
            x = lambda i: X + (i & 3)
            y = lambda i: X + 4 + (i & 3)
            for i in vs: L.append(f"v_mul_f32 v{x(i)}, v{a+i}, v{a+i}")
            for i in vs: L.append(f"v_fma_f32 v{x(i)}, v{x(i)}, v{C1}, v{C0}")
            for i in vs: L.append(f"v_mul_f32 v{x(i)}, v{x(i)}, v{a+i}")
            for i in vs: L.append(f"v_exp_f32 v{x(i)}, v{x(i)}")
            for i in vs: L.append(f"v_mul_f32 v{y(i)}, v{a+i}, v{a+8+i}")
            for i in vs: L.append(f"v_fma_f32 v{x(i)}, v{x(i)}, v{Q}, v{Q}")
            for i in vs: L.append(f"v_rcp_f32 v{x(i)}, v{x(i)}")
            for i in vs: L.append(f"v_mul_f32 v{y(i)}, v{y(i)}, v{x(i)}")
            for i in range(2): L.append(f"v_cvt_pk_bf16_f32 v{O+2*half+i}, v{y(2*i)}, v{y(2*i+1)}")
        L.append(f"buffer_store_dwordx4 {vr(O,4)}, v4, s[4:7], s{26+t//4} offen offset:{(t%4)*1024}{sca}")
        L.append(f"@tag a{t}")
        return [e + f"#e{t}" for e in L]
    def epi_pk(t):
        a = accof(t); x = accof(t - 2); y = x + 8
        k(f"v_mov_b32 v{T}, v{C1}\nv_mov_b32 v{T+2}, v{Q}")
        P = range(0, 8, 2)
        for i in P: k(f"v_pk_mul_f32 {vr(x+i,2)}, {vr(a+i,2)}, {vr(a+i,2)}")
        for i in P: k(f"v_pk_fma_f32 {vr(x+i,2)}, {vr(x+i,2)}, {vr(T,2)}, {vr(C0,2)} op_sel_hi:[1,0,0]")
        for i in P: k(f"v_pk_mul_f32 {vr(x+i,2)}, {vr(x+i,2)}, {vr(a+i,2)}")
        for i in range(8): k(f"v_exp_f32 v{x+i}, v{x+i}")
        for i in P: k(f"v_pk_mul_f32 {vr(y+i,2)}, {vr(a+i,2)}, {vr(a+8+i,2)}")
        for i in P: k(f"v_pk_fma_f32 {vr(x+i,2)}, {vr(x+i,2)}, {vr(T+2,2)}, {vr(T+2,2)} op_sel_hi:[1,0,0]")
        for i in range(8): k(f"v_rcp_f32 v{x+i}, v{x+i}")
        for i in P: k(f"v_pk_mul_f32 {vr(y+i,2)}, {vr(y+i,2)}, {vr(x+i,2)}")
        for i in range(4): k(f"v_cvt_pk_bf16_f32 v{x+i}, v{y+2*i}, v{y+2*i+1}")
        k(f"buffer_store_dwordx4 {vr(x,4)}, v4, s[4:7], s{26+t//4} offen offset:{(t%4)*1024}{sca}")
    cost = lambda s: 2 if s.startswith(("v_exp", "v_rcp", "v_sqrt")) else (0 if s[0] == "@" else 1)
    fill = []
    LA = opt.get("cl2", 6)
    seq = [(t, ks) for ks in range(40) for t in range(NP)] + [(t, ks) for t in range(NP, 6) for ks in range(40)]
    n1 = 40 * NP
    waits = {(0, 4 * g): f"g{g}" for g in range(10)}
    waits.update({(NP, 0): f"t{NP}c0", (NP, 8): f"t{NP}c1", (NP, 16): f"t{NP}c2", (NP, 24): f"t{NP}c4"})
    for t in range(NP + 1, 6): waits.update({(t, 0): f"t{t}c1", (t, 16): f"t{t}c4"})
    regs = {}
    def do_rd(i):
        t, ks = seq[i]; n = 1
        if (t, ks) in waits:
            h = hooks.get(("bar", t, ks))
            if h: k.waitvm(h[0])
            k.waitvm(waits[(t, ks)]); k("s_barrier"); n += 2
            if h: k(h[1]); n += 3
            safe.update(done)
            if (t, ks) == (0, 0): stamp(2)
        s, r = rd(t, ks); regs[i] = r; k(s)
        return n
    def dots(g):
        for q in range(16):
            h = HF + 16 * g + q
            if not opt.get("nod"):
                k(f"v_dot2c_f32_bf16 v{S1+2*(q&1)}, s30, v{h}")
                k(f"v_dot2c_f32_bf16 v{S2+2*(q&1)}, v{h}, v{h}")
            if q in (3, 11): pop1()
    for i in range(LA): do_rd(i)
    npop = NP + 2
    BUD = opt.get("bud", 6)
    for i, (t, ks) in enumerate(seq):
        acc = accof(t)
        if ks == 0 and t >= NP:
            while any(f"#e{t-NP-1}" in f for f in fill): k(fill.pop(0).split("#")[0])
            if t in (NP, NP + 1, 5): stamp({NP: 3, NP + 1: 4, 5: 5}[t])
        k(mf(acc, regs[i], HF + 4 * ks, ks == 0))
        done[(t, ks)] = 1
        budget = BUD
        if ("op", i) in hooks: k(hooks[("op", i)]); budget -= 1
        if i + LA < len(seq): budget -= do_rd(i + LA)
        if i < n1:
            j = i % (4 * NP)
            npop = NP + 2 + (WP if i // (4 * NP) < 10 - CL else 0)
            if (j * npop) // (4 * NP) != ((j + 1) * npop) // (4 * NP): pop1()
            if j == 4 * NP - 1:
                dots(i // (4 * NP))
                if i == n1 - 1:
                    for s in st: fill += s.split("\n")
            continue
        if (i % (2 if i < opt.get("pop2", 999) else opt.get("popn", 3)) == 0) and i < opt.get("popend", 232): budget -= pop1()
        while fill and budget > 0:
            f = fill.pop(0)
            if f == "@corr":
                for tt in range(NP): k(mf(accof(tt), CS + 4 * tt, MB, False))
                for tt in range(NP): fill += epi(tt)
                corr_done.append(1)
                budget = BUD; continue
            k(f.split("#")[0]); budget -= cost(f)
        if ks == 39:
            k(mf(acc, CS + 4 * t, MB, False))
            if t < 5: fill += epi(t)
    print("C: exposed fillers", len(fill), "pend", len(pend))
    for f in fill: k(f.split("#")[0])
    epi_pk(5)
    if fused: return pend
    while pend: pop1()
    return WR + 4 * NW

def kE(opt):
    k = K()
    k("s_cmp_ge_u32 s2, 256\ns_cbranch_scc1 E_end")
    k.st_init(opt.get("st"), 2)
    k("s_load_dwordx2 s[8:9], s[0:1], 88")
    POS = [(u, j, n) for u in (0, 1) for j in range(3) for n in range(5)] + [(u, j, n) for j in range(3) for u in (2, 3) for n in range(5)]
    wreg = {x: (72 + 4 * i if i < 46 else 16 + 4 * (i - 46)) for i, x in enumerate(POS)}
    WL = []; cur = None
    for (u, j, n) in POS:
        off = (5 * j + n) * 1024; o = ""
        if cur is None or cur[0] != u or not (0 <= off - cur[1] < 4096):
            cur = (u, off); o = f"s_add_u32 s51, s{70+u}, {off}\n"
        WL.append(o + f"buffer_load_dwordx4 {vr(wreg[(u,j,n)],4,'a')}, v4, s[4:7], s51 offen offset:{off-cur[1]}")
    F = lambda i: 96 + 4 * i
    def flag(val, nm):
        r = 83 if val == 1 else 2
        return f"s_cmp_lg_u32 s12, 0\ns_cbranch_scc1 {nm}\n!v_mov_b32 v{r}, {val}\n!s_mov_b64 exec, 1\n!buffer_store_dword v{r}, off, s[4:7], s65 sc1\n!s_mov_b64 exec, -1\n{nm}:"
    def extra(k):
        if opt.get("dm", 1): k("s_lshr_b32 s53, s14, 3\ns_lshl_b32 s53, s53, 2\ns_and_b32 s54, s14, 3\ns_add_u32 s53, s53, s54\ns_bfe_u32 s54, s14, 0x10002")
        else: k("s_and_b32 s53, s14, 7\ns_lshr_b32 s54, s14, 3")
        k(f"s_lshl_b32 s55, s13, 1\ns_add_u32 s54, s54, s55\ns_mul_i32 s52, s53, 245760\ns_mul_i32 s55, s12, 61440\ns_add_u32 s52, s52, s55\ns_add_u32 s52, s52, {LY.WDP}")
        for u in range(4):
            k(f"s_lshl_b32 s55, s13, 1\ns_add_u32 s55, s55, {u}\ns_and_b32 s55, s55, 3" if opt.get("wrot", 2) else f"s_mov_b32 s55, {u}")
            k(f"s_mul_i32 s{74+u}, s55, 6144\ns_mul_i32 s55, s55, 15360\ns_add_u32 s{70+u}, s52, s55")
        k(f"s_lshl_b32 s64, s13, 9\ns_add_u32 s64, s64, {LY.FLG}\ns_lshr_b32 s65, s14, 2\ns_lshl_b32 s65, s65, 7\ns_and_b32 s66, s14, 3\ns_lshl_b32 s66, s66, 2\ns_add_u32 s65, s65, s66\ns_add_u32 s65, s65, s64\ns_lshl_b32 s66, s12, 7\ns_add_u32 s64, s64, s66\ns_mov_b32 s67, 0")
        k({0: "s_mov_b32 s69, s12", 1: "s_add_u32 s69, s12, s53\ns_and_b32 s69, s69, 3", 2: "s_lshl_b32 s69, s53, 1\ns_add_u32 s69, s12, s69\ns_and_b32 s69, s69, 3"}[opt.get("arot", 0)])
        k(f"s_mul_i32 s60, s54, {2*98304}\ns_mul_i32 s61, s12, 24576\ns_add_u32 s60, s60, s61\ns_add_u32 s60, s60, {LY.ACT}")
        for j in range(4):
            k(f"s_add_u32 s61, s69, {j}\ns_and_b32 s61, s61, 3\ns_lshr_b32 s62, s61, 1\ns_mul_i32 s62, s62, 98304\ns_and_b32 s63, s61, 1\ns_lshl_b32 s63, s63, 8\ns_add_u32 s62, s62, s63\ns_add_u32 s{56+j}, s60, s62")
            k(f"s_mul_i32 s61, s61, 15360\ns_add_u32 s{32+j}, s61, {max(j-1,0)*5120}")
        k(f"s_lshl_b32 s60, s54, 2\ns_add_u32 s60, s60, s69\ns_mul_i32 s61, s53, 327680\ns_lshl_b32 s22, s60, 8\ns_add_u32 s61, s61, s22\ns_add_u32 s61, s61, {LY.H}")
        k(f"s_and_b32 s28, s53, 1\ns_xor_b32 s29, s28, 1\ns_lshl_b32 s36, s28, 16\ns_lshl_b32 s31, s29, 18\ns_add_u32 s36, s36, s61\ns_add_u32 s31, s31, s61\ns_add_u32 s37, s36, {4*32768}")
        k("s_mul_i32 s62, s60, 20480\ns_mul_i32 s63, s53, 160\ns_add_u32 s62, s62, s63\ns_lshl_b32 s28, s28, 5\ns_lshl_b32 s29, s29, 7\ns_add_u32 s63, s62, s29\ns_add_u32 s62, s62, s28")
        k(f"s_mov_b32 s10, 2621440\ns_mov_b32 s11, 0x00020000")
        HL = ["@needc", "v_and_b32 v2, 15, v0\nv_lshrrev_b32 v3, 4, v0\nv_lshlrev_b32 v5, 15, v3\nv_lshl_add_u32 v5, v2, 4, v5\nbuffer_load_dwordx4 a[0:3], v5, s[4:7], s36 offen",
              "buffer_load_dwordx4 a[4:7], v5, s[4:7], s37 offen",
              "v_lshrrev_b32 v5, 1, v3\nv_lshlrev_b32 v5, 15, v5\nv_lshl_add_u32 v5, v2, 4, v5\nv_and_b32 v1, 1, v3\nv_lshl_add_u32 v5, v1, 3, v5\nbuffer_load_dwordx2 a[8:9], v5, s[4:7], s31 offen",
              "v_lshlrev_b32 v5, 9, v3\nv_lshl_add_u32 v5, v2, 4, v5\nv_add_u32 v1, 4096, v5"]
        return WL[:20] + HL + WL[20:46]
    P1 = F(16); P2 = 92
    hooks = {("bar", 5, 16): ("a1", flag(1, "E_f1")), ("op", opt.get("p1at", 232)): f"buffer_load_dwordx4 {vr(P1,4)}, off, s[4:7], s64 sc1"}
    pend = bodyC(k, opt, extra, hooks)
    k.tag("fin")
    print("E: W loads left after C:", len(pend))
    k.stamp(2)
    tail = []
    def check(r, bit, nm):
        k(f"v_and_b32 v{r}, v{r}, v{r+1}\nv_and_b32 v{r+2}, v{r+2}, v{r+3}\nv_and_b32 v{r}, v{r}, v{r+2}\nv_readfirstlane_b32 s66, v{r}\ns_bitcmp0_b32 s66, {bit}\ns_cbranch_scc1 {nm}_retry\n{nm}_ok:")
        tail.append(f"{nm}_retry:\n!buffer_load_dwordx4 {vr(r,4)}, off, s[4:7], s64 sc1\n!s_add_u32 s67, s67, 1\n!s_waitcnt vmcnt(0)\n!v_and_b32 v{r}, v{r}, v{r+1}\n!v_and_b32 v{r+2}, v{r+2}, v{r+3}\n!v_and_b32 v{r}, v{r}, v{r+2}\n!s_nop 1\n!v_readfirstlane_b32 s66, v{r}\n"
                    f"!s_cmp_gt_u32 s67, 0xffff\n!s_cbranch_scc1 {nm}_ok\n!s_bitcmp0_b32 s66, {bit}\n!s_cbranch_scc1 {nm}_retry\n!s_branch {nm}_ok")
    check(P1, 0, "E_p1")
    order = [1, 2, 3, 0]
    ACC = lambda p: 8 + 20 * p
    def ald(reg, p, u, j, first):
        o = f"s_add_u32 s25, s{56+order[p]}, s{74+u}\n" if first else ""
        return o + f"buffer_load_dwordx4 {vr(reg,4)}, v{1 if j==2 else 5}, s[4:7], s25 offen offset:{2048 if j==1 else 0} sc1"
    nj = max(0, len(pend) - 6)
    assert nj <= opt.get("e1", 8)
    q = pend[:nj] + [ald(F(4*p+u), p, u, 0, True) for p in range(4) for u in range(4)] + pend[nj:] + WL[46:]
    q.insert(len(q) - opt.get("p2b", 12), f"buffer_load_dwordx4 {vr(P2,4)}, off, s[4:7], s64 sc1")
    for _ in range(opt.get("e1", 8)): k(q.pop(0))
    for j in range(4): k(f"v_add_u32 v{88+(j+3)%4}, s{32+j}, v4")
    k("v_and_b32 v2, 15, v0\nv_mul_u32_u24 v6, 1280, v2\nv_lshl_add_u32 v7, v3, 3, v6\nv_lshl_add_u32 v6, v3, 4, v6")
    A = ACC(3)
    for i in range(10): k(f"v_accvgpr_read_b32 v{8+i}, a{i}")
    for n in range(5):
        for r in range(4):
            e = (4 * (n & 1) + r) if n < 4 else r
            src = 8 + 4 * (n // 2) + e // 2
            k(f"v_and_b32 v{A+4*n+r}, 0xffff0000, v{src}" if e & 1 else f"v_lshlrev_b32 v{A+4*n+r}, 16, v{src}")
    k.waitvm("fin"); k("s_barrier")
    k(flag(3, "E_f2"))
    k.stamp(3)
    for _ in range(opt.get("e2", 4)): k(q.pop(0))
    mf = lambda p, u, j, n, reg, z: f"v_mfma_f32_16x16x32_bf16 {vr(ACC(p)+4*n,4)}, {vr(wreg[(u,j,n)],4,'a')}, {vr(reg,4)}, {'0' if z else vr(ACC(p)+4*n,4)}"
    i = 0; EV = opt.get("ev1", 4)
    for p in range(4):
        for u in range(4):
            for n in range(5):
                k(mf(p, u, 0, n, F(4*p+u), u == 0 and p < 3))
                i += 1
                if i % EV == 0 and q: k(q.pop(0))
    for x in q: k(x)
    k.stamp(4)
    check(P2, 1, "E_p2")
    k.stamp(5)
    areg = lambda p, x: F((16 + 8 * p + x) % 40)
    al = [ald(areg(p, 2*u+j-1), p, u, j, j == 1) for p in range(4) for u in range(4) for j in (1, 2)]
    for _ in range(opt.get("ela", 12)): k(al.pop(0))
    fill = []; EV = opt.get("eev", 5); R = F(16)
    for p in range(4):
        i = 0
        for u in range(4):
            for j in (1, 2):
                for n in range(5):
                    k(mf(p, u, j, n, areg(p, 2*u+j-1), False))
                    if al and i % EV == EV - 1: k(al.pop(0))
                    elif i >= 2:
                        for _ in range(2):
                            if fill: k(fill.pop(0))
                    if p == 3 and i == opt.get("ebar", 10):
                        assert not fill
                        k("s_waitcnt lgkmcnt(0)\ns_barrier")
                        fill += [f"ds_read_b128 {vr(R+4*x,4)}, v91 offset:{1024*x}" for x in range(15)]
                        fill += [f"v_add_f32 v{R+x}, v{R+x}, v{R+20+x}" for x in range(20)] + [f"v_add_f32 v{R+x}, v{R+x}, v{R+40+x}" for x in range(20)]
                    i += 1
        if p < 3: fill += [f"ds_write_b128 v{88+p}, {vr(ACC(p)+4*n,4)} offset:{1024*n}" for n in range(5)]
    for f in fill: k(f)
    HB = 8
    for x in range(0, 20, 2): k(f"v_pk_add_f32 {vr(A+x,2)}, {vr(A+x,2)}, {vr(R+x,2)}")
    for p in range(2):
        for i in range(4):
            n = 2 * p + i // 2
            k(f"v_cvt_pk_bf16_f32 v{HB+4*p+i}, v{A+4*n+2*(i&1)}, v{A+4*n+2*(i&1)+1}")
        k(f"buffer_store_dwordx4 {vr(HB+4*p,4)}, v6, s[8:11], s62 offen offset:{64*p}")
    for i in range(2): k(f"v_cvt_pk_bf16_f32 v{HB+8+i}, v{A+16+2*i}, v{A+17+2*i}")
    k(f"buffer_store_dwordx2 {vr(HB+8,2)}, v7, s[8:11], s63 offen")
    k.end()
    for t in tail: k(t)
    k("E_end:\ns_endpgm")
    return dict(name="kC_kernel", code=k.finish(), grid=256, block=256, lds=163840, vgpr=256, agpr=256)

def kC(opt):
    k = K()
    k("s_cmp_ge_u32 s2, 256\ns_cbranch_scc1 C_end")
    k.st_init(opt.get("st"), 2)
    na = bodyC(k, opt)
    k.end()
    k("C_end:\ns_endpgm")
    return dict(name="kC_kernel", code=k.finish(), grid=256, block=256, lds=163840, vgpr=256, agpr=na)

def kM(opt):
    k = K()
    k("s_cmp_ge_u32 s2, 256\ns_cbranch_scc1 M_end")
    k.st_init(opt.get("st"), 2)
    k("s_load_dwordx2 s[4:5], s[0:1], 104\ns_load_dwordx2 s[8:9], s[0:1], 64")
    k(f"s_mov_b32 s6, {LY.WS_END}\ns_mov_b32 s7, 0x00020000\ns_mov_b32 s10, {0 if opt.get('zero') else 1966080}\ns_mov_b32 s11, 0x00020000")
    k("v_lshlrev_b32 v4, 4, v0\ns_waitcnt lgkmcnt(0)")
    for i in range(32): k(f"s_mov_b32 s12, {4096*i}\nbuffer_load_dwordx4 {vr(96+4*i,4)}, v4, s[8:11], s12 offen")
    k("s_waitcnt vmcnt(0)\ns_barrier")
    for i in range(64): k(f"v_mov_b32 v{8+i}, 0")
    af = "a" if opt.get("ag") else "v"
    if opt.get("ag"):
        for i in range(96, 224): k(f"v_accvgpr_write_b32 a{i}, v{i}")
    nch = opt.get("nch", 1); big = opt.get("big", 1)
    for ph in range(5):
        k.stamp(1 + ph)
        for i in range(64 if big else 128):
            a = 96 + 4 * ((7 * i) % 32); b = 96 + 4 * ((5 * i + 3) % 32)
            if big: c = vr(8 + 16 * (i % nch), 16); k(f"v_mfma_f32_32x32x16_bf16 {c}, {vr(a,4,af)}, {vr(b,4)}, {c}"); [k(f"v_mul_f32 v{72+j}, v{80+j}, v{80+j}") for j in range(opt.get("fill", 0))]; [k(f"v_dot2c_f32_bf16 v{72+j}, v{100+j+i}, v{100+j+i}") for j in range(opt.get("dot", 0))]; [k(f"v_dot2_f32_bf16 v{72+j}, v{100+j+i}, v{100+j+i}, v{72+j}") for j in range(opt.get("dot3", 0))]; [k(f"v_pk_fma_f32 v[{72+2*j}:{73+2*j}], v[{100+2*j+2*(i%8)}:{101+2*j+2*(i%8)}], v[{100+2*j}:{101+2*j}], v[{72+2*j}:{73+2*j}]") for j in range(opt.get("pk", 0))]; opt.get("dsr") and k(f"ds_read_b128 {vr(224+4*(i%4),4,af)}, v4")
            else: c = vr(8 + 4 * (i % nch), 4); k(f"v_mfma_f32_16x16x32_bf16 {c}, {vr(a,4)}, {vr(b,4)}, {c}")
    k.end()
    k("M_end:\ns_endpgm")
    return dict(name="kC_kernel", code=k.finish(), grid=256, block=opt.get("blk", 256), lds=8192, vgpr=256, agpr=256)

def kP(opt):
    k = K()
    k("s_cmp_ge_u32 s2, 256\ns_cbranch_scc1 P_end")
    k.st_init(opt.get("st"), 3)
    k("s_load_dwordx2 s[4:5], s[0:1], 104")
    k("v_lshrrev_b32 v1, 6, v0\nv_and_b32 v0, 63, v0\nv_readfirstlane_b32 s12, v1\nv_lshlrev_b32 v4, 4, v0")
    k(f"s_mov_b32 s6, {LY.WS_END}\ns_mov_b32 s7, 0x00020000")
    k(f"s_lshr_b32 s53, s2, 3\ns_and_b32 s53, s53, {opt.get('msk', 7)}\ns_and_b32 s55, s2, {1 if opt.get('msk', 7) == 3 else 0}\ns_lshl_b32 s55, s55, 2\ns_add_u32 s53, s53, s55\ns_mul_i32 s52, s53, 245760\ns_mul_i32 s55, s12, {245760//opt.get('nw',4)}\ns_add_u32 s52, s52, s55\ns_add_u32 s52, s52, {LY.WDP}\ns_waitcnt lgkmcnt(0)")
    k("s_lshl_b32 s19, s12, 13")
    md = {0: "", 1: " sc1", 2: " nt", 3: " sc0"}[opt.get("md", 0)]
    for rep in range(2):
        if opt.get("xs"): k(f"s_add_u32 s53, s2, {rep}\ns_and_b32 s53, s53, 7\ns_mul_i32 s52, s53, 245760\ns_add_u32 s52, s52, s55\ns_add_u32 s52, s52, {LY.WDP if opt.get('xs')==1 else LY.ACT}")
        k.stamp(1 + 2 * rep)
        for i in range(240 // opt.get('nw', 4)):
            T = opt.get("tch", 0)
            if T:
                sh = 32 // (opt.get('msk', 7) + 1); lines = 480 // T // sh
                if i == 0 and rep == 0: k(f"s_lshr_b32 s20, s2, {6 if sh == 4 else 5}\ns_lshl_b32 s20, s20, 7\nv_mul_u32_u24 v5, {128*sh}, v0\nv_add_u32 v5, s20, v5\nv_min_u32 v5, {61440//T-128}, v5")
                for t in range(T):
                    if max(0, t * 60 // T - opt.get("tah", 16)) + (opt.get("tof", 0) if t * 60 // T <= opt.get("tah", 16) else 0) == i and not (t == 0 and opt.get("tsk")): k(f"s_add_u32 s21, s52, {t*61440//T}\ns_mov_b64 exec, {hex((1<<lines)-1) if lines < 64 else -1}\nbuffer_load_dword v{250+t%4}, v5, s[4:7], s21 offen\ns_mov_b64 exec, -1")
            if i % 4 == 0: k(f"s_add_u32 s51, s52, {i*1024}\ns_add_u32 m0, s19, {(i%8)*1024}")
            if opt.get("dma") and i % opt.get("dma") == 0: k(f"buffer_load_dwordx4 v4, s[4:7], s51 offen offset:{(i%4)*1024} lds{md}")
            else: k(f"buffer_load_dwordx4 {vr(8+4*(i%60),4)}, v4, s[4:7], s51 offen offset:{(i%4)*1024}{md}")
        k.stamp(2 + 2 * rep)
        k("s_waitcnt vmcnt(0)\ns_barrier")
    k.end()
    k("P_end:\ns_endpgm")
    return dict(name="kD_kernel", code=k.finish(), grid=256, block=64*opt.get('nw',4), lds=131072, vgpr=256 if opt.get('nw',4)<=8 else 128, agpr=0)
```

```python
from asmlib import K, vr
import layout as LY
import math
from gen_cd import fbits
from gen_ab import mksrd, LOG2E
BIG = 0x7000000

def kgen(k, opt, PBASE, early, mid):
    RS = 288; PB = 16 * RS; WB = 2 * PB
    k("s_load_dwordx8 s[8:15], s[0:1], 8\ns_load_dwordx4 s[16:19], s[0:1], 40")
    k(f"s_mul_i32 s20, s2, 384\nv_lshlrev_b32 v3, 1, v0\nv_add_u32 v3, s20, v3\ns_lshl_b32 s21, s2, 1\nv_mov_b32 v4, s21")
    k("s_getpc_b64 s[22:23]\nA_pc1:\ns_add_u32 s22, s22, A_tab-A_pc1\ns_addc_u32 s23, s23, 0\nv_lshlrev_b32 v5, 4, v0")
    k("s_waitcnt lgkmcnt(0)")
    k("global_load_ushort v10, v4, s[16:17]\nglobal_load_ushort v6, v3, s[8:9]\nglobal_load_ushort v7, v3, s[10:11]\nglobal_load_ushort v8, v3, s[12:13]\nglobal_load_ushort v9, v3, s[14:15]\nglobal_load_ushort v11, v4, s[18:19]")
    k("global_load_dwordx4 v[12:15], v5, s[22:23]")
    early()
    k(f"s_mul_i32 s27, s26, {3*WB}\ns_add_u32 s27, s27, {PBASE}\ns_mul_i32 s24, s3, {WB}\ns_add_u32 s24, s24, s27\ns_mul_i32 s28, s26, 1600\ns_mul_i32 s29, s28, 0x10001")
    k(f"v_lshl_add_u32 v16, v2, 2, s24\nv_and_b32 v17, 15, v2\nv_mul_u32_u24 v17, {RS}, v17\nv_lshrrev_b32 v18, 4, v2\nv_lshl_add_u32 v17, v18, 4, v17\nv_add_u32 v17, s24, v17")
    k(f"v_mov_b32 v18, 0x3f80\nds_write_b32 v16, v18 offset:{PB}\nv_mov_b32 v18, 0\nv_mov_b32 v19, s28\nds_write_b32 v19, v18 offset:1536")
    k(f"s_mul_i32 s25, s2, 3072\ns_add_u32 s25, s25, {LY.KP}")
    k(f"v_lshlrev_b32 v10, 16, v10\nv_lshlrev_b32 v6, 16, v6\nv_mul_f32 v10, {fbits(LOG2E)}, v10\nv_mul_f32 v6, {fbits(LOG2E)}, v6\nv_exp_f32 v10, v10\nv_exp_f32 v6, v6")
    k("v_lshlrev_b32 v7, 16, v7\nv_cvt_pk_bf16_f32 v6, v6, v10\nv_and_b32 v10, 0xffff0000, v6\nv_lshlrev_b32 v6, 16, v6")
    k(f"v_mul_f32 v6, v6, v10\nv_mul_f32 v7, v7, v10\nv_mul_f32 v6, {fbits(-LOG2E)}, v6\nv_mul_f32 v7, 0.15915494, v7")
    k(f"v_mul_f32 v18, 0x43000000, v6\nv_mul_f32 v19, 0x43000000, v7\nv_fract_f32 v7, v7\nv_fract_f32 v19, v19")
    k.stamp(1)
    W = {n: 20 + 2 * i for i, n in enumerate((1, 2, 4, 8, 3, 5, 6, 7))}
    G = {m: 36 + 2 * (m - 1) for m in range(1, 8)}
    k(f"v_exp_f32 v6, v6\nv_exp_f32 v18, v18\nv_cos_f32 v{W[1]}, v7\nv_sin_f32 v{W[1]+1}, v7\nv_cos_f32 v{G[1]}, v19\nv_sin_f32 v{G[1]+1}, v19")
    k("v_lshlrev_b32 v8, 16, v8\nv_lshlrev_b32 v9, 16, v9\nv_add_f32 v10, v10, v10")
    k(f"v_pk_mul_f32 {vr(W[1],2)}, {vr(W[1],2)}, v[6:7] op_sel_hi:[1,0]\nv_pk_mul_f32 {vr(G[1],2)}, {vr(G[1],2)}, v[18:19] op_sel_hi:[1,0]")
    k("v_pk_mul_f32 v[8:9], v[8:9], v[10:11] op_sel_hi:[1,0]")
    tmp = [50, 52, 54, 56]; ti = [0]; cv = [58, 59, 60, 61]; ci = [0]; chain = [0]
    def cm(d, x, y):
        t = tmp[2 * chain[0] + ti[0] % 2]; ti[0] += 1
        return [f"v_pk_mul_f32 {vr(t,2)}, {vr(x,2)}, {vr(y,2)} op_sel:[0,0] op_sel_hi:[0,1]",
                f"v_pk_fma_f32 {vr(d,2)}, {vr(x,2)}, {vr(y,2)}, {vr(t,2)} op_sel:[1,1,0] op_sel_hi:[1,0,1] neg_lo:[0,1,0]"]
    def wr(x, buf, row, neg=False):
        c = cv[2 * chain[0] + ci[0] % 2]; ci[0] += 1
        return [f"v_cvt_pk_bf16_f32 v{c}, v{x}, {'-' if neg else ''}v{x+1}", f"ds_write_b32 v16, v{c} offset:{buf*PB+row*RS}"]
    def zipl(*ls):
        for i in range(max(len(l) for l in ls)):
            for l in ls:
                if i < len(l): k(l[i])
    GA, GB, VA, VB = 62, 64, 66, 68
    gl = wr(G[1], 1, 1); prev = G[1]
    for m in range(2, 17):
        d = G.get(m, GA if m & 1 else GB)
        gl += cm(d, prev, G[1]); prev = d
        if m < 16: gl += wr(d, 1, m)
    G16 = prev
    chain[0] = 1
    vl = cm(W[2], W[1], W[1]) + cm(W[4], W[2], W[2]) + cm(W[8], W[4], W[4]) + wr(8, 0, 0, True); prev = 8
    for b in range(1, 16):
        d = VA if b & 1 else VB
        vl += cm(d, prev, W[8]) + wr(d, 0, b, True); prev = d
    zipl(vl, gl)
    VF = 72; UF = 88; D = [104, 108, 112]
    for s in range(4): k(f"ds_read_b128 {vr(VF+4*s,4)}, v17 offset:{64*s}\nds_read_b128 {vr(UF+4*s,4)}, v17 offset:{PB+64*s}")
    a = wr(G16, 0, 0) + wr(W[4], 0, 1) + wr(W[2], 0, 9) + cm(W[6], W[2], W[4]) + wr(W[6], 0, 13)
    chain[0] = 0
    b = cm(W[3], W[1], W[2]) + cm(W[5], W[1], W[4]) + cm(W[7], W[3], W[4])
    zipl(a, b)
    def mm(t, uf):
        for s in range(4): k(f"v_mfma_f32_16x16x32_bf16 {vr(D[t],4)}, {vr(uf+4*s,4)}, {vr(VF+4*s,4)}, {'0' if s==0 else vr(D[t],4)}")
    mm(0, UF)
    jobs = [(W[4], m, 0, 1 + m) for m in range(1, 8)] + [(W[2], m, 0, 9 + m) for m in range(1, 4)] + [(W[6], m, 0, 13 + m) for m in range(1, 3)]
    def run(jobs):
        for i in range(0, len(jobs), 2):
            ls = []
            for j, (w, m, buf, row) in enumerate(jobs[i:i+2]):
                d = (GA, VA)[j]; chain[0] = j
                ls.append(cm(d, w, G[m]) + wr(d, buf, row))
            zipl(*ls)
    run(jobs)
    for s in range(4): k(f"ds_read_b128 {vr(UF+4*s,4)}, v17 offset:{64*s}")
    chain[0] = 0; a = wr(W[1], 1, 1) + wr(W[5], 1, 3)
    chain[0] = 1; b = wr(W[3], 1, 2) + wr(W[7], 1, 4)
    zipl(a, b)
    run([(W[6], 3, 1, 0)] + [(W[o], 1, 1, 5 + i) for i, o in enumerate((1, 3, 5, 7))])
    for s in range(4): k(f"ds_read_b128 {vr(32+4*s,4)}, v17 offset:{PB+64*s}")
    mm(1, UF)
    mm(2, 32)
    k("v_lshl_add_u32 v16, v2, 4, s24\nv_lshl_add_u32 v17, v0, 4, s27")
    for i in range(4): k(f"v_add_u32 v{12+i}, s29, v{12+i}")
    for t in range(3): k(f"ds_write_b128 v16, {vr(D[t],4)} offset:{1024*t}")
    for i in range(4): k(f"v_and_b32 v{20+2*i}, 0xffff, v{12+i}\nv_lshrrev_b32 v{21+2*i}, 16, v{12+i}")
    k("v_lshlrev_b32 v11, 16, v11\nv_cmp_eq_u32 vcc, 0, v0\nv_lshl_add_u32 v18, v0, 3, s28\nv_cndmask_b32 v11, 0, v11, vcc")
    k.stamp(2)
    k("s_waitcnt lgkmcnt(0)\ns_barrier")
    for w in range(3): k(f"ds_read_b128 {vr(72+4*w,4)}, v17 offset:{w*WB}")
    k("v_add_f32 v72, v72, v11")
    k("v_pk_add_f32 v[72:73], v[72:73], v[76:77]\nv_pk_add_f32 v[74:75], v[74:75], v[78:79]\nv_pk_add_f32 v[72:73], v[72:73], v[80:81]\nv_pk_add_f32 v[74:75], v[74:75], v[82:83]")
    k(f"v_cvt_pk_bf16_f32 v72, v72, v73\nv_cvt_pk_bf16_f32 v73, v74, v75\nds_write_b64 v18, v[72:73]")
    k("s_waitcnt lgkmcnt(0)\ns_barrier")
    for i in range(8): k(f"ds_read_u16 v{28+i}, v{20+i}")
    for i in range(4): k(f"v_lshl_or_b32 v{12+i}, v{29+2*i}, 16, v{28+2*i}")
    k("buffer_store_dwordx4 v[12:15], v5, s[4:7], s25 offen sc1")
    mid()
    return PBASE + 9 * WB

def spin(k, nm, load, test):
    k(f"s_mov_b32 s67, 0\n{nm}:\n!{load}\n!s_add_u32 s67, s67, 1\n!s_waitcnt vmcnt(0)")
    k(f"!s_cmp_gt_u32 s67, 0xffff\n!s_cbranch_scc1 {nm}_ok")
    for t in test: k("!" + t)
    k(f"!s_cbranch_scc1 {nm}\n{nm}_ok:")
    k.reset()

def kF(opt):
    k = K()
    LNF = LY.FLG + 8192; KF = LY.FLG + 16384
    UB = 0; KB = 36864; XB = 61440; SH = XB + 16384; RS = 2112
    LNB = 4864 + 9 * 9216; XS = 10752; SB = LNB + 2 * XS
    k("s_cmp_ge_u32 s2, 256\ns_cbranch_scc1 F_end")
    if opt.get("st"): k("s_lshl_b32 s2, s2, 1")
    k.st_init(opt.get("st"), 0)
    if opt.get("st"): k("s_lshr_b32 s2, s2, 1")
    mksrd(k, 4, 104, LY.WS_END)
    k("v_lshrrev_b32 v1, 6, v0\nv_and_b32 v2, 63, v0\nv_readfirstlane_b32 s62, v1")
    k("s_lshr_b32 s60, s2, 3\ns_mul_i32 s61, s60, 26\ns_lshr_b32 s61, s61, 8\ns_mul_i32 s14, s61, 10\ns_sub_u32 s60, s60, s14\ns_and_b32 s14, s2, 7\ns_mul_i32 s14, s14, 10\ns_add_u32 s60, s60, s14")
    k("s_cmp_ge_u32 s62, 9\ns_cbranch_scc1 F_side\ns_cmp_ge_u32 s2, 240\ns_cbranch_scc1 F_init")
    k("s_mul_i32 s26, s62, 86\ns_lshr_b32 s26, s26, 8\ns_mul_i32 s3, s26, 3\ns_sub_u32 s3, s62, s3\ns_mul_i32 s14, s61, 3\ns_add_u32 s14, s14, s26\ns_cmp_eq_u32 s14, 8\ns_cbranch_scc1 F_idle")
    k("s_lshl_b32 s2, s60, 3\ns_add_u32 s2, s2, s14\ns_lshl_b32 s14, s3, 6\nv_add_u32 v0, s14, v2")
    AU = 120; XA = 130; HV = 131; UV = 156; L16 = 157; UW = 158; KW = 159; XW = 160; ZA = 161; UL = 88
    MK = {n: 132 + 4 * i for i, n in enumerate("abcoes")}; MK["d"] = MK["b"]
    def early(skip8=False):
        k("v_mov_b32 v21, s62\nv_lshl_add_u32 v20, v21, 6, v2")
        k(f"v_lshrrev_b32 v24, 3, v2\nv_and_b32 v25, 7, v2\nv_lshrrev_b32 v26, 4, v2\nv_and_b32 v27, 1, v21\nv_lshl_add_u32 v27, v27, 2, v26\nv_xor_b32 v27, v25, v27\nv_mul_u32_u24 v24, 10240, v24\nv_lshl_add_u32 v{UV}, v27, 4, v24")
        k(f"s_lshl_b32 s32, s60, 7\ns_add_u32 s64, s32, {KF}\ns_mul_i32 s56, s62, 81920\ns_add_u32 s32, s32, s56\ns_lshl_b32 s56, s62, 10")
        k(f"v_lshlrev_b32 v{L16}, 4, v2\nv_add_u32 v{UW}, s56, v{L16}\nv_add_u32 v{XW}, {XB}, v{UW}\nv_lshlrev_b32 v{ZA}, 3, v20")
        k(f"s_lshl_b32 s52, s60, 3\ns_add_u32 s52, s52, s62\ns_mul_i32 s52, s52, 3072\ns_add_u32 s52, s52, {LY.KP}\ns_mul_i32 s53, s62, 3072\ns_add_u32 s53, s53, {KB}\nv_add_u32 v{KW}, s53, v{L16}")
        k("s_lshl_b32 s65, s61, 2\ns_add_u32 s65, s65, s64\ns_lshl_b32 s56, s26, 2\ns_add_u32 s64, s64, s56")
        for d, c in ((40, "s_cmp_ge_u32 s61, 1"), (44, "s_cmp_eq_u32 s61, 2"), (48, "s_cmp_eq_u32 s61, 0")):
            k(f"s_mov_b32 s{d}, s4\ns_mov_b32 s{d+1}, s5\n{c}\ns_cselect_b32 s{d+2}, s6, 0\ns_mov_b32 s{d+3}, s7")
        k("s_lshl_b32 s57, s61, 9\ns_add_u32 s57, s57, 512\ns_cmp_eq_u32 s61, 0\ns_cselect_b32 s57, 0, s57")
        k(f"s_mul_i32 s36, s57, 1280\ns_add_u32 s36, s36, s32\ns_add_u32 s36, s36, {LY.XT}\ns_add_u32 s37, s36, {8*81920}")
        k(f"s_add_u32 s33, s32, {8*81920}\ns_add_u32 s34, s32, {16*81920}\ns_add_u32 s35, s32, {24*81920}")
        k(f"v_add_u32 v22, s57, v20\nv_lshlrev_b32 v{HV}, 4, v22")
        k(f"s_lshl_b32 s54, s60, 15\ns_add_u32 s54, s54, {LY.H}\ns_add_u32 s55, s54, 8192")
        if skip8: k("s_cmp_eq_u32 s62, 8\ns_cbranch_scc1 F_e8")
        k("v_and_b32 v23, 15, v2\nv_lshl_add_u32 v22, v23, 1, v26")
        for m in range(5):
            off = 32 - 2 + 4 * m if m < 4 else 32 - 3
            k(f"v_add_u32 v25, {off}, v22\nv_bfe_u32 v24, v25, 1, 3\nv_xor_b32 v24, v24, v21\nv_lshlrev_b32 v25, 7, v25\nv_lshl_add_u32 v{AU+m}, v24, 4, v25")
        k(f"v_sub_u32 v25, 15, v23\nv_lshrrev_b32 v25, 1, v25\nv_lshl_add_u32 v25, v26, 2, v25\nv_and_b32 v24, 1, v23\nv_xor_b32 v24, 1, v24\nv_mul_u32_u24 v24, 464, v24\nv_add_u32 v25, v25, v24\nv_lshl_add_u32 v{AU+5}, v25, 2, s53\nv_add_u32 v{AU+6}, 512, v{AU+5}")
        k(f"v_sub_u32 v25, 295, v23\nv_lshl_add_u32 v25, v26, 2, v25\nv_lshl_add_u32 v{AU+7}, v25, 2, s53")
        k(f"s_mul_i32 s56, s62, {RS}\ns_add_u32 s56, s56, {SH}\nv_lshlrev_b32 v25, 5, v23\nv_lshl_add_u32 v25, v26, 3, v25\nv_add_u32 v{AU+8}, s56, v25")
        k(f"v_bfe_u32 v25, v2, 2, 2\nv_mul_u32_u24 v25, {RS}, v25\nv_and_b32 v24, 3, v2\nv_lshl_add_u32 v25, v24, 3, v25\nv_lshrrev_b32 v24, 4, v20\nv_lshl_add_u32 v25, v24, 5, v25\nv_add_u32 v{AU+9}, {SH}, v25")
        F = 40
        k("v_lshlrev_b32 v25, 3, v26\nv_sub_u32 v25, v23, v25\nv_add_u32 v24, 15, v25\nv_add_u32 v25, 16, v25\nv_and_b32 v25, 0xffff, v25\nv_lshl_or_b32 v25, v24, 16, v25\ns_mov_b32 s39, 0x3f803f80")
        for c in range(3, 21): k(f"v_pk_sub_i16 v{F+c-3}, v25, {c} op_sel_hi:[1,0]")
        for c in range(3, 21): k(f"v_pk_ashrrev_i16 v{F+c-3}, 15, v{F+c-3} op_sel_hi:[0,1]")
        win = dict(a=(3, 6), b=(6, 11), c=(11, 14), o=(5, 12), e=(4, 13))
        for n in "abcoe":
            lo, hi = win[n]
            for p in range(4): k(f"v_bitop3_b32 v{MK[n]+p}, v{F+lo+2*p-3}, v{F+hi+2*p-3}, s39 bitop3:0x28")
        for p in range(4): k(f"v_xor_b32 v{MK['s']+p}, v{F+2*p}, v{F+2+2*p}")
        k(f"v_lshrrev_b32 v25, 1, v26\nv_lshl_add_u32 v25, v23, 1, v25\nv_lshlrev_b32 v25, 7, v25\nv_and_b32 v24, 7, v23\nv_xor_b32 v24, v24, v21\nv_lshl_add_u32 v25, v24, 4, v25\nv_and_b32 v24, 1, v26\nv_lshl_add_u32 v25, v24, 3, v25\nv_add_u32 v{XA}, {XB}, v25")
    def early8():
        early(True); k("F_e8:")
    def uxl():
        for i, (srd, so) in enumerate(((4, 32), (4, 33), (4, 36), (40, 34), (44, 35), (48, 37))):
            k(f"!buffer_load_dwordx4 {vr(UL+4*i,4)}, v{UV}, s[{srd}:{srd+3}], s{so} offen sc1")
    def mid():
        k("s_cmp_eq_u32 s62, 8\ns_cbranch_scc1 F_m8\nF_b:")
    assert kgen(k, opt, 4864, early8, mid) == LNB
    k("v_mov_b32 v4, 1\nv_mov_b32 v6, 0\nv_mov_b32 v7, 0\ns_mov_b32 s63, 0")
    k("s_waitcnt vmcnt(0)\ns_barrier")
    k("s_cmp_lg_u32 s62, 0\ns_cbranch_scc1 F_nf\n!s_mov_b64 exec, 1\n!buffer_store_dword v4, off, s[4:7], s65 sc1\n!s_mov_b64 exec, -1\nF_nf:")
    k.stamp(3)
    uxl()
    k(f"ds_write_b64 v{ZA}, v[6:7]")
    P1 = opt.get("kp1", 1)
    for i, (a, o) in enumerate(((UW, 4096), (UW, 12288), (XW, 0), (UW, 20480), (UW, 28672), (XW, 8192))):
        if i == P1: k("!buffer_load_dword v5, off, s[4:7], s64 sc1")
        k(f"!s_waitcnt vmcnt({5-i+(i>=P1)})\nds_write_b128 v{a}, {vr(UL+4*i,4)} offset:{o}")
    KL = 76
    k("!s_waitcnt vmcnt(0)\nv_readfirstlane_b32 s66, v5\ns_cmp_lg_u32 s66, 1\ns_cbranch_scc1 F_k0")
    for j in range(3): k(f"!buffer_load_dwordx4 {vr(KL+4*j,4)}, v{L16}, s[4:7], s52 offen offset:{1024*j} sc1")
    k("s_mov_b32 s63, 1\nF_k0:\ns_waitcnt lgkmcnt(0)\ns_barrier")
    k.stamp(4); k("s_waitcnt lgkmcnt(0)" if k.on else "")
    k("F_dry:")
    k("s_cmp_eq_u32 s61, 1\ns_cbranch_scc1 B_t1\ns_cmp_eq_u32 s61, 2\ns_cbranch_scc1 B_t2")
    for third, tiles in enumerate(([0, 1, 2, 3], [4, 5], [6, 7])):
        k(f"B_t{third}:"); k.reset()
        ACC = {T: 8 + 4 * i for i, T in enumerate(tiles)}
        pool = [r for r in range(8 + 4 * len(tiles), 120, 4) if not KL <= r < KL + 12] + [164]
        def ld(v, r):
            if v[0] == "B":
                b = v[1]; return [f"ds_read_b128 {vr(r,4)}, v{AU+b%4} offset:{(b//4)*2048}"] if b >= 0 else [f"ds_read_b128 {vr(r,4)}, v{NEG+b%4} offset:{(b//4+2)*2048 if b%4 else 0}"]
            if v[0] == "B24": return [f"ds_read_b128 {vr(r,4)}, v{AU+4} offset:{v[1]*4096}"]
            if v[0] == "A":
                o = 16 * (16 - v[1]); a = AU + 5
                if o >= 128: o -= 128; a = AU + 6
            else:
                o = {"oe": 112, "ab": 128, "cd": 176}[v[0]] - 16 * v[1]; a = AU + 7
            return [f"ds_read2_b32 {vr(r,2)}, v{a} offset0:{o} offset1:{o+1}", f"ds_read2_b32 {vr(r+2,2)}, v{a} offset0:{o+2} offset1:{o+3}"]
        if third == 0:
            NEG = pool.pop()
            for m in range(4): k(f"v_subrev_u32 v{NEG+m}, {4096 if m else 2048}, v{AU+m}")
        full = []
        for q in range(17):
            for T in reversed(tiles):
                if 8 * T - q >= -7: full.append(("M", T, ("A", q), ("B", 8 * T - q)))
        if third == 0: full.sort(key=lambda o: -o[3][1])
        sops = []; tops = []
        for Tp in range(8):
            for pr, Ds in (("ab", (2, 3, 4)), ("cd", (2, 3, 4)), ("oe", (4, 5, 6, 7))):
                us = [T for T in tiles if T - Tp in Ds]
                if not us: continue
                sops.append((pr, Tp))
                for T in us: tops.append(("M", T, ("P", pr, Tp), (pr, T - Tp)))
        spec = [("M", T, ("spec",), ("B", 8 * (T - 4))) for T in tiles if T >= 4]
        ops = []
        for i, (pr, Tp) in enumerate(sops):
            for n in pr: ops.append(("S", n, Tp, ("B24", Tp) if n in "de" else ("B", 8 * Tp, "s")))
            if i: ops.append(("cvt",) + sops[i - 1])
        ops.append(("K",)); ops.append(("cvt",) + sops[-1])
        ops.insert(min(opt.get("kp", 2), len(ops) - 2), ("poll",))
        ops += tops + spec + full
        KI = ops.index(("K",))
        def vals(o):
            if o[0] == "M": return [v for v in o[2:] if v[0] not in ("P", "spec")]
            if o[0] == "S": return [o[3]]
            return []
        last = {}
        for i, o in enumerate(ops):
            for v in vals(o): last[v] = i
            if o[0] == "M" and o[2][0] == "P": last[o[2]] = i
        reg = {}; LA = opt.get("bla", 5); mn = [99]
        def prefetch(i, cur):
            if i < len(ops) and not (cur < KI < i):
                for v in vals(ops[i]):
                    if v not in reg:
                        reg[v] = pool.pop(0); mn[0] = min(mn[0], len(pool))
                        for s in ld(v, reg[v]): k(s)
        for i in range(LA): prefetch(i, 0)
        for i, T in enumerate(tiles): k(f"ds_read_b64 {vr(ACC[T]+2,2)}, v{XA} offset:{4096*i}")
        specdone = False
        for i, o in enumerate(ops):
            if o[0] == "poll":
                k(f"s_waitcnt lgkmcnt(0)\ns_cmp_lg_u32 s63, 0\ns_cbranch_scc1 F_k1{third}")
                spin(k, f"F_pk{third}", "buffer_load_dword v5, off, s[4:7], s64 sc1", ["v_readfirstlane_b32 s66, v5", "s_cmp_lg_u32 s66, 1"])
                for j in range(3): k(f"!buffer_load_dwordx4 {vr(KL+4*j,4)}, v{L16}, s[4:7], s52 offen offset:{1024*j} sc1")
                k(f"F_k1{third}:")
            elif o[0] == "K":
                for T in tiles:
                    a = ACC[T]
                    k(f"v_lshlrev_b32 v{a}, 16, v{a+2}\nv_and_b32 v{a+1}, 0xffff0000, v{a+2}\nv_lshlrev_b32 v{a+2}, 16, v{a+3}\nv_and_b32 v{a+3}, 0xffff0000, v{a+3}")
                for j in range(3): k(f"s_waitcnt vmcnt({2-j})\nds_write_b128 v{KW}, {vr(KL+4*j,4)} offset:{1024*j}")
                k.stamp(5); k("s_waitcnt lgkmcnt(0)" if k.on else "")
                pool += [KL, KL + 4, KL + 8]
                if third: k(f"v_mov_b32 v4, s53\nds_read_b32 v4, v4 offset:{456*4}")
                for j in range(1, LA): prefetch(i + j, i)
            elif o[0] == "S":
                r = pool.pop(0); reg[("S", o[1], o[2])] = r; mn[0] = min(mn[0], len(pool))
                k(f"v_mfma_f32_16x16x32_bf16 {vr(r,4)}, {vr(reg[o[3]],4)}, {vr(MK[o[1]],4)}, 0")
            elif o[0] == "cvt":
                r0 = reg.pop(("S", o[1][0], o[2])); r1 = reg.pop(("S", o[1][1], o[2]))
                for p in range(4): k(f"v_cvt_pk_bf16_f32 v{r0+p}, v{r0+p}, v{r1+p}")
                reg[("P", o[1], o[2])] = r0; pool.append(r1)
            else:
                T = o[1]
                if o[2][0] == "spec":
                    if not specdone:
                        for p in range(4): k(f"v_and_b32 v{MK['s']+p}, v{MK['s']+p}, v4")
                        specdone = True
                    a = MK["s"]
                else: a = reg[o[2]]
                k(f"v_mfma_f32_16x16x32_bf16 {vr(ACC[T],4)}, {vr(a,4)}, {vr(reg[o[3]],4)}, {vr(ACC[T],4)}")
            for v in list(reg):
                if last.get(v) == i: pool.append(reg.pop(v))
            prefetch(i + LA, i)
        print("third", third, "ops", len(ops), "S", 2 * len(sops), "min pool", mn[0])
        for i, T in enumerate(tiles):
            a = ACC[T]
            k(f"v_cvt_pk_bf16_f32 v{a}, v{a}, v{a+1}\nv_cvt_pk_bf16_f32 v{a+1}, v{a+2}, v{a+3}\nds_write_b64 v{AU+8}, {vr(a,2)} offset:{512*i}")
        if opt.get("dry"): k("s_cbranch_execz F_end")
        k("s_waitcnt lgkmcnt(0)\ns_barrier")
        nr = len(tiles) // 2
        for rnd in range(nr):
            k(f"ds_read_b64_tr_b16 {vr(80+4*rnd,2)}, v{AU+9} offset:{1024*rnd}\nds_read_b64_tr_b16 {vr(82+4*rnd,2)}, v{AU+9} offset:{1024*rnd+4*RS}")
        for rnd in range(nr):
            k(f"buffer_store_dwordx4 {vr(80+4*rnd,4)}, v{HV}, s[4:7], s{54+rnd} offen sc1")
        k.end()
    k("F_idle:"); k.reset()
    k("s_cmp_eq_u32 s62, 8\ns_cbranch_scc1 F_end\ns_waitcnt lgkmcnt(0)")
    early(); k("s_barrier\ns_barrier\ns_branch F_b")
    k("F_m8:"); k.reset()
    k("s_waitcnt vmcnt(0)\ns_barrier")
    k("s_mov_b32 s63, 1\ns_mov_b64 exec, 0\ns_branch F_dry" if opt.get("dry") else "s_endpgm")
    k("F_init:"); k.reset()
    k("s_cmp_lg_u32 s2, 255\ns_cbranch_scc1 F_end\ns_cmp_lg_u32 s62, 0\ns_cbranch_scc1 F_end")
    mksrd(k, 8, 96, 256)
    k(f"v_mov_b32 v8, 0\nv_mov_b32 v9, 0\nv_mov_b32 v10, 0\nv_mov_b32 v11, 0\nv_lshlrev_b32 v4, 4, v2\nv_lshlrev_b32 v5, 7, v2\ns_mov_b32 s12, {LY.FLG}\ns_mov_b32 s15, {LNF}\ns_mov_b32 s13, {KF}\ns_mov_b32 s14, {KF+2048}\nv_mov_b32 v6, 1\ns_waitcnt lgkmcnt(0)")
    k("buffer_store_dwordx4 v[8:11], v5, s[4:7], s15 offen sc1\nbuffer_store_dwordx4 v[8:11], v5, s[4:7], s13 offen sc1\nbuffer_store_dwordx4 v[8:11], v5, s[4:7], s14 offen sc1")
    k("s_waitcnt vmcnt(0)\ns_mov_b64 exec, 1\nbuffer_store_dword v6, off, s[8:11], 0 sc1\ns_mov_b64 exec, -1")
    k("buffer_store_dwordx4 v[8:11], v5, s[4:7], s12 offen sc1\ns_endpgm")
    k("F_side:"); k.reset()
    k("v_lshlrev_b32 v9, 4, v2\ns_mov_b32 s30, 0x3f803f80\ns_cmp_lg_u32 s62, 9\ns_cbranch_scc1 F_shuf")
    if opt.get("prio", 3): k(f"s_setprio {opt.get('prio', 3)}")
    mksrd(k, 8, 0, 2621440); mksrd(k, 16, 96, 256)
    if opt.get("pf", 0): k("s_load_dwordx4 s[40:43], s[0:1], 64\ns_load_dwordx2 s[44:45], s[0:1], 80")
    k("v_lshrrev_b32 v3, 3, v2\nv_and_b32 v4, 7, v2\nv_lshlrev_b32 v4, 4, v4\nv_mul_u32_u24 v5, 1280, v3\nv_add_u32 v5, v5, v4\ns_mul_i32 s12, s2, 10240")
    X = 16; TR = 64
    for j in range(10): k(f"buffer_load_dwordx4 {vr(X+4*j,4)}, v5, s[8:11], s12 offen offset:{128*j}")
    k(f"v_mul_u32_u24 v6, 1344, v3\nv_add_u32 v6, v6, v4\nv_add_u32 v6, {LNB}, v6")
    k(f"v_bfe_u32 v7, v2, 2, 2\nv_mul_u32_u24 v7, 1344, v7\nv_and_b32 v8, 3, v2\nv_lshl_add_u32 v7, v8, 3, v7\nv_bfe_u32 v8, v2, 4, 2\nv_lshl_add_u32 v7, v8, 5, v7\nv_add_u32 v7, {LNB}, v7")
    k(f"s_add_u32 s13, s12, 4096\ns_add_u32 s14, s12, 8192\ns_add_u32 s20, s12, {LY.XT}\ns_add_u32 s21, s13, {LY.XT}\ns_add_u32 s22, s14, {LY.XT}\ns_and_b32 s23, s2, 63\ns_lshl_b32 s23, s23, 7\ns_lshr_b32 s24, s2, 6\ns_lshl_b32 s24, s24, 2\ns_add_u32 s23, s23, s24\ns_add_u32 s23, s23, {LNF}\ns_mov_b32 s24, {LNF}\nv_lshlrev_b32 v8, 7, v2")
    k("v_mov_b32 v10, 0\nv_mov_b32 v11, 0\nv_mov_b32 v12, 0\nv_mov_b32 v13, 0")
    for q in range(40):
        k(f"v_dot2c_f32_bf16 v{10+2*(q&1)}, s30, v{X+q}\nv_dot2c_f32_bf16 v{11+2*(q&1)}, v{X+q}, v{X+q}")
        if q % 4 == 3: k(f"ds_write_b128 v6, {vr(X+q-3,4)} offset:{XS+32*(q-3)}")
    k.stamp(1)
    tr = lambda r, o: f"ds_read_b64_tr_b16 {vr(r,2)}, v7 offset:{o}\nds_read_b64_tr_b16 {vr(r+2,2)}, v7 offset:{o+4*1344}"
    k("v_add_f32 v10, v10, v12\nv_add_f32 v11, v11, v13")
    for j in range(10): k(tr(TR + 40 + 4 * j, XS + 128 * j))
    for m in ("quad_perm:[1,0,3,2]", "quad_perm:[2,3,0,1]", "row_half_mirror"):
        k(f"v_add_f32_dpp v10, v10, v10 {m} row_mask:0xf bank_mask:0xf\nv_add_f32_dpp v11, v11, v11 {m} row_mask:0xf bank_mask:0xf")
    k(f"v_mul_f32 v10, {fbits(-1/640)}, v10\nv_mul_f32 v11, {fbits(1/640)}, v11\nv_fma_f32 v11, -v10, v10, v11\nv_max_f32 v11, 0, v11")
    k(f"v_cvt_pk_bf16_f32 v11, v10, v11\nv_lshlrev_b32 v10, 16, v11\nv_and_b32 v11, 0xffff0000, v11\nv_add_f32 v11, {fbits(1e-5)}, v11")
    k("v_cvt_pk_bf16_f32 v11, v11, v11\nv_and_b32 v11, 0xffff0000, v11\nv_sqrt_f32 v11, v11\nv_cvt_pk_bf16_f32 v11, v11, v11\nv_and_b32 v11, 0xffff0000, v11")
    k("v_rcp_f32 v12, v11\nv_mul_f32 v14, v10, v12")
    for j in range(10):
        for q in range(4): k(f"v_lshlrev_b32 v{56+2*q}, 16, v{X+4*j+q}\nv_and_b32 v{57+2*q}, 0xffff0000, v{X+4*j+q}")
        for q in range(4): k(f"v_pk_fma_f32 {vr(56+2*q,2)}, {vr(56+2*q,2)}, v[12:13], v[14:15] op_sel_hi:[1,0,0]")
        for q in range(4): k(f"v_cvt_pk_bf16_f32 v{X+4*j+q}, v{56+2*q}, v{57+2*q}")
        k(f"ds_write_b128 v6, {vr(X+4*j,4)} offset:{128*j}")
        k(tr(TR + 4 * j, 128 * j))
        k(f"buffer_store_dwordx4 {vr(TR+40+4*j,4)}, v9, s[4:7], s{20+j//4} offen offset:{1024*(j%4)} sc1")
        if j: k(f"buffer_store_dwordx4 {vr(TR+4*j-4,4)}, v9, s[4:7], s{12+(j-1)//4} offen offset:{1024*((j-1)%4)} sc1")
    k(f"buffer_store_dwordx4 {vr(TR+36,4)}, v9, s[4:7], s14 offen offset:1024 sc1\nv_mov_b32 v3, 1")
    k.stamp(2)
    spin(k, "F_go", "buffer_load_dword v10, off, s[16:19], 0 sc1", ["v_readfirstlane_b32 s66, v10", "s_cmp_lg_u32 s66, 1"])
    k("s_mov_b64 exec, 1\nbuffer_store_dword v3, off, s[4:7], s23 sc1\ns_mov_b64 exec, -1")
    if opt.get("pf", 0):
        k("s_mul_i32 s25, s2, 7680\nv_min_u32 v4, 59, v2\nv_lshlrev_b32 v4, 7, v4\nv_add_u32 v4, s25, v4")
        for i in range(3): k(f"global_load_dword v{16+i}, v4, s[{40+2*i}:{41+2*i}]")
    k.stamp(3)
    k("s_cmp_ge_u32 s2, 240\ns_cbranch_scc1 F_send\ns_barrier\ns_barrier")
    k.stamp(4)
    spin(k, "F_ln", "buffer_load_dwordx4 v[12:15], v8, s[4:7], s24 offen sc1",
         ["v_and_b32 v12, v12, v13", "v_and_b32 v14, v14, v15", "v_and_b32 v12, v12, v14", "v_cmp_ne_u32 vcc, 1, v12", "s_nop 1", "s_cmp_lg_u64 vcc, 0"])
    k.stamp(5)
    k("s_barrier\nF_send:")
    k.end()
    k("F_shuf:"); k.reset()
    k("s_load_dwordx4 s[40:43], s[0:1], 64\ns_load_dwordx2 s[44:45], s[0:1], 80")
    k("s_getpc_b64 s[20:21]\nA_pc0:\ns_add_u32 s20, s20, kA_kernel-A_pc0\ns_addc_u32 s21, s21, -1")
    k("s_lshr_b32 s22, s2, 3\ns_lshl_b32 s22, s22, 1\ns_add_u32 s22, s22, s62\ns_sub_u32 s22, s22, 10\ns_lshl_b32 s22, s22, 12\nv_lshlrev_b32 v3, 6, v2\nv_add_u32 v4, s22, v3")
    k("v_min_u32 v4, code_end-kA_kernel, v4\nglobal_load_dword v20, v4, s[20:21]")
    LD = 64; FR = 16
    k(f"v_lshrrev_b32 v4, 3, v2\nv_and_b32 v5, 7, v2\ns_sub_u32 s20, s62, 10\ns_lshl_b32 s20, s20, 12\ns_add_u32 s20, s20, {SB}\nv_add_u32 v15, s20, v9")
    k("s_mov_b32 s26, 1966080\ns_mov_b32 s27, 0x00020000\ns_mov_b32 s34, 1966080\ns_mov_b32 s35, 0x00020000")
    SW = opt.get("shw", -1); SP = opt.get("shp", 4)
    k("s_cmp_eq_u32 s2, 255\ns_cbranch_scc1 F_send2\ns_cmp_eq_u32 s62, 11\ns_cbranch_scc1 F_wd\ns_cmp_lt_u32 s2, 63\ns_cbranch_scc1 F_send2")
    k("s_sub_u32 s21, s2, 63\ns_and_b32 s22, s21, 7\ns_lshr_b32 s21, s21, 3\ns_mul_i32 s23, s22, 5")
    k("s_mov_b32 s24, s40\ns_mov_b32 s25, s41\ns_mov_b32 s32, s42\ns_mov_b32 s33, s43")
    k("v_and_b32 v10, 2, v4\nv_xor_b32 v10, v10, v5\nv_mul_u32_u24 v11, 3072, v4\nv_lshl_add_u32 v10, v10, 4, v11\nv_xor_b32 v11, 64, v10")
    k(f"s_mul_i32 s36, s23, {16*3072}\ns_lshl_b32 s37, s21, 7\ns_add_u32 s36, s36, s37")
    k("v_bfe_u32 v3, v2, 4, 1\nv_lshrrev_b32 v6, 5, v2\nv_bfe_u32 v7, v2, 2, 2\nv_and_b32 v8, 3, v2")
    k("v_mul_u32_u24 v48, 2112, v3\nv_lshl_add_u32 v48, v6, 10, v48\nv_lshl_add_u32 v48, v7, 7, v48\nv_lshl_add_u32 v48, v8, 3, v48\nv_and_b32 v7, 2, v7\nv_lshl_add_u32 v48, v7, 4, v48\nv_add_u32 v48, s20, v48")
    for w in range(1, 4): k(f"v_xor_b32 v{48+w}, {32*w}, v48")
    for w in range(4): k(f"v_mov_b32 v{52+w}, 0")
    if SW >= 0: k("s_waitcnt vmcnt(0)" + "\ns_barrier" * SW)
    k.stamp(1)
    for t in range(5):
        for h in range(2):
            if t or h: k(f"s_add_u32 s36, s36, {8*3072}")
            for g in range(2): k(f"buffer_load_dwordx4 {vr(LD+16*t+8*g+4*h,4)}, v{10+g}, s[{24+8*g}:{27+8*g}], s36 offen")
    k(f"s_mul_i32 s47, s21, {4*41984}\ns_lshl_b32 s36, s23, 10\ns_add_u32 s47, s47, {LY.W1P}\ns_add_u32 s36, s36, s47\ns_add_u32 s37, s36, 41984\ns_add_u32 s38, s37, 41984\ns_add_u32 s39, s38, 41984\nv_add_u32 v12, 4096, v9")
    k("s_barrier\n" * (SP - max(SW, 0)) + f"s_setprio {opt.get('sprio', 3)}")
    k.stamp(2)
    for t in range(5):
        Fq = FR + 16 * (t & 1)
        for i in range(4): k(f"ds_write_b128 v15, {vr(LD+16*t+4*i,4)} offset:{1024*i}")
        for w in range(4):
            for e in range(2): k(f"ds_read_b64_tr_b16 {vr(Fq+4*w+2*e,2)}, v{48+w} offset:{512*e}")
        for w in range(4): k(f"buffer_store_dwordx4 {vr(Fq+4*w,4)}, v{9 if t < 4 else 12}, s[4:7], s{36+w} offen offset:{1024*(t%4)} sc1")
        for q in range(4):
            for w in range(4): k(f"v_dot2c_f32_bf16 v{52+w}, s30, v{Fq+4*w+q}")
    k("v_and_b32 v4, 31, v2\nv_lshlrev_b32 v4, 4, v4\nv_mul_u32_u24 v5, 41984, v6\nv_add_u32 v4, v4, v5")
    k(f"s_lshr_b32 s36, s22, 2\ns_lshl_b32 s36, s36, 9\ns_and_b32 s37, s22, 3\ns_lshl_b32 s37, s37, 2\ns_add_u32 s36, s36, s37\ns_add_u32 s36, s36, s47\ns_add_u32 s36, s36, 40960\ns_add_u32 s37, s36, {2*41984}")
    for w in (0, 2):
        a = 52 + w
        k(f"v_permlane32_swap_b32 v{a}, v{a+1}\nv_add_f32 v{a}, v{a}, v{a+1}\nv_cvt_pk_bf16_f32 v{a+1}, v{a}, v{a}\nv_and_b32 v{a+1}, 0xffff0000, v{a+1}\nv_sub_f32 v{a}, v{a}, v{a+1}\nv_cvt_pk_bf16_f32 v{a}, v{a+1}, v{a}")
        k(f"buffer_store_dword v{a}, v4, s[4:7], s{36+w//2} offen")
    k("F_send2:")
    k.end()
    k("F_wd:"); k.reset()
    k("s_cmp_lt_u32 s2, 15\ns_cbranch_scc1 F_send2\ns_waitcnt lgkmcnt(0)")
    k(f"s_mov_b32 s24, s44\ns_mov_b32 s25, s45\ns_mov_b32 s39, {LY.WDP}")
    k("v_and_b32 v10, 2, v4\nv_lshlrev_b32 v10, 1, v10\nv_bfe_u32 v11, v4, 2, 1\nv_lshl_add_u32 v10, v11, 1, v10\nv_xor_b32 v10, v10, v5\nv_mul_u32_u24 v11, 1280, v4\nv_lshl_add_u32 v10, v10, 4, v11")
    k("s_sub_u32 s21, s2, 15\ns_mul_i32 s50, s21, 13108\ns_lshr_b32 s50, s50, 16\ns_mul_i32 s23, s50, 5\ns_sub_u32 s51, s21, s23\ns_lshl_b32 s51, s51, 1")
    k(f"s_mul_i32 s36, s50, {32*1280}\ns_lshl_b32 s37, s51, 7\ns_add_u32 s36, s36, s37")
    k("v_bfe_u32 v7, v2, 2, 2\nv_and_b32 v8, 3, v2\nv_lshrrev_b32 v6, 5, v2\nv_bfe_u32 v3, v2, 4, 1")
    k("v_lshlrev_b32 v48, 11, v6\nv_lshl_add_u32 v48, v3, 9, v48\nv_lshl_add_u32 v48, v7, 7, v48\nv_add_u32 v48, s20, v48")
    k("v_and_b32 v7, 2, v7\nv_lshlrev_b32 v7, 5, v7\nv_lshl_add_u32 v7, v3, 5, v7")
    if SW >= 0: k("s_waitcnt vmcnt(0)" + "\ns_barrier" * SW)
    k.stamp(1)
    for i in range(4):
        if i: k(f"s_add_u32 s36, s36, {8*1280}")
        for t in range(2): k(f"buffer_load_dwordx4 {vr(LD+16*t+4*i,4)}, v10, s[24:27], s36 offen offset:{128*t}")
    for t in range(2):
        for vv in range(2):
            k(f"s_lshl_b32 s36, s51, 1\ns_add_u32 s36, s36, {2*t+vv}\ns_mul_i32 s37, s36, 52\ns_lshr_b32 s37, s37, 8\ns_mul_i32 s37, s37, 5\ns_sub_u32 s36, s36, s37\ns_cmp_eq_u32 s36, 2\ns_cselect_b32 s36, 3, 4\ns_cselect_b32 s37, 32, 8")
            a = 49 + 4 * t + 2 * vv
            k(f"v_lshlrev_b32 v{a}, s36, v8\nv_add_u32 v{a}, {64*vv}, v{a}\nv_add_u32 v{a+1}, s37, v{a}\nv_xor_b32 v{a}, v{a}, v7\nv_xor_b32 v{a+1}, v{a+1}, v7\nv_add_u32 v{a}, v{a}, v48\nv_add_u32 v{a+1}, v{a+1}, v48")
        for i in range(4):
            k(f"s_lshl_b32 s36, s51, 2\ns_add_u32 s36, s36, {4*t+i}\ns_mul_i32 s37, s36, 52\ns_lshr_b32 s37, s37, 8\ns_mul_i32 s38, s37, 5\ns_sub_u32 s36, s36, s38")
            k(f"s_and_b32 s38, s37, 1\ns_sub_u32 s36, s36, s38\ns_cselect_b32 s36, 4, s36\ns_mul_i32 s37, s37, 48\ns_add_u32 s37, s37, s50\ns_mul_i32 s37, s37, 5\ns_add_u32 s37, s37, s36\ns_lshl_b32 s37, s37, 10\ns_add_u32 s{52+4*t+i}, s37, s39")
    k("s_barrier\n" * (SP - max(SW, 0)) + f"s_setprio {opt.get('sprio', 3)}")
    k.stamp(2)
    for t in range(2):
        Fq = FR + 16 * t
        for i in range(4): k(f"ds_write_b128 v15, {vr(LD+16*t+4*i,4)} offset:{1024*i}")
        for i in range(4):
            for e2 in range(2): k(f"ds_read_b64_tr_b16 {vr(Fq+4*i+2*e2,2)}, v{49+4*t+i} offset:{1024*e2}")
        for i in range(4): k(f"buffer_store_dwordx4 {vr(Fq+4*i,4)}, v9, s[4:7], s{52+4*t+i} offen sc1")
    k.end()
    k("F_end:\ns_endpgm")
    data = [".p2align 7", "A_tab:"] + [f".long 0x{x:08x}" for x in LY.gather_table(0)]
    return dict(name="kA_kernel", code=k.finish(), data=data, grid=256, block=768, lds=SB + 8192, vgpr=opt.get("nv", 168), agpr=0)
```

```python
from asmlib import K, vr
import layout as LY
import math
from gen_cd import fbits
from gen_ab import mksrd, LOG2E
BIG = 0x7000000

def kgen(k, opt, PBASE, early, mid):
    RS = 288; PB = 16 * RS; WB = 2 * PB
    k("s_load_dwordx8 s[8:15], s[0:1], 8\ns_load_dwordx4 s[16:19], s[0:1], 40")
    k(f"s_mul_i32 s20, s2, 384\nv_lshlrev_b32 v3, 1, v0\nv_add_u32 v3, s20, v3\ns_lshl_b32 s21, s2, 1\nv_mov_b32 v4, s21")
    k("s_getpc_b64 s[22:23]\nA_pc1:\ns_add_u32 s22, s22, A_tab-A_pc1\ns_addc_u32 s23, s23, 0\nv_lshlrev_b32 v5, 4, v0")
    k("s_waitcnt lgkmcnt(0)")
    nt = " nt" if opt.get("ntx", 0) else ""
    k(f"global_load_ushort v10, v4, s[16:17]\nglobal_load_ushort v6, v3, s[8:9]{nt}\nglobal_load_ushort v7, v3, s[10:11]{nt}\nglobal_load_ushort v8, v3, s[12:13]{nt}\nglobal_load_ushort v9, v3, s[14:15]{nt}\nglobal_load_ushort v11, v4, s[18:19]")
    k("global_load_dwordx4 v[12:15], v5, s[22:23]")
    early()
    k(f"s_mul_i32 s27, s26, {3*WB}\ns_add_u32 s27, s27, {PBASE}\ns_mul_i32 s24, s3, {WB}\ns_add_u32 s24, s24, s27\ns_mul_i32 s28, s26, 1600\ns_mul_i32 s29, s28, 0x10001")
    k(f"v_lshl_add_u32 v16, v2, 2, s24\nv_and_b32 v17, 15, v2\nv_mul_u32_u24 v17, {RS}, v17\nv_lshrrev_b32 v18, 4, v2\nv_lshl_add_u32 v17, v18, 4, v17\nv_add_u32 v17, s24, v17")
    k(f"v_mov_b32 v18, 0x3f80\nds_write_b32 v16, v18 offset:{PB}\nv_mov_b32 v18, 0\nv_mov_b32 v19, s28\nds_write_b32 v19, v18 offset:1536")
    k(f"s_mul_i32 s25, s2, 3072\ns_add_u32 s25, s25, {LY.KP}")
    k(f"v_lshlrev_b32 v10, 16, v10\nv_lshlrev_b32 v6, 16, v6\nv_mul_f32 v10, {fbits(LOG2E)}, v10\nv_mul_f32 v6, {fbits(LOG2E)}, v6\nv_exp_f32 v10, v10\nv_exp_f32 v6, v6")
    k("v_lshlrev_b32 v7, 16, v7\nv_cvt_pk_bf16_f32 v6, v6, v10\nv_and_b32 v10, 0xffff0000, v6\nv_lshlrev_b32 v6, 16, v6")
    k(f"v_mul_f32 v6, v6, v10\nv_mul_f32 v7, v7, v10\nv_mul_f32 v6, {fbits(-LOG2E)}, v6\nv_mul_f32 v7, 0.15915494, v7")
    k(f"v_mul_f32 v18, 0x43000000, v6\nv_mul_f32 v19, 0x43000000, v7\nv_fract_f32 v7, v7\nv_fract_f32 v19, v19")
    k.stamp(1)
    W = {n: 20 + 2 * i for i, n in enumerate((1, 2, 4, 8, 3, 5, 6, 7))}
    G = {m: 36 + 2 * (m - 1) for m in range(1, 8)}
    k(f"v_exp_f32 v6, v6\nv_exp_f32 v18, v18\nv_cos_f32 v{W[1]}, v7\nv_sin_f32 v{W[1]+1}, v7\nv_cos_f32 v{G[1]}, v19\nv_sin_f32 v{G[1]+1}, v19")
    k("v_lshlrev_b32 v8, 16, v8\nv_lshlrev_b32 v9, 16, v9\nv_add_f32 v10, v10, v10")
    k(f"v_pk_mul_f32 {vr(W[1],2)}, {vr(W[1],2)}, v[6:7] op_sel_hi:[1,0]\nv_pk_mul_f32 {vr(G[1],2)}, {vr(G[1],2)}, v[18:19] op_sel_hi:[1,0]")
    k("v_pk_mul_f32 v[8:9], v[8:9], v[10:11] op_sel_hi:[1,0]")
    tmp = [50, 52, 54, 56]; ti = [0]; cv = [58, 59, 60, 61]; ci = [0]; chain = [0]
    def cm(d, x, y):
        t = tmp[2 * chain[0] + ti[0] % 2]; ti[0] += 1
        return [f"v_pk_mul_f32 {vr(t,2)}, {vr(x,2)}, {vr(y,2)} op_sel:[0,0] op_sel_hi:[0,1]",
                f"v_pk_fma_f32 {vr(d,2)}, {vr(x,2)}, {vr(y,2)}, {vr(t,2)} op_sel:[1,1,0] op_sel_hi:[1,0,1] neg_lo:[0,1,0]"]
    def wr(x, buf, row, neg=False):
        c = cv[2 * chain[0] + ci[0] % 2]; ci[0] += 1
        return [f"v_cvt_pk_bf16_f32 v{c}, v{x}, {'-' if neg else ''}v{x+1}", f"ds_write_b32 v16, v{c} offset:{buf*PB+row*RS}"]
    def zipl(*ls):
        for i in range(max(len(l) for l in ls)):
            for l in ls:
                if i < len(l): k(l[i])
    GA, GB, VA, VB = 62, 64, 66, 68
    gl = wr(G[1], 1, 1); prev = G[1]
    for m in range(2, 17):
        d = G.get(m, GA if m & 1 else GB)
        gl += cm(d, prev, G[1]); prev = d
        if m < 16: gl += wr(d, 1, m)
    G16 = prev
    chain[0] = 1
    vl = cm(W[2], W[1], W[1]) + cm(W[4], W[2], W[2]) + cm(W[8], W[4], W[4]) + wr(8, 0, 0, True); prev = 8
    for b in range(1, 16):
        d = VA if b & 1 else VB
        vl += cm(d, prev, W[8]) + wr(d, 0, b, True); prev = d
    zipl(vl, gl)
    VF = 72; UF = 88; D = [104, 108, 112]
    for s in range(4): k(f"ds_read_b128 {vr(VF+4*s,4)}, v17 offset:{64*s}\nds_read_b128 {vr(UF+4*s,4)}, v17 offset:{PB+64*s}")
    a = wr(G16, 0, 0) + wr(W[4], 0, 1) + wr(W[2], 0, 9) + cm(W[6], W[2], W[4]) + wr(W[6], 0, 13)
    chain[0] = 0
    b = cm(W[3], W[1], W[2]) + cm(W[5], W[1], W[4]) + cm(W[7], W[3], W[4])
    zipl(a, b)
    def mm(t, uf):
        for s in range(4): k(f"v_mfma_f32_16x16x32_bf16 {vr(D[t],4)}, {vr(uf+4*s,4)}, {vr(VF+4*s,4)}, {'0' if s==0 else vr(D[t],4)}")
    mm(0, UF)
    jobs = [(W[4], m, 0, 1 + m) for m in range(1, 8)] + [(W[2], m, 0, 9 + m) for m in range(1, 4)] + [(W[6], m, 0, 13 + m) for m in range(1, 3)]
    def run(jobs):
        for i in range(0, len(jobs), 2):
            ls = []
            for j, (w, m, buf, row) in enumerate(jobs[i:i+2]):
                d = (GA, VA)[j]; chain[0] = j
                ls.append(cm(d, w, G[m]) + wr(d, buf, row))
            zipl(*ls)
    run(jobs)
    for s in range(4): k(f"ds_read_b128 {vr(UF+4*s,4)}, v17 offset:{64*s}")
    chain[0] = 0; a = wr(W[1], 1, 1) + wr(W[5], 1, 3)
    chain[0] = 1; b = wr(W[3], 1, 2) + wr(W[7], 1, 4)
    zipl(a, b)
    run([(W[6], 3, 1, 0)] + [(W[o], 1, 1, 5 + i) for i, o in enumerate((1, 3, 5, 7))])
    for s in range(4): k(f"ds_read_b128 {vr(32+4*s,4)}, v17 offset:{PB+64*s}")
    mm(1, UF)
    mm(2, 32)
    k("v_lshl_add_u32 v16, v2, 4, s24\nv_lshl_add_u32 v17, v0, 4, s27")
    for i in range(4): k(f"v_add_u32 v{12+i}, s29, v{12+i}")
    for t in range(3): k(f"ds_write_b128 v16, {vr(D[t],4)} offset:{1024*t}")
    for i in range(4): k(f"v_and_b32 v{20+2*i}, 0xffff, v{12+i}\nv_lshrrev_b32 v{21+2*i}, 16, v{12+i}")
    k("v_lshlrev_b32 v11, 16, v11\nv_cmp_eq_u32 vcc, 0, v0\nv_lshl_add_u32 v18, v0, 3, s28\nv_cndmask_b32 v11, 0, v11, vcc")
    k.stamp(2)
    k("s_waitcnt lgkmcnt(0)\ns_barrier")
    for w in range(3): k(f"ds_read_b128 {vr(72+4*w,4)}, v17 offset:{w*WB}")
    k("v_add_f32 v72, v72, v11")
    k("v_pk_add_f32 v[72:73], v[72:73], v[76:77]\nv_pk_add_f32 v[74:75], v[74:75], v[78:79]\nv_pk_add_f32 v[72:73], v[72:73], v[80:81]\nv_pk_add_f32 v[74:75], v[74:75], v[82:83]")
    k(f"v_cvt_pk_bf16_f32 v72, v72, v73\nv_cvt_pk_bf16_f32 v73, v74, v75\nds_write_b64 v18, v[72:73]")
    k("s_waitcnt lgkmcnt(0)\ns_barrier")
    for i in range(8): k(f"ds_read_u16 v{28+i}, v{20+i}")
    for i in range(4): k(f"v_lshl_or_b32 v{12+i}, v{29+2*i}, 16, v{28+2*i}")
    k("buffer_store_dwordx4 v[12:15], v5, s[4:7], s25 offen sc1")
    mid()
    return PBASE + 9 * WB

def spin(k, nm, load, test):
    k(f"s_mov_b32 s67, 0\n{nm}:\n!{load}\n!s_add_u32 s67, s67, 1\n!s_waitcnt vmcnt(0)")
    k(f"!s_cmp_gt_u32 s67, 0xffff\n!s_cbranch_scc1 {nm}_ok")
    for t in test: k("!" + t)
    k(f"!s_cbranch_scc1 {nm}\n{nm}_ok:")
    k.reset()

def kF(opt):
    k = K()
    NT = lambda n: " nt" if opt.get("nt" + n, 0) else ""
    LNF = LY.FLG + 8192; KF = LY.FLG + 16384
    UB = 0; KB = 36864; XB = 61440; SH = XB + 16384; RS = 2112
    LNB = 4864 + 9 * 9216; XS = 10752; SB = LNB + 2 * XS
    k("s_cmp_ge_u32 s2, 256\ns_cbranch_scc1 F_end")
    if opt.get("st"): k("s_lshl_b32 s2, s2, 1")
    k.st_init(opt.get("st"), 0)
    if opt.get("st"): k("s_lshr_b32 s2, s2, 1")
    mksrd(k, 4, 104, LY.WS_END)
    k("v_lshrrev_b32 v1, 6, v0\nv_and_b32 v2, 63, v0\nv_readfirstlane_b32 s62, v1")
    k("s_lshr_b32 s60, s2, 3\ns_mul_i32 s61, s60, 26\ns_lshr_b32 s61, s61, 8\ns_mul_i32 s14, s61, 10\ns_sub_u32 s60, s60, s14\ns_and_b32 s14, s2, 7\ns_mul_i32 s14, s14, 10\ns_add_u32 s60, s60, s14")
    k("s_cmp_ge_u32 s62, 9\ns_cbranch_scc1 F_side\ns_cmp_ge_u32 s2, 240\ns_cbranch_scc1 F_init")
    k("s_mul_i32 s26, s62, 86\ns_lshr_b32 s26, s26, 8\ns_mul_i32 s3, s26, 3\ns_sub_u32 s3, s62, s3\ns_mul_i32 s14, s61, 3\ns_add_u32 s14, s14, s26\ns_cmp_eq_u32 s14, 8\ns_cbranch_scc1 F_idle")
    k("s_lshl_b32 s2, s60, 3\ns_add_u32 s2, s2, s14\ns_lshl_b32 s14, s3, 6\nv_add_u32 v0, s14, v2")
    AU = 120; XA = 130; HV = 131; UV = 156; L16 = 157; UW = 158; KW = 159; XW = 160; ZA = 161; UL = 88
    MK = {n: 132 + 4 * i for i, n in enumerate("abcoes")}; MK["d"] = MK["b"]
    def early(skip8=False):
        k("v_mov_b32 v21, s62\nv_lshl_add_u32 v20, v21, 6, v2")
        k(f"v_lshrrev_b32 v24, 3, v2\nv_and_b32 v25, 7, v2\nv_lshrrev_b32 v26, 4, v2\nv_and_b32 v27, 1, v21\nv_lshl_add_u32 v27, v27, 2, v26\nv_xor_b32 v27, v25, v27\nv_mul_u32_u24 v24, 10240, v24\nv_lshl_add_u32 v{UV}, v27, 4, v24")
        k(f"s_lshl_b32 s32, s60, 7\ns_add_u32 s64, s32, {KF}\ns_mul_i32 s56, s62, 81920\ns_add_u32 s32, s32, s56\ns_lshl_b32 s56, s62, 10")
        k(f"v_lshlrev_b32 v{L16}, 4, v2\nv_add_u32 v{UW}, s56, v{L16}\nv_add_u32 v{XW}, {XB}, v{UW}\nv_lshlrev_b32 v{ZA}, 3, v20")
        k(f"s_lshl_b32 s52, s60, 3\ns_add_u32 s52, s52, s62\ns_mul_i32 s52, s52, 3072\ns_add_u32 s52, s52, {LY.KP}\ns_mul_i32 s53, s62, 3072\ns_add_u32 s53, s53, {KB}\nv_add_u32 v{KW}, s53, v{L16}")
        k("s_lshl_b32 s65, s61, 2\ns_add_u32 s65, s65, s64\ns_lshl_b32 s56, s26, 2\ns_add_u32 s64, s64, s56")
        for d, c in ((40, "s_cmp_ge_u32 s61, 1"), (44, "s_cmp_eq_u32 s61, 2"), (48, "s_cmp_eq_u32 s61, 0")):
            k(f"s_mov_b32 s{d}, s4\ns_mov_b32 s{d+1}, s5\n{c}\ns_cselect_b32 s{d+2}, s6, 0\ns_mov_b32 s{d+3}, s7")
        k("s_lshl_b32 s57, s61, 9\ns_add_u32 s57, s57, 512\ns_cmp_eq_u32 s61, 0\ns_cselect_b32 s57, 0, s57")
        k(f"s_mul_i32 s36, s57, 1280\ns_add_u32 s36, s36, s32\ns_add_u32 s36, s36, {LY.XT}\ns_add_u32 s37, s36, {8*81920}")
        k(f"s_add_u32 s33, s32, {8*81920}\ns_add_u32 s34, s32, {16*81920}\ns_add_u32 s35, s32, {24*81920}")
        k(f"v_add_u32 v22, s57, v20\nv_lshlrev_b32 v{HV}, 4, v22")
        k(f"s_lshl_b32 s54, s60, 15\ns_add_u32 s54, s54, {LY.H}\ns_add_u32 s55, s54, 8192")
        if skip8: k("s_cmp_eq_u32 s62, 8\ns_cbranch_scc1 F_e8")
        k("v_and_b32 v23, 15, v2\nv_lshl_add_u32 v22, v23, 1, v26")
        for m in range(5):
            off = 32 - 2 + 4 * m if m < 4 else 32 - 3
            k(f"v_add_u32 v25, {off}, v22\nv_bfe_u32 v24, v25, 1, 3\nv_xor_b32 v24, v24, v21\nv_lshlrev_b32 v25, 7, v25\nv_lshl_add_u32 v{AU+m}, v24, 4, v25")
        k(f"v_sub_u32 v25, 15, v23\nv_lshrrev_b32 v25, 1, v25\nv_lshl_add_u32 v25, v26, 2, v25\nv_and_b32 v24, 1, v23\nv_xor_b32 v24, 1, v24\nv_mul_u32_u24 v24, 464, v24\nv_add_u32 v25, v25, v24\nv_lshl_add_u32 v{AU+5}, v25, 2, s53\nv_add_u32 v{AU+6}, 512, v{AU+5}")
        k(f"v_sub_u32 v25, 295, v23\nv_lshl_add_u32 v25, v26, 2, v25\nv_lshl_add_u32 v{AU+7}, v25, 2, s53")
        k(f"s_mul_i32 s56, s62, {RS}\ns_add_u32 s56, s56, {SH}\nv_lshlrev_b32 v25, 5, v23\nv_lshl_add_u32 v25, v26, 3, v25\nv_add_u32 v{AU+8}, s56, v25")
        k(f"v_bfe_u32 v25, v2, 2, 2\nv_mul_u32_u24 v25, {RS}, v25\nv_and_b32 v24, 3, v2\nv_lshl_add_u32 v25, v24, 3, v25\nv_lshrrev_b32 v24, 4, v20\nv_lshl_add_u32 v25, v24, 5, v25\nv_add_u32 v{AU+9}, {SH}, v25")
        F = 40
        k("v_lshlrev_b32 v25, 3, v26\nv_sub_u32 v25, v23, v25\nv_add_u32 v24, 15, v25\nv_add_u32 v25, 16, v25\nv_and_b32 v25, 0xffff, v25\nv_lshl_or_b32 v25, v24, 16, v25\ns_mov_b32 s39, 0x3f803f80")
        for c in range(3, 21): k(f"v_pk_sub_i16 v{F+c-3}, v25, {c} op_sel_hi:[1,0]")
        for c in range(3, 21): k(f"v_pk_ashrrev_i16 v{F+c-3}, 15, v{F+c-3} op_sel_hi:[0,1]")
        win = dict(a=(3, 6), b=(6, 11), c=(11, 14), o=(5, 12), e=(4, 13))
        for n in "abcoe":
            lo, hi = win[n]
            for p in range(4): k(f"v_bitop3_b32 v{MK[n]+p}, v{F+lo+2*p-3}, v{F+hi+2*p-3}, s39 bitop3:0x28")
        for p in range(4): k(f"v_xor_b32 v{MK['s']+p}, v{F+2*p}, v{F+2+2*p}")
        k(f"v_lshrrev_b32 v25, 1, v26\nv_lshl_add_u32 v25, v23, 1, v25\nv_lshlrev_b32 v25, 7, v25\nv_and_b32 v24, 7, v23\nv_xor_b32 v24, v24, v21\nv_lshl_add_u32 v25, v24, 4, v25\nv_and_b32 v24, 1, v26\nv_lshl_add_u32 v25, v24, 3, v25\nv_add_u32 v{XA}, {XB}, v25")
    def early8():
        early(True); k("F_e8:")
    def uxl():
        for i, (srd, so) in enumerate(((4, 32), (4, 33), (4, 36), (40, 34), (44, 35), (48, 37))):
            k(f"!buffer_load_dwordx4 {vr(UL+4*i,4)}, v{UV}, s[{srd}:{srd+3}], s{so} offen sc1")
    def mid():
        k("s_cmp_eq_u32 s62, 8\ns_cbranch_scc1 F_m8\nF_b:")
    assert kgen(k, opt, 4864, early8, mid) == LNB
    k("v_mov_b32 v4, 1\nv_mov_b32 v6, 0\nv_mov_b32 v7, 0\ns_mov_b32 s63, 0")
    k("s_waitcnt vmcnt(0)\ns_barrier")
    k("s_cmp_lg_u32 s62, 0\ns_cbranch_scc1 F_nf\n!s_mov_b64 exec, 1\n!buffer_store_dword v4, off, s[4:7], s65 sc1\n!s_mov_b64 exec, -1\nF_nf:")
    k.stamp(3)
    uxl()
    k(f"ds_write_b64 v{ZA}, v[6:7]")
    P1 = opt.get("kp1", 1)
    for i, (a, o) in enumerate(((UW, 4096), (UW, 12288), (XW, 0), (UW, 20480), (UW, 28672), (XW, 8192))):
        if i == P1: k("!buffer_load_dword v5, off, s[4:7], s64 sc1")
        k(f"!s_waitcnt vmcnt({5-i+(i>=P1)})\nds_write_b128 v{a}, {vr(UL+4*i,4)} offset:{o}")
    KL = 76
    k("!s_waitcnt vmcnt(0)\nv_readfirstlane_b32 s66, v5\ns_cmp_lg_u32 s66, 1\ns_cbranch_scc1 F_k0")
    for j in range(3): k(f"!buffer_load_dwordx4 {vr(KL+4*j,4)}, v{L16}, s[4:7], s52 offen offset:{1024*j} sc1")
    k("s_mov_b32 s63, 1\nF_k0:\ns_waitcnt lgkmcnt(0)\ns_barrier")
    k.stamp(4); k("s_waitcnt lgkmcnt(0)" if k.on else "")
    k("F_dry:")
    k("s_cmp_eq_u32 s61, 1\ns_cbranch_scc1 B_t1\ns_cmp_eq_u32 s61, 2\ns_cbranch_scc1 B_t2")
    for third, tiles in enumerate(([0, 1, 2, 3], [4, 5], [6, 7])):
        k(f"B_t{third}:"); k.reset()
        ACC = {T: 8 + 4 * i for i, T in enumerate(tiles)}
        pool = [r for r in range(8 + 4 * len(tiles), 120, 4) if not KL <= r < KL + 12] + [164]
        def ld(v, r):
            if v[0] == "B":
                b = v[1]; return [f"ds_read_b128 {vr(r,4)}, v{AU+b%4} offset:{(b//4)*2048}"] if b >= 0 else [f"ds_read_b128 {vr(r,4)}, v{NEG+b%4} offset:{(b//4+2)*2048 if b%4 else 0}"]
            if v[0] == "B24": return [f"ds_read_b128 {vr(r,4)}, v{AU+4} offset:{v[1]*4096}"]
            if v[0] == "A":
                o = 16 * (16 - v[1]); a = AU + 5
                if o >= 128: o -= 128; a = AU + 6
            else:
                o = {"oe": 112, "ab": 128, "cd": 176}[v[0]] - 16 * v[1]; a = AU + 7
            return [f"ds_read2_b32 {vr(r,2)}, v{a} offset0:{o} offset1:{o+1}", f"ds_read2_b32 {vr(r+2,2)}, v{a} offset0:{o+2} offset1:{o+3}"]
        if third == 0:
            NEG = pool.pop()
            for m in range(4): k(f"v_subrev_u32 v{NEG+m}, {4096 if m else 2048}, v{AU+m}")
        full = []
        for q in range(17):
            for T in reversed(tiles):
                if 8 * T - q >= -7: full.append(("M", T, ("A", q), ("B", 8 * T - q)))
        if third == 0: full.sort(key=lambda o: -o[3][1])
        sops = []; tops = []
        for Tp in range(8):
            for pr, Ds in (("ab", (2, 3, 4)), ("cd", (2, 3, 4)), ("oe", (4, 5, 6, 7))):
                us = [T for T in tiles if T - Tp in Ds]
                if not us: continue
                sops.append((pr, Tp))
                for T in us: tops.append(("M", T, ("P", pr, Tp), (pr, T - Tp)))
        spec = [("M", T, ("spec",), ("B", 8 * (T - 4))) for T in tiles if T >= 4]
        ops = []
        for i, (pr, Tp) in enumerate(sops):
            for n in pr: ops.append(("S", n, Tp, ("B24", Tp) if n in "de" else ("B", 8 * Tp, "s")))
            if i: ops.append(("cvt",) + sops[i - 1])
        ops.append(("K",)); ops.append(("cvt",) + sops[-1])
        ops.insert(min(opt.get("kp", 2), len(ops) - 2), ("poll",))
        ops += tops + spec + full
        KI = ops.index(("K",))
        def vals(o):
            if o[0] == "M": return [v for v in o[2:] if v[0] not in ("P", "spec")]
            if o[0] == "S": return [o[3]]
            return []
        last = {}
        for i, o in enumerate(ops):
            for v in vals(o): last[v] = i
            if o[0] == "M" and o[2][0] == "P": last[o[2]] = i
        reg = {}; LA = opt.get("bla", 5); mn = [99]
        def prefetch(i, cur):
            if i < len(ops) and not (cur < KI < i):
                for v in vals(ops[i]):
                    if v not in reg:
                        reg[v] = pool.pop(0); mn[0] = min(mn[0], len(pool))
                        for s in ld(v, reg[v]): k(s)
        for i in range(LA): prefetch(i, 0)
        for i, T in enumerate(tiles): k(f"ds_read_b64 {vr(ACC[T]+2,2)}, v{XA} offset:{4096*i}")
        specdone = False
        for i, o in enumerate(ops):
            if o[0] == "poll":
                k(f"s_waitcnt lgkmcnt(0)\ns_cmp_lg_u32 s63, 0\ns_cbranch_scc1 F_k1{third}")
                spin(k, f"F_pk{third}", "buffer_load_dword v5, off, s[4:7], s64 sc1", ["v_readfirstlane_b32 s66, v5", "s_cmp_lg_u32 s66, 1"])
                for j in range(3): k(f"!buffer_load_dwordx4 {vr(KL+4*j,4)}, v{L16}, s[4:7], s52 offen offset:{1024*j} sc1")
                k(f"F_k1{third}:")
            elif o[0] == "K":
                for T in tiles:
                    a = ACC[T]
                    k(f"v_lshlrev_b32 v{a}, 16, v{a+2}\nv_and_b32 v{a+1}, 0xffff0000, v{a+2}\nv_lshlrev_b32 v{a+2}, 16, v{a+3}\nv_and_b32 v{a+3}, 0xffff0000, v{a+3}")
                for j in range(3): k(f"s_waitcnt vmcnt({2-j})\nds_write_b128 v{KW}, {vr(KL+4*j,4)} offset:{1024*j}")
                k.stamp(5); k("s_waitcnt lgkmcnt(0)" if k.on else "")
                pool += [KL, KL + 4, KL + 8]
                if third: k(f"v_mov_b32 v4, s53\nds_read_b32 v4, v4 offset:{456*4}")
                for j in range(1, LA): prefetch(i + j, i)
            elif o[0] == "S":
                r = pool.pop(0); reg[("S", o[1], o[2])] = r; mn[0] = min(mn[0], len(pool))
                k(f"v_mfma_f32_16x16x32_bf16 {vr(r,4)}, {vr(reg[o[3]],4)}, {vr(MK[o[1]],4)}, 0")
            elif o[0] == "cvt":
                r0 = reg.pop(("S", o[1][0], o[2])); r1 = reg.pop(("S", o[1][1], o[2]))
                for p in range(4): k(f"v_cvt_pk_bf16_f32 v{r0+p}, v{r0+p}, v{r1+p}")
                reg[("P", o[1], o[2])] = r0; pool.append(r1)
            else:
                T = o[1]
                if o[2][0] == "spec":
                    if not specdone:
                        for p in range(4): k(f"v_and_b32 v{MK['s']+p}, v{MK['s']+p}, v4")
                        specdone = True
                    a = MK["s"]
                else: a = reg[o[2]]
                k(f"v_mfma_f32_16x16x32_bf16 {vr(ACC[T],4)}, {vr(a,4)}, {vr(reg[o[3]],4)}, {vr(ACC[T],4)}")
            for v in list(reg):
                if last.get(v) == i: pool.append(reg.pop(v))
            prefetch(i + LA, i)
        print("third", third, "ops", len(ops), "S", 2 * len(sops), "min pool", mn[0])
        for i, T in enumerate(tiles):
            a = ACC[T]
            k(f"v_cvt_pk_bf16_f32 v{a}, v{a}, v{a+1}\nv_cvt_pk_bf16_f32 v{a+1}, v{a+2}, v{a+3}\nds_write_b64 v{AU+8}, {vr(a,2)} offset:{512*i}")
        if opt.get("dry"): k("s_cbranch_execz F_end")
        k("s_waitcnt lgkmcnt(0)\ns_barrier")
        nr = len(tiles) // 2
        for rnd in range(nr):
            k(f"ds_read_b64_tr_b16 {vr(80+4*rnd,2)}, v{AU+9} offset:{1024*rnd}\nds_read_b64_tr_b16 {vr(82+4*rnd,2)}, v{AU+9} offset:{1024*rnd+4*RS}")
        for rnd in range(nr):
            k(f"buffer_store_dwordx4 {vr(80+4*rnd,4)}, v{HV}, s[4:7], s{54+rnd} offen sc1")
        k.end()
    k("F_idle:"); k.reset()
    k("s_cmp_eq_u32 s62, 8\ns_cbranch_scc1 F_end\ns_waitcnt lgkmcnt(0)")
    early(); k("s_barrier\ns_barrier\ns_branch F_b")
    k("F_m8:"); k.reset()
    k("s_waitcnt vmcnt(0)\ns_barrier")
    k("s_mov_b32 s63, 1\ns_mov_b64 exec, 0\ns_branch F_dry" if opt.get("dry") else "s_endpgm")
    k("F_init:"); k.reset()
    k("s_cmp_lg_u32 s2, 255\ns_cbranch_scc1 F_end\ns_cmp_lg_u32 s62, 0\ns_cbranch_scc1 F_end")
    mksrd(k, 8, 96, 256)
    k(f"v_mov_b32 v8, 0\nv_mov_b32 v9, 0\nv_mov_b32 v10, 0\nv_mov_b32 v11, 0\nv_lshlrev_b32 v4, 4, v2\nv_lshlrev_b32 v5, 7, v2\ns_mov_b32 s12, {LY.FLG}\ns_mov_b32 s15, {LNF}\ns_mov_b32 s13, {KF}\ns_mov_b32 s14, {KF+2048}\nv_mov_b32 v6, 1\ns_waitcnt lgkmcnt(0)")
    k("buffer_store_dwordx4 v[8:11], v5, s[4:7], s15 offen sc1\nbuffer_store_dwordx4 v[8:11], v5, s[4:7], s13 offen sc1\nbuffer_store_dwordx4 v[8:11], v5, s[4:7], s14 offen sc1")
    k("s_waitcnt vmcnt(0)\ns_mov_b64 exec, 1\nbuffer_store_dword v6, off, s[8:11], 0 sc1\ns_mov_b64 exec, -1")
    k("buffer_store_dwordx4 v[8:11], v5, s[4:7], s12 offen sc1\ns_endpgm")
    k("F_side:"); k.reset()
    k("v_lshlrev_b32 v9, 4, v2\ns_mov_b32 s30, 0x3f803f80\ns_cmp_lg_u32 s62, 9\ns_cbranch_scc1 F_shuf")
    if opt.get("prio", 3): k(f"s_setprio {opt.get('prio', 3)}")
    mksrd(k, 8, 0, 2621440); mksrd(k, 16, 96, 256)
    if opt.get("pf", 0): k("s_load_dwordx4 s[40:43], s[0:1], 64\ns_load_dwordx2 s[44:45], s[0:1], 80")
    k("v_lshrrev_b32 v3, 3, v2\nv_and_b32 v4, 7, v2\nv_lshlrev_b32 v4, 4, v4\nv_mul_u32_u24 v5, 1280, v3\nv_add_u32 v5, v5, v4\ns_mul_i32 s12, s2, 10240")
    X = 16; TR = 64
    for j in range(10): k(f"buffer_load_dwordx4 {vr(X+4*j,4)}, v5, s[8:11], s12 offen offset:{128*j}{NT('x')}")
    k(f"v_mul_u32_u24 v6, 1344, v3\nv_add_u32 v6, v6, v4\nv_add_u32 v6, {LNB}, v6")
    k(f"v_bfe_u32 v7, v2, 2, 2\nv_mul_u32_u24 v7, 1344, v7\nv_and_b32 v8, 3, v2\nv_lshl_add_u32 v7, v8, 3, v7\nv_bfe_u32 v8, v2, 4, 2\nv_lshl_add_u32 v7, v8, 5, v7\nv_add_u32 v7, {LNB}, v7")
    k(f"s_add_u32 s13, s12, 4096\ns_add_u32 s14, s12, 8192\ns_add_u32 s20, s12, {LY.XT}\ns_add_u32 s21, s13, {LY.XT}\ns_add_u32 s22, s14, {LY.XT}\ns_and_b32 s23, s2, 63\ns_lshl_b32 s23, s23, 7\ns_lshr_b32 s24, s2, 6\ns_lshl_b32 s24, s24, 2\ns_add_u32 s23, s23, s24\ns_add_u32 s23, s23, {LNF}\ns_mov_b32 s24, {LNF}\nv_lshlrev_b32 v8, 7, v2")
    k("v_mov_b32 v10, 0\nv_mov_b32 v11, 0\nv_mov_b32 v12, 0\nv_mov_b32 v13, 0")
    for q in range(40):
        k(f"v_dot2c_f32_bf16 v{10+2*(q&1)}, s30, v{X+q}\nv_dot2c_f32_bf16 v{11+2*(q&1)}, v{X+q}, v{X+q}")
        if q % 4 == 3: k(f"ds_write_b128 v6, {vr(X+q-3,4)} offset:{XS+32*(q-3)}")
    k.stamp(1)
    tr = lambda r, o: f"ds_read_b64_tr_b16 {vr(r,2)}, v7 offset:{o}\nds_read_b64_tr_b16 {vr(r+2,2)}, v7 offset:{o+4*1344}"
    k("v_add_f32 v10, v10, v12\nv_add_f32 v11, v11, v13")
    for j in range(10): k(tr(TR + 40 + 4 * j, XS + 128 * j))
    for m in ("quad_perm:[1,0,3,2]", "quad_perm:[2,3,0,1]", "row_half_mirror"):
        k(f"v_add_f32_dpp v10, v10, v10 {m} row_mask:0xf bank_mask:0xf\nv_add_f32_dpp v11, v11, v11 {m} row_mask:0xf bank_mask:0xf")
    k(f"v_mul_f32 v10, {fbits(-1/640)}, v10\nv_mul_f32 v11, {fbits(1/640)}, v11\nv_fma_f32 v11, -v10, v10, v11\nv_max_f32 v11, 0, v11")
    k(f"v_cvt_pk_bf16_f32 v11, v10, v11\nv_lshlrev_b32 v10, 16, v11\nv_and_b32 v11, 0xffff0000, v11\nv_add_f32 v11, {fbits(1e-5)}, v11")
    k("v_cvt_pk_bf16_f32 v11, v11, v11\nv_and_b32 v11, 0xffff0000, v11\nv_sqrt_f32 v11, v11\nv_cvt_pk_bf16_f32 v11, v11, v11\nv_and_b32 v11, 0xffff0000, v11")
    k("v_rcp_f32 v12, v11\nv_mul_f32 v14, v10, v12")
    for j in range(10):
        for q in range(4): k(f"v_lshlrev_b32 v{56+2*q}, 16, v{X+4*j+q}\nv_and_b32 v{57+2*q}, 0xffff0000, v{X+4*j+q}")
        for q in range(4): k(f"v_pk_fma_f32 {vr(56+2*q,2)}, {vr(56+2*q,2)}, v[12:13], v[14:15] op_sel_hi:[1,0,0]")
        for q in range(4): k(f"v_cvt_pk_bf16_f32 v{X+4*j+q}, v{56+2*q}, v{57+2*q}")
        k(f"ds_write_b128 v6, {vr(X+4*j,4)} offset:{128*j}")
        k(tr(TR + 4 * j, 128 * j))
        k(f"buffer_store_dwordx4 {vr(TR+40+4*j,4)}, v9, s[4:7], s{20+j//4} offen offset:{1024*(j%4)} sc1")
        if j: k(f"buffer_store_dwordx4 {vr(TR+4*j-4,4)}, v9, s[4:7], s{12+(j-1)//4} offen offset:{1024*((j-1)%4)} sc1")
    k(f"buffer_store_dwordx4 {vr(TR+36,4)}, v9, s[4:7], s14 offen offset:1024 sc1\nv_mov_b32 v3, 1")
    k.stamp(2)
    spin(k, "F_go", "buffer_load_dword v10, off, s[16:19], 0 sc1", ["v_readfirstlane_b32 s66, v10", "s_cmp_lg_u32 s66, 1"])
    k("s_mov_b64 exec, 1\nbuffer_store_dword v3, off, s[4:7], s23 sc1\ns_mov_b64 exec, -1")
    if opt.get("pf", 0):
        k("s_mul_i32 s25, s2, 7680\nv_min_u32 v4, 59, v2\nv_lshlrev_b32 v4, 7, v4\nv_add_u32 v4, s25, v4")
        for i in range(3): k(f"global_load_dword v{16+i}, v4, s[{40+2*i}:{41+2*i}]")
    k.stamp(3)
    k("s_cmp_ge_u32 s2, 240\ns_cbranch_scc1 F_send\ns_barrier\ns_barrier")
    k.stamp(4)
    spin(k, "F_ln", "buffer_load_dwordx4 v[12:15], v8, s[4:7], s24 offen sc1",
         ["v_and_b32 v12, v12, v13", "v_and_b32 v14, v14, v15", "v_and_b32 v12, v12, v14", "v_cmp_ne_u32 vcc, 1, v12", "s_nop 1", "s_cmp_lg_u64 vcc, 0"])
    k.stamp(5)
    k("s_barrier\nF_send:")
    k.end()
    k("F_shuf:"); k.reset()
    k("s_load_dwordx4 s[40:43], s[0:1], 64\ns_load_dwordx2 s[44:45], s[0:1], 80")
    k("s_getpc_b64 s[20:21]\nA_pc0:\ns_add_u32 s20, s20, kA_kernel-A_pc0\ns_addc_u32 s21, s21, -1")
    k("s_lshr_b32 s22, s2, 3\ns_lshl_b32 s22, s22, 1\ns_add_u32 s22, s22, s62\ns_sub_u32 s22, s22, 10\ns_lshl_b32 s22, s22, 12\nv_lshlrev_b32 v3, 6, v2\nv_add_u32 v4, s22, v3")
    k("v_min_u32 v4, code_end-kA_kernel, v4\nglobal_load_dword v20, v4, s[20:21]")
    LD = 64; FR = 16
    k(f"v_lshrrev_b32 v4, 3, v2\nv_and_b32 v5, 7, v2\ns_sub_u32 s20, s62, 10\ns_mul_i32 s20, s20, 20480\ns_add_u32 s20, s20, {SB}")
    k("s_mov_b32 s26, 1966080\ns_mov_b32 s27, 0x00020000\ns_mov_b32 s34, 1966080\ns_mov_b32 s35, 0x00020000")
    SW = opt.get("shw", 4); SP = opt.get("shp", 5)
    k("s_cmp_eq_u32 s2, 255\ns_cbranch_scc1 F_send2\ns_cmp_eq_u32 s62, 11\ns_cbranch_scc1 F_wd\ns_cmp_lt_u32 s2, 63\ns_cbranch_scc1 F_send2")
    k("s_sub_u32 s21, s2, 63\ns_and_b32 s22, s21, 7\ns_lshr_b32 s21, s21, 3\ns_mul_i32 s23, s22, 5")
    k("s_mov_b32 s24, s40\ns_mov_b32 s25, s41\ns_mov_b32 s32, s42\ns_mov_b32 s33, s43")
    k("v_and_b32 v10, 2, v4\nv_xor_b32 v10, v10, v5\nv_mul_u32_u24 v11, 3072, v4\nv_lshl_add_u32 v10, v10, 4, v11\nv_xor_b32 v11, 64, v10")
    k(f"s_mul_i32 s36, s23, {16*3072}\ns_lshl_b32 s37, s21, 7\ns_add_u32 s36, s36, s37")
    k("v_bfe_u32 v3, v2, 4, 1\nv_lshrrev_b32 v6, 5, v2\nv_bfe_u32 v7, v2, 2, 2\nv_and_b32 v8, 3, v2")
    k("v_mul_u32_u24 v48, 2112, v3\nv_lshl_add_u32 v48, v6, 10, v48\nv_lshl_add_u32 v48, v7, 7, v48\nv_lshl_add_u32 v48, v8, 3, v48\nv_and_b32 v7, 2, v7\nv_lshl_add_u32 v48, v7, 4, v48\nv_add_u32 v48, s20, v48")
    for w in range(1, 4): k(f"v_xor_b32 v{48+w}, {32*w}, v48")
    for w in range(4): k(f"v_mov_b32 v{52+w}, 0")
    if SW >= 0: k("s_waitcnt vmcnt(0)" + "\ns_barrier" * SW)
    k.stamp(1)
    for t in range(5):
        for h in range(2):
            if t or h: k(f"s_add_u32 s36, s36, {8*3072}")
            for g in range(2): k(f"s_add_u32 m0, s20, {4096*t+2048*g+1024*h}\nbuffer_load_dwordx4 v{10+g}, s[{24+8*g}:{27+8*g}], s36 offen{NT('w')} lds")
        k.tag(f"w{t}")
    k(f"s_mul_i32 s47, s21, {4*41984}\ns_lshl_b32 s36, s23, 10\ns_add_u32 s47, s47, {LY.W1P}\ns_add_u32 s36, s36, s47\ns_add_u32 s37, s36, 41984\ns_add_u32 s38, s37, 41984\ns_add_u32 s39, s38, 41984\nv_add_u32 v12, 4096, v9")
    k("s_barrier\n" * (SP - max(SW, 0)) + f"s_setprio {opt.get('sprio', 3)}")
    k.stamp(2)
    def rd(t):
        k.waitvm(f"w{t}")
        for w in range(4):
            for e in range(2): k(f"ds_read_b64_tr_b16 {vr(LD+16*t+4*w+2*e,2)}, v{48+w} offset:{4096*t+512*e}")
    rd(0)
    for t in range(5):
        if t < 4: rd(t + 1)
        for w in range(4): k(f"buffer_store_dwordx4 {vr(LD+16*t+4*w,4)}, v{9 if t < 4 else 12}, s[4:7], s{36+w} offen offset:{1024*(t%4)} sc1")
    for t in range(5):
        for q in range(4):
            for w in range(4): k(f"v_dot2c_f32_bf16 v{52+w}, s30, v{LD+16*t+4*w+q}")
    k("v_and_b32 v4, 31, v2\nv_lshlrev_b32 v4, 4, v4\nv_mul_u32_u24 v5, 41984, v6\nv_add_u32 v4, v4, v5")
    k(f"s_lshr_b32 s36, s22, 2\ns_lshl_b32 s36, s36, 9\ns_and_b32 s37, s22, 3\ns_lshl_b32 s37, s37, 2\ns_add_u32 s36, s36, s37\ns_add_u32 s36, s36, s47\ns_add_u32 s36, s36, 40960\ns_add_u32 s37, s36, {2*41984}")
    for w in (0, 2):
        a = 52 + w
        k(f"v_permlane32_swap_b32 v{a}, v{a+1}\nv_add_f32 v{a}, v{a}, v{a+1}\nv_cvt_pk_bf16_f32 v{a+1}, v{a}, v{a}\nv_and_b32 v{a+1}, 0xffff0000, v{a+1}\nv_sub_f32 v{a}, v{a}, v{a+1}\nv_cvt_pk_bf16_f32 v{a}, v{a+1}, v{a}")
        k(f"buffer_store_dword v{a}, v4, s[4:7], s{36+w//2} offen")
    k("F_send2:")
    k.end()
    k("F_wd:"); k.reset()
    k("s_cmp_lt_u32 s2, 15\ns_cbranch_scc1 F_send2\ns_waitcnt lgkmcnt(0)")
    k(f"s_mov_b32 s24, s44\ns_mov_b32 s25, s45\ns_mov_b32 s39, {LY.WDP}")
    k("v_and_b32 v10, 2, v4\nv_lshlrev_b32 v10, 1, v10\nv_bfe_u32 v11, v4, 2, 1\nv_lshl_add_u32 v10, v11, 1, v10\nv_xor_b32 v10, v10, v5\nv_mul_u32_u24 v11, 1280, v4\nv_lshl_add_u32 v10, v10, 4, v11")
    k("s_sub_u32 s21, s2, 15\ns_mul_i32 s50, s21, 13108\ns_lshr_b32 s50, s50, 16\ns_mul_i32 s23, s50, 5\ns_sub_u32 s51, s21, s23\ns_lshl_b32 s51, s51, 1")
    k(f"s_mul_i32 s36, s50, {32*1280}\ns_lshl_b32 s37, s51, 7\ns_add_u32 s36, s36, s37")
    k("v_bfe_u32 v7, v2, 2, 2\nv_and_b32 v8, 3, v2\nv_lshrrev_b32 v6, 5, v2\nv_bfe_u32 v3, v2, 4, 1")
    k("v_lshlrev_b32 v48, 11, v6\nv_lshl_add_u32 v48, v3, 9, v48\nv_lshl_add_u32 v48, v7, 7, v48\nv_add_u32 v48, s20, v48")
    k("v_and_b32 v7, 2, v7\nv_lshlrev_b32 v7, 5, v7\nv_lshl_add_u32 v7, v3, 5, v7")
    if SW >= 0: k("s_waitcnt vmcnt(0)" + "\ns_barrier" * SW)
    k.stamp(1)
    for i in range(4):
        if i: k(f"s_add_u32 s36, s36, {8*1280}")
        for t in range(2): k(f"s_add_u32 m0, s20, {4096*t+1024*i-128*t}\nbuffer_load_dwordx4 v10, s[24:27], s36 offen offset:{128*t}{NT('w')} lds")
    for t in range(2):
        for vv in range(2):
            k(f"s_lshl_b32 s36, s51, 1\ns_add_u32 s36, s36, {2*t+vv}\ns_mul_i32 s37, s36, 52\ns_lshr_b32 s37, s37, 8\ns_mul_i32 s37, s37, 5\ns_sub_u32 s36, s36, s37\ns_cmp_eq_u32 s36, 2\ns_cselect_b32 s36, 3, 4\ns_cselect_b32 s37, 32, 8")
            a = 49 + 4 * t + 2 * vv
            k(f"v_lshlrev_b32 v{a}, s36, v8\nv_add_u32 v{a}, {64*vv}, v{a}\nv_add_u32 v{a+1}, s37, v{a}\nv_xor_b32 v{a}, v{a}, v7\nv_xor_b32 v{a+1}, v{a+1}, v7\nv_add_u32 v{a}, v{a}, v48\nv_add_u32 v{a+1}, v{a+1}, v48")
        for i in range(4):
            k(f"s_lshl_b32 s36, s51, 2\ns_add_u32 s36, s36, {4*t+i}\ns_mul_i32 s37, s36, 52\ns_lshr_b32 s37, s37, 8\ns_mul_i32 s38, s37, 5\ns_sub_u32 s36, s36, s38")
            k(f"s_and_b32 s38, s37, 1\ns_sub_u32 s36, s36, s38\ns_cselect_b32 s36, 4, s36\ns_mul_i32 s37, s37, 48\ns_add_u32 s37, s37, s50\ns_mul_i32 s37, s37, 5\ns_add_u32 s37, s37, s36\ns_lshl_b32 s37, s37, 10\ns_add_u32 s{52+4*t+i}, s37, s39")
    k("s_barrier\n" * (SP - max(SW, 0)) + f"s_setprio {opt.get('sprio', 3)}")
    k.stamp(2)
    k("s_waitcnt vmcnt(0)")
    for t in range(2):
        for i in range(4):
            for e2 in range(2): k(f"ds_read_b64_tr_b16 {vr(LD+16*t+4*i+2*e2,2)}, v{49+4*t+i} offset:{4096*t+1024*e2}")
    for i in range(8): k(f"buffer_store_dwordx4 {vr(LD+4*i,4)}, v9, s[4:7], s{52+i} offen sc1")
    k.end()
    k("F_end:\ns_endpgm")
    data = [".p2align 7", "A_tab:"] + [f".long 0x{x:08x}" for x in LY.gather_table(0)]
    return dict(name="kA_kernel", code=k.finish(), data=data, grid=256, block=768, lds=SB + 28672, vgpr=opt.get("nv", 168), agpr=0)
```

```python
from asmlib import K, vr
import layout as LY
import math
from gen_cd import fbits
from gen_ab import mksrd, LOG2E
BIG = 0x7000000

def kgen(k, opt, PBASE, early, mid):
    RS = 288; PB = 16 * RS; WB = 2 * PB
    k("s_load_dwordx8 s[8:15], s[0:1], 8\ns_load_dwordx4 s[16:19], s[0:1], 40")
    k(f"s_mul_i32 s20, s2, 384\nv_lshlrev_b32 v3, 1, v0\nv_add_u32 v3, s20, v3\ns_lshl_b32 s21, s2, 1\nv_mov_b32 v4, s21")
    k("s_getpc_b64 s[22:23]\nA_pc1:\ns_add_u32 s22, s22, A_tab-A_pc1\ns_addc_u32 s23, s23, 0\nv_lshlrev_b32 v5, 4, v0")
    k("s_waitcnt lgkmcnt(0)")
    nt = " nt" if opt.get("ntx", 0) else ""
    k(f"global_load_ushort v10, v4, s[16:17]\nglobal_load_ushort v6, v3, s[8:9]{nt}\nglobal_load_ushort v7, v3, s[10:11]{nt}\nglobal_load_ushort v8, v3, s[12:13]{nt}\nglobal_load_ushort v9, v3, s[14:15]{nt}\nglobal_load_ushort v11, v4, s[18:19]")
    k("global_load_dwordx4 v[12:15], v5, s[22:23]")
    early()
    k(f"s_mul_i32 s27, s26, {3*WB}\ns_add_u32 s27, s27, {PBASE}\ns_mul_i32 s24, s3, {WB}\ns_add_u32 s24, s24, s27\ns_mul_i32 s28, s26, 1600\ns_mul_i32 s29, s28, 0x10001")
    k(f"v_lshl_add_u32 v16, v2, 2, s24\nv_and_b32 v17, 15, v2\nv_mul_u32_u24 v17, {RS}, v17\nv_lshrrev_b32 v18, 4, v2\nv_lshl_add_u32 v17, v18, 4, v17\nv_add_u32 v17, s24, v17")
    k(f"v_mov_b32 v18, 0x3f80\nds_write_b32 v16, v18 offset:{PB}\nv_mov_b32 v18, 0\nv_mov_b32 v19, s28\nds_write_b32 v19, v18 offset:1536")
    k(f"s_mul_i32 s25, s2, 3072\ns_add_u32 s25, s25, {LY.KP}")
    k(f"v_lshlrev_b32 v10, 16, v10\nv_lshlrev_b32 v6, 16, v6\nv_mul_f32 v10, {fbits(LOG2E)}, v10\nv_mul_f32 v6, {fbits(LOG2E)}, v6\nv_exp_f32 v10, v10\nv_exp_f32 v6, v6")
    k("v_lshlrev_b32 v7, 16, v7\nv_cvt_pk_bf16_f32 v6, v6, v10\nv_and_b32 v10, 0xffff0000, v6\nv_lshlrev_b32 v6, 16, v6")
    k(f"v_mul_f32 v6, v6, v10\nv_mul_f32 v7, v7, v10\nv_mul_f32 v6, {fbits(-LOG2E)}, v6\nv_mul_f32 v7, 0.15915494, v7")
    k(f"v_mul_f32 v18, 0x43000000, v6\nv_mul_f32 v19, 0x43000000, v7\nv_fract_f32 v7, v7\nv_fract_f32 v19, v19")
    k.stamp(1)
    W = {n: 20 + 2 * i for i, n in enumerate((1, 2, 4, 8, 3, 5, 6, 7))}
    G = {m: 36 + 2 * (m - 1) for m in range(1, 8)}
    k(f"v_exp_f32 v6, v6\nv_exp_f32 v18, v18\nv_cos_f32 v{W[1]}, v7\nv_sin_f32 v{W[1]+1}, v7\nv_cos_f32 v{G[1]}, v19\nv_sin_f32 v{G[1]+1}, v19")
    k("v_lshlrev_b32 v8, 16, v8\nv_lshlrev_b32 v9, 16, v9\nv_add_f32 v10, v10, v10")
    k(f"v_pk_mul_f32 {vr(W[1],2)}, {vr(W[1],2)}, v[6:7] op_sel_hi:[1,0]\nv_pk_mul_f32 {vr(G[1],2)}, {vr(G[1],2)}, v[18:19] op_sel_hi:[1,0]")
    k("v_pk_mul_f32 v[8:9], v[8:9], v[10:11] op_sel_hi:[1,0]")
    tmp = [50, 52, 54, 56]; ti = [0]; cv = [58, 59, 60, 61]; ci = [0]; chain = [0]
    def cm(d, x, y):
        t = tmp[2 * chain[0] + ti[0] % 2]; ti[0] += 1
        return [f"v_pk_mul_f32 {vr(t,2)}, {vr(x,2)}, {vr(y,2)} op_sel:[0,0] op_sel_hi:[0,1]",
                f"v_pk_fma_f32 {vr(d,2)}, {vr(x,2)}, {vr(y,2)}, {vr(t,2)} op_sel:[1,1,0] op_sel_hi:[1,0,1] neg_lo:[0,1,0]"]
    def wr(x, buf, row, neg=False):
        c = cv[2 * chain[0] + ci[0] % 2]; ci[0] += 1
        return [f"v_cvt_pk_bf16_f32 v{c}, v{x}, {'-' if neg else ''}v{x+1}", f"ds_write_b32 v16, v{c} offset:{buf*PB+row*RS}"]
    def zipl(*ls):
        for i in range(max(len(l) for l in ls)):
            for l in ls:
                if i < len(l): k(l[i])
    GA, GB, VA, VB = 62, 64, 66, 68
    gl = wr(G[1], 1, 1); prev = G[1]
    for m in range(2, 17):
        d = G.get(m, GA if m & 1 else GB)
        gl += cm(d, prev, G[1]); prev = d
        if m < 16: gl += wr(d, 1, m)
    G16 = prev
    chain[0] = 1
    vl = cm(W[2], W[1], W[1]) + cm(W[4], W[2], W[2]) + cm(W[8], W[4], W[4]) + wr(8, 0, 0, True); prev = 8
    for b in range(1, 16):
        d = VA if b & 1 else VB
        vl += cm(d, prev, W[8]) + wr(d, 0, b, True); prev = d
    zipl(vl, gl)
    VF = 72; UF = 88; D = [104, 108, 112]
    for s in range(4): k(f"ds_read_b128 {vr(VF+4*s,4)}, v17 offset:{64*s}\nds_read_b128 {vr(UF+4*s,4)}, v17 offset:{PB+64*s}")
    a = wr(G16, 0, 0) + wr(W[4], 0, 1) + wr(W[2], 0, 9) + cm(W[6], W[2], W[4]) + wr(W[6], 0, 13)
    chain[0] = 0
    b = cm(W[3], W[1], W[2]) + cm(W[5], W[1], W[4]) + cm(W[7], W[3], W[4])
    zipl(a, b)
    def mm(t, uf):
        for s in range(4): k(f"v_mfma_f32_16x16x32_bf16 {vr(D[t],4)}, {vr(uf+4*s,4)}, {vr(VF+4*s,4)}, {'0' if s==0 else vr(D[t],4)}")
    mm(0, UF)
    jobs = [(W[4], m, 0, 1 + m) for m in range(1, 8)] + [(W[2], m, 0, 9 + m) for m in range(1, 4)] + [(W[6], m, 0, 13 + m) for m in range(1, 3)]
    def run(jobs):
        for i in range(0, len(jobs), 2):
            ls = []
            for j, (w, m, buf, row) in enumerate(jobs[i:i+2]):
                d = (GA, VA)[j]; chain[0] = j
                ls.append(cm(d, w, G[m]) + wr(d, buf, row))
            zipl(*ls)
    run(jobs)
    for s in range(4): k(f"ds_read_b128 {vr(UF+4*s,4)}, v17 offset:{64*s}")
    chain[0] = 0; a = wr(W[1], 1, 1) + wr(W[5], 1, 3)
    chain[0] = 1; b = wr(W[3], 1, 2) + wr(W[7], 1, 4)
    zipl(a, b)
    run([(W[6], 3, 1, 0)] + [(W[o], 1, 1, 5 + i) for i, o in enumerate((1, 3, 5, 7))])
    for s in range(4): k(f"ds_read_b128 {vr(32+4*s,4)}, v17 offset:{PB+64*s}")
    mm(1, UF)
    mm(2, 32)
    k("v_lshl_add_u32 v16, v2, 4, s24\nv_lshl_add_u32 v17, v0, 4, s27")
    for i in range(4): k(f"v_add_u32 v{12+i}, s29, v{12+i}")
    for t in range(3): k(f"ds_write_b128 v16, {vr(D[t],4)} offset:{1024*t}")
    for i in range(4): k(f"v_and_b32 v{20+2*i}, 0xffff, v{12+i}\nv_lshrrev_b32 v{21+2*i}, 16, v{12+i}")
    k("v_lshlrev_b32 v11, 16, v11\nv_cmp_eq_u32 vcc, 0, v0\nv_lshl_add_u32 v18, v0, 3, s28\nv_cndmask_b32 v11, 0, v11, vcc")
    k.stamp(2)
    k("s_waitcnt lgkmcnt(0)\ns_barrier")
    for w in range(3): k(f"ds_read_b128 {vr(72+4*w,4)}, v17 offset:{w*WB}")
    k("v_add_f32 v72, v72, v11")
    k("v_pk_add_f32 v[72:73], v[72:73], v[76:77]\nv_pk_add_f32 v[74:75], v[74:75], v[78:79]\nv_pk_add_f32 v[72:73], v[72:73], v[80:81]\nv_pk_add_f32 v[74:75], v[74:75], v[82:83]")
    k(f"v_cvt_pk_bf16_f32 v72, v72, v73\nv_cvt_pk_bf16_f32 v73, v74, v75\nds_write_b64 v18, v[72:73]")
    k("s_waitcnt lgkmcnt(0)\ns_barrier")
    for i in range(8): k(f"ds_read_u16 v{28+i}, v{20+i}")
    for i in range(4): k(f"v_lshl_or_b32 v{12+i}, v{29+2*i}, 16, v{28+2*i}")
    k("buffer_store_dwordx4 v[12:15], v5, s[4:7], s25 offen sc1")
    mid()
    return PBASE + 9 * WB

def spin(k, nm, load, test):
    k(f"s_mov_b32 s67, 0\n{nm}:\n!{load}\n!s_add_u32 s67, s67, 1\n!s_waitcnt vmcnt(0)")
    k(f"!s_cmp_gt_u32 s67, 0xffff\n!s_cbranch_scc1 {nm}_ok")
    for t in test: k("!" + t)
    k(f"!s_cbranch_scc1 {nm}\n{nm}_ok:")
    k.reset()

def kF(opt):
    k = K()
    NT = lambda n: " nt" if opt.get("nt" + n, 0) else ""
    LNF = LY.FLG + 8192; KF = LY.FLG + 16384
    UB = 0; KB = 36864; XB = 61440; SH = XB + 16384; RS = 2112
    LNB = 4864 + 9 * 9216; XS = 10752; SB = LNB + 2 * XS
    XR = opt.get("xr", 0); XRB = SB + 28672
    k("s_cmp_ge_u32 s2, 256\ns_cbranch_scc1 F_end")
    if opt.get("st"): k("s_lshl_b32 s2, s2, 1")
    k.st_init(opt.get("st"), 0)
    if opt.get("st"): k("s_lshr_b32 s2, s2, 1")
    mksrd(k, 4, 104, LY.WS_END)
    k("v_lshrrev_b32 v1, 6, v0\nv_and_b32 v2, 63, v0\nv_readfirstlane_b32 s62, v1")
    k("s_lshr_b32 s60, s2, 3\ns_mul_i32 s61, s60, 26\ns_lshr_b32 s61, s61, 8\ns_mul_i32 s14, s61, 10\ns_sub_u32 s60, s60, s14\ns_and_b32 s14, s2, 7\ns_mul_i32 s14, s14, 10\ns_add_u32 s60, s60, s14")
    k("s_cmp_ge_u32 s62, 9\ns_cbranch_scc1 F_side\ns_cmp_ge_u32 s2, 240\ns_cbranch_scc1 F_init")
    k("s_mul_i32 s26, s62, 86\ns_lshr_b32 s26, s26, 8\ns_mul_i32 s3, s26, 3\ns_sub_u32 s3, s62, s3\ns_mul_i32 s14, s61, 3\ns_add_u32 s14, s14, s26\ns_cmp_eq_u32 s14, 8\ns_cbranch_scc1 F_idle")
    k("s_lshl_b32 s2, s60, 3\ns_add_u32 s2, s2, s14\ns_lshl_b32 s14, s3, 6\nv_add_u32 v0, s14, v2")
    AU = 120; XA = 130; HV = 131; UV = 156; L16 = 157; UW = 158; KW = 159; XW = 160; ZA = 161; UL = 88
    MK = {n: 132 + 4 * i for i, n in enumerate("abcoes")}; MK["d"] = MK["b"]
    def early(skip8=False):
        k("v_mov_b32 v21, s62\nv_lshl_add_u32 v20, v21, 6, v2")
        k(f"v_lshrrev_b32 v24, 3, v2\nv_and_b32 v25, 7, v2\nv_lshrrev_b32 v26, 4, v2\nv_and_b32 v27, 1, v21\nv_lshl_add_u32 v27, v27, 2, v26\nv_xor_b32 v27, v25, v27\nv_mul_u32_u24 v24, 10240, v24\nv_lshl_add_u32 v{UV}, v27, 4, v24")
        k(f"s_lshl_b32 s32, s60, 7\ns_add_u32 s64, s32, {KF}\ns_mul_i32 s56, s62, 81920\ns_add_u32 s32, s32, s56\ns_lshl_b32 s56, s62, 10")
        k(f"v_lshlrev_b32 v{L16}, 4, v2\nv_add_u32 v{UW}, s56, v{L16}\nv_add_u32 v{XW}, {XB}, v{UW}\nv_lshlrev_b32 v{ZA}, 3, v20")
        k(f"s_lshl_b32 s52, s60, 3\ns_add_u32 s52, s52, s62\ns_mul_i32 s52, s52, 3072\ns_add_u32 s52, s52, {LY.KP}\ns_mul_i32 s53, s62, 3072\ns_add_u32 s53, s53, {KB}\nv_add_u32 v{KW}, s53, v{L16}")
        k("s_lshl_b32 s65, s61, 2\ns_add_u32 s65, s65, s64\ns_lshl_b32 s56, s26, 2\ns_add_u32 s64, s64, s56")
        for d, c in ((40, "s_cmp_ge_u32 s61, 1"), (44, "s_cmp_eq_u32 s61, 2"), (48, "s_cmp_eq_u32 s61, 0")):
            k(f"s_mov_b32 s{d}, s4\ns_mov_b32 s{d+1}, s5\n{c}\ns_cselect_b32 s{d+2}, s6, 0\ns_mov_b32 s{d+3}, s7")
        k("s_lshl_b32 s57, s61, 9\ns_add_u32 s57, s57, 512\ns_cmp_eq_u32 s61, 0\ns_cselect_b32 s57, 0, s57")
        k(f"s_mul_i32 s36, s57, 1280\ns_add_u32 s36, s36, s32\ns_add_u32 s36, s36, {LY.XT}\ns_add_u32 s37, s36, {8*81920}")
        k(f"s_add_u32 s33, s32, {8*81920}\ns_add_u32 s34, s32, {16*81920}\ns_add_u32 s35, s32, {24*81920}")
        k(f"v_add_u32 v22, s57, v20\nv_lshlrev_b32 v{HV}, 4, v22")
        k(f"s_lshl_b32 s54, s60, 15\ns_add_u32 s54, s54, {LY.H}\ns_add_u32 s55, s54, 8192")
        if skip8: k("s_cmp_eq_u32 s62, 8\ns_cbranch_scc1 F_e8")
        k("v_and_b32 v23, 15, v2\nv_lshl_add_u32 v22, v23, 1, v26")
        for m in range(5):
            off = 32 - 2 + 4 * m if m < 4 else 32 - 3
            k(f"v_add_u32 v25, {off}, v22\nv_bfe_u32 v24, v25, 1, 3\nv_xor_b32 v24, v24, v21\nv_lshlrev_b32 v25, 7, v25\nv_lshl_add_u32 v{AU+m}, v24, 4, v25")
        k(f"v_sub_u32 v25, 15, v23\nv_lshrrev_b32 v25, 1, v25\nv_lshl_add_u32 v25, v26, 2, v25\nv_and_b32 v24, 1, v23\nv_xor_b32 v24, 1, v24\nv_mul_u32_u24 v24, 464, v24\nv_add_u32 v25, v25, v24\nv_lshl_add_u32 v{AU+5}, v25, 2, s53\nv_add_u32 v{AU+6}, 512, v{AU+5}")
        k(f"v_sub_u32 v25, 295, v23\nv_lshl_add_u32 v25, v26, 2, v25\nv_lshl_add_u32 v{AU+7}, v25, 2, s53")
        k(f"s_mul_i32 s56, s62, {RS}\ns_add_u32 s56, s56, {SH}\nv_lshlrev_b32 v25, 5, v23\nv_lshl_add_u32 v25, v26, 3, v25\nv_add_u32 v{AU+8}, s56, v25")
        k(f"v_bfe_u32 v25, v2, 2, 2\nv_mul_u32_u24 v25, {RS}, v25\nv_and_b32 v24, 3, v2\nv_lshl_add_u32 v25, v24, 3, v25\nv_lshrrev_b32 v24, 4, v20\nv_lshl_add_u32 v25, v24, 5, v25\nv_add_u32 v{AU+9}, {SH}, v25")
        F = 40
        k("v_lshlrev_b32 v25, 3, v26\nv_sub_u32 v25, v23, v25\nv_add_u32 v24, 15, v25\nv_add_u32 v25, 16, v25\nv_and_b32 v25, 0xffff, v25\nv_lshl_or_b32 v25, v24, 16, v25\ns_mov_b32 s39, 0x3f803f80")
        for c in range(3, 21): k(f"v_pk_sub_i16 v{F+c-3}, v25, {c} op_sel_hi:[1,0]")
        for c in range(3, 21): k(f"v_pk_ashrrev_i16 v{F+c-3}, 15, v{F+c-3} op_sel_hi:[0,1]")
        win = dict(a=(3, 6), b=(6, 11), c=(11, 14), o=(5, 12), e=(4, 13))
        for n in "abcoe":
            lo, hi = win[n]
            for p in range(4): k(f"v_bitop3_b32 v{MK[n]+p}, v{F+lo+2*p-3}, v{F+hi+2*p-3}, s39 bitop3:0x28")
        for p in range(4): k(f"v_xor_b32 v{MK['s']+p}, v{F+2*p}, v{F+2+2*p}")
        if XR: k(f"v_lshlrev_b32 v{XA}, 4, v20\nv_add_u32 v{XA}, {XRB}, v{XA}")
        else: k(f"v_lshrrev_b32 v25, 1, v26\nv_lshl_add_u32 v25, v23, 1, v25\nv_lshlrev_b32 v25, 7, v25\nv_and_b32 v24, 7, v23\nv_xor_b32 v24, v24, v21\nv_lshl_add_u32 v25, v24, 4, v25\nv_and_b32 v24, 1, v26\nv_lshl_add_u32 v25, v24, 3, v25\nv_add_u32 v{XA}, {XB}, v25")
    def early8():
        early(True); k("F_e8:")
    def uxl():
        for i, (srd, so) in enumerate(((4, 32), (4, 33), (40, 34), (44, 35)) if XR else ((4, 32), (4, 33), (4, 36), (40, 34), (44, 35), (48, 37))):
            k(f"!buffer_load_dwordx4 {vr(UL+4*i,4)}, v{UV}, s[{srd}:{srd+3}], s{so} offen sc1")
    def mid():
        k("s_cmp_eq_u32 s62, 8\ns_cbranch_scc1 F_m8\nF_b:")
    assert kgen(k, opt, 4864, early8, mid) == LNB
    k("v_mov_b32 v4, 1\nv_mov_b32 v6, 0\nv_mov_b32 v7, 0\ns_mov_b32 s63, 0")
    k("s_waitcnt vmcnt(0)\ns_barrier")
    k("s_cmp_lg_u32 s62, 0\ns_cbranch_scc1 F_nf\n!s_mov_b64 exec, 1\n!buffer_store_dword v4, off, s[4:7], s65 sc1\n!s_mov_b64 exec, -1\nF_nf:")
    k.stamp(3)
    uxl()
    k(f"ds_write_b64 v{ZA}, v[6:7]")
    P1 = opt.get("kp1", 1)
    UXW = ((UW, 4096), (UW, 12288), (XW, 0), (UW, 20480), (UW, 28672), (XW, 8192))
    if XR: UXW = [x for x in UXW if x[0] == UW]
    for i, (a, o) in enumerate(UXW):
        if i == P1: k("!buffer_load_dword v5, off, s[4:7], s64 sc1")
        k(f"!s_waitcnt vmcnt({len(UXW)-1-i+(i>=P1)})\nds_write_b128 v{a}, {vr(UL+4*i,4)} offset:{o}")
    KL = 76
    k("!s_waitcnt vmcnt(0)\nv_readfirstlane_b32 s66, v5\ns_cmp_lg_u32 s66, 1\ns_cbranch_scc1 F_k0")
    for j in range(3): k(f"!buffer_load_dwordx4 {vr(KL+4*j,4)}, v{L16}, s[4:7], s52 offen offset:{1024*j} sc1")
    k("s_mov_b32 s63, 1\nF_k0:\ns_waitcnt lgkmcnt(0)\ns_barrier")
    k.stamp(4); k("s_waitcnt lgkmcnt(0)" if k.on else "")
    k("F_dry:")
    k("s_cmp_eq_u32 s61, 1\ns_cbranch_scc1 B_t1\ns_cmp_eq_u32 s61, 2\ns_cbranch_scc1 B_t2")
    for third, tiles in enumerate(([0, 1, 2, 3], [4, 5], [6, 7])):
        k(f"B_t{third}:"); k.reset()
        ACC = {T: 8 + 4 * i for i, T in enumerate(tiles)}
        pool = [r for r in range(8 + 4 * len(tiles), 120, 4) if not KL <= r < KL + 12] + [164]
        def ld(v, r):
            if v[0] == "B":
                b = v[1]; return [f"ds_read_b128 {vr(r,4)}, v{AU+b%4} offset:{(b//4)*2048}"] if b >= 0 else [f"ds_read_b128 {vr(r,4)}, v{NEG+b%4} offset:{(b//4+2)*2048 if b%4 else 0}"]
            if v[0] == "B24": return [f"ds_read_b128 {vr(r,4)}, v{AU+4} offset:{v[1]*4096}"]
            if v[0] == "A":
                o = 16 * (16 - v[1]); a = AU + 5
                if o >= 128: o -= 128; a = AU + 6
            else:
                o = {"oe": 112, "ab": 128, "cd": 176}[v[0]] - 16 * v[1]; a = AU + 7
            return [f"ds_read2_b32 {vr(r,2)}, v{a} offset0:{o} offset1:{o+1}", f"ds_read2_b32 {vr(r+2,2)}, v{a} offset0:{o+2} offset1:{o+3}"]
        if third == 0:
            NEG = pool.pop()
            for m in range(4): k(f"v_subrev_u32 v{NEG+m}, {4096 if m else 2048}, v{AU+m}")
        full = []
        for q in range(17):
            for T in reversed(tiles):
                if 8 * T - q >= -7: full.append(("M", T, ("A", q), ("B", 8 * T - q)))
        if third == 0: full.sort(key=lambda o: -o[3][1])
        sops = []; tops = []
        for Tp in range(8):
            for pr, Ds in (("ab", (2, 3, 4)), ("cd", (2, 3, 4)), ("oe", (4, 5, 6, 7))):
                us = [T for T in tiles if T - Tp in Ds]
                if not us: continue
                sops.append((pr, Tp))
                for T in us: tops.append(("M", T, ("P", pr, Tp), (pr, T - Tp)))
        spec = [("M", T, ("spec",), ("B", 8 * (T - 4))) for T in tiles if T >= 4]
        ops = []
        for i, (pr, Tp) in enumerate(sops):
            for n in pr: ops.append(("S", n, Tp, ("B24", Tp) if n in "de" else ("B", 8 * Tp, "s")))
            if i: ops.append(("cvt",) + sops[i - 1])
        ops.append(("K",)); ops.append(("cvt",) + sops[-1])
        ops.insert(min(opt.get("kp", 2), len(ops) - 2), ("poll",))
        ops += tops + spec + full
        KI = ops.index(("K",))
        def vals(o):
            if o[0] == "M": return [v for v in o[2:] if v[0] not in ("P", "spec")]
            if o[0] == "S": return [o[3]]
            return []
        last = {}
        for i, o in enumerate(ops):
            for v in vals(o): last[v] = i
            if o[0] == "M" and o[2][0] == "P": last[o[2]] = i
        reg = {}; LA = opt.get("bla", 5); mn = [99]
        def prefetch(i, cur):
            if i < len(ops) and not (cur < KI < i):
                for v in vals(ops[i]):
                    if v not in reg:
                        reg[v] = pool.pop(0); mn[0] = min(mn[0], len(pool))
                        for s in ld(v, reg[v]): k(s)
        for i in range(LA): prefetch(i, 0)
        if not XR:
            for i, T in enumerate(tiles): k(f"ds_read_b64 {vr(ACC[T]+2,2)}, v{XA} offset:{4096*i}")
        seen = set() if XR else set(tiles)
        specdone = False
        for i, o in enumerate(ops):
            if o[0] == "poll":
                k(f"s_waitcnt lgkmcnt(0)\ns_cmp_lg_u32 s63, 0\ns_cbranch_scc1 F_k1{third}")
                spin(k, f"F_pk{third}", "buffer_load_dword v5, off, s[4:7], s64 sc1", ["v_readfirstlane_b32 s66, v5", "s_cmp_lg_u32 s66, 1"])
                for j in range(3): k(f"!buffer_load_dwordx4 {vr(KL+4*j,4)}, v{L16}, s[4:7], s52 offen offset:{1024*j} sc1")
                k(f"F_k1{third}:")
            elif o[0] == "K":
                for T in ([] if XR else tiles):
                    a = ACC[T]
                    k(f"v_lshlrev_b32 v{a}, 16, v{a+2}\nv_and_b32 v{a+1}, 0xffff0000, v{a+2}\nv_lshlrev_b32 v{a+2}, 16, v{a+3}\nv_and_b32 v{a+3}, 0xffff0000, v{a+3}")
                for j in range(3): k(f"s_waitcnt vmcnt({2-j})\nds_write_b128 v{KW}, {vr(KL+4*j,4)} offset:{1024*j}")
                k.stamp(5); k("s_waitcnt lgkmcnt(0)" if k.on else "")
                pool += [KL, KL + 4, KL + 8]
                if third: k(f"v_mov_b32 v4, s53\nds_read_b32 v4, v4 offset:{456*4}")
                for j in range(1, LA): prefetch(i + j, i)
            elif o[0] == "S":
                r = pool.pop(0); reg[("S", o[1], o[2])] = r; mn[0] = min(mn[0], len(pool))
                k(f"v_mfma_f32_16x16x32_bf16 {vr(r,4)}, {vr(reg[o[3]],4)}, {vr(MK[o[1]],4)}, 0")
            elif o[0] == "cvt":
                r0 = reg.pop(("S", o[1][0], o[2])); r1 = reg.pop(("S", o[1][1], o[2]))
                for p in range(4): k(f"v_cvt_pk_bf16_f32 v{r0+p}, v{r0+p}, v{r1+p}")
                reg[("P", o[1], o[2])] = r0; pool.append(r1)
            else:
                T = o[1]
                if o[2][0] == "spec":
                    if not specdone:
                        for p in range(4): k(f"v_and_b32 v{MK['s']+p}, v{MK['s']+p}, v4")
                        specdone = True
                    a = MK["s"]
                else: a = reg[o[2]]
                k(f"v_mfma_f32_16x16x32_bf16 {vr(ACC[T],4)}, {vr(a,4)}, {vr(reg[o[3]],4)}, {vr(ACC[T],4) if T in seen else 0}")
                seen.add(T)
            if XR and i == len(ops) - opt.get("xl", 6):
                XQ = [pool.pop(0) for _ in range(len(tiles) // 2)]
                for rnd, r in enumerate(XQ): k(f"ds_read_b128 {vr(r,4)}, v{XA} offset:{8192*rnd}")
            for v in list(reg):
                if last.get(v) == i: pool.append(reg.pop(v))
            prefetch(i + LA, i)
        if XR:
            XF = 132
            k("s_mov_b32 s38, 0x3f80\ns_mov_b32 s39, 0x3f800000")
            for rnd, r in enumerate(XQ):
                for q in range(4): k(f"v_lshlrev_b32 v{XF+8*rnd+2*q}, 16, v{r+q}\nv_and_b32 v{XF+8*rnd+2*q+1}, 0xffff0000, v{r+q}")
        print("third", third, "ops", len(ops), "S", 2 * len(sops), "min pool", mn[0])
        for i, T in enumerate(tiles):
            a = ACC[T]
            k(f"v_cvt_pk_bf16_f32 v{a}, v{a}, v{a+1}\nv_cvt_pk_bf16_f32 v{a+1}, v{a+2}, v{a+3}\nds_write_b64 v{AU+8}, {vr(a,2)} offset:{512*i}")
        if opt.get("dry"): k("s_cbranch_execz F_end")
        nr = len(tiles) // 2
        k("s_waitcnt lgkmcnt(0)\ns_barrier")
        for rnd in range(nr):
            k(f"ds_read_b64_tr_b16 {vr(80+4*rnd,2)}, v{AU+9} offset:{1024*rnd}\nds_read_b64_tr_b16 {vr(82+4*rnd,2)}, v{AU+9} offset:{1024*rnd+4*RS}")
        for rnd in range(nr):
            if XR:
                for q in range(4): k(f"v_dot2c_f32_bf16 v{XF+8*rnd+2*q}, s38, v{80+4*rnd+q}\nv_dot2c_f32_bf16 v{XF+8*rnd+2*q+1}, s39, v{80+4*rnd+q}")
                for q in range(4): k(f"v_cvt_pk_bf16_f32 v{80+4*rnd+q}, v{XF+8*rnd+2*q}, v{XF+8*rnd+2*q+1}")
            k(f"buffer_store_dwordx4 {vr(80+4*rnd,4)}, v{HV}, s[4:7], s{54+rnd} offen sc1")
        k.end()
    k("F_idle:"); k.reset()
    k("s_cmp_eq_u32 s62, 8\ns_cbranch_scc1 F_end\ns_waitcnt lgkmcnt(0)")
    early(); k("s_barrier\ns_barrier\ns_branch F_b")
    k("F_m8:"); k.reset()
    k("s_waitcnt vmcnt(0)\ns_barrier")
    k("s_mov_b32 s63, 1\ns_mov_b64 exec, 0\ns_branch F_dry" if opt.get("dry") else "s_endpgm")
    k("F_init:"); k.reset()
    k("s_cmp_lg_u32 s2, 255\ns_cbranch_scc1 F_end\ns_cmp_lg_u32 s62, 0\ns_cbranch_scc1 F_end")
    mksrd(k, 8, 96, 256)
    k(f"v_mov_b32 v8, 0\nv_mov_b32 v9, 0\nv_mov_b32 v10, 0\nv_mov_b32 v11, 0\nv_lshlrev_b32 v4, 4, v2\nv_lshlrev_b32 v5, 7, v2\ns_mov_b32 s12, {LY.FLG}\ns_mov_b32 s15, {LNF}\ns_mov_b32 s13, {KF}\ns_mov_b32 s14, {KF+2048}\nv_mov_b32 v6, 1\ns_waitcnt lgkmcnt(0)")
    k("buffer_store_dwordx4 v[8:11], v5, s[4:7], s15 offen sc1\nbuffer_store_dwordx4 v[8:11], v5, s[4:7], s13 offen sc1\nbuffer_store_dwordx4 v[8:11], v5, s[4:7], s14 offen sc1")
    k("s_waitcnt vmcnt(0)\ns_mov_b64 exec, 1\nbuffer_store_dword v6, off, s[8:11], 0 sc1\ns_mov_b64 exec, -1")
    k("buffer_store_dwordx4 v[8:11], v5, s[4:7], s12 offen sc1\ns_endpgm")
    k("F_side:"); k.reset()
    k("v_lshlrev_b32 v9, 4, v2\ns_mov_b32 s30, 0x3f803f80\ns_cmp_lg_u32 s62, 9\ns_cbranch_scc1 F_shuf")
    if opt.get("prio", 3): k(f"s_setprio {opt.get('prio', 3)}")
    mksrd(k, 8, 0, 2621440); mksrd(k, 16, 96, 256)
    if opt.get("pf", 0): k("s_load_dwordx4 s[40:43], s[0:1], 64\ns_load_dwordx2 s[44:45], s[0:1], 80")
    k("v_lshrrev_b32 v3, 3, v2\nv_and_b32 v4, 7, v2\nv_lshlrev_b32 v4, 4, v4\nv_mul_u32_u24 v5, 1280, v3\nv_add_u32 v5, v5, v4\ns_mul_i32 s12, s2, 10240")
    X = 16; TR = 64
    for j in range(10): k(f"buffer_load_dwordx4 {vr(X+4*j,4)}, v5, s[8:11], s12 offen offset:{128*j}{NT('x')}")
    k(f"v_mul_u32_u24 v6, 1344, v3\nv_add_u32 v6, v6, v4\nv_add_u32 v6, {LNB}, v6")
    k(f"v_bfe_u32 v7, v2, 2, 2\nv_mul_u32_u24 v7, 1344, v7\nv_and_b32 v8, 3, v2\nv_lshl_add_u32 v7, v8, 3, v7\nv_bfe_u32 v8, v2, 4, 2\nv_lshl_add_u32 v7, v8, 5, v7\nv_add_u32 v7, {LNB}, v7")
    k(f"s_add_u32 s13, s12, 4096\ns_add_u32 s14, s12, 8192\ns_add_u32 s20, s12, {LY.XT}\ns_add_u32 s21, s13, {LY.XT}\ns_add_u32 s22, s14, {LY.XT}\ns_and_b32 s23, s2, 63\ns_lshl_b32 s23, s23, 7\ns_lshr_b32 s24, s2, 6\ns_lshl_b32 s24, s24, 2\ns_add_u32 s23, s23, s24\ns_add_u32 s23, s23, {LNF}\ns_mov_b32 s24, {LNF}\nv_lshlrev_b32 v8, 7, v2")
    k("v_mov_b32 v10, 0\nv_mov_b32 v11, 0\nv_mov_b32 v12, 0\nv_mov_b32 v13, 0")
    for q in range(40):
        k(f"v_dot2c_f32_bf16 v{10+2*(q&1)}, s30, v{X+q}\nv_dot2c_f32_bf16 v{11+2*(q&1)}, v{X+q}, v{X+q}")
        if q % 4 == 3 and not XR: k(f"ds_write_b128 v6, {vr(X+q-3,4)} offset:{XS+32*(q-3)}")
    k.stamp(1)
    tr = lambda r, o: f"ds_read_b64_tr_b16 {vr(r,2)}, v7 offset:{o}\nds_read_b64_tr_b16 {vr(r+2,2)}, v7 offset:{o+4*1344}"
    k("v_add_f32 v10, v10, v12\nv_add_f32 v11, v11, v13")
    for j in range(0 if XR else 10): k(tr(TR + 40 + 4 * j, XS + 128 * j))
    for m in ("quad_perm:[1,0,3,2]", "quad_perm:[2,3,0,1]", "row_half_mirror"):
        k(f"v_add_f32_dpp v10, v10, v10 {m} row_mask:0xf bank_mask:0xf\nv_add_f32_dpp v11, v11, v11 {m} row_mask:0xf bank_mask:0xf")
    k(f"v_mul_f32 v10, {fbits(-1/640)}, v10\nv_mul_f32 v11, {fbits(1/640)}, v11\nv_fma_f32 v11, -v10, v10, v11\nv_max_f32 v11, 0, v11")
    k(f"v_cvt_pk_bf16_f32 v11, v10, v11\nv_lshlrev_b32 v10, 16, v11\nv_and_b32 v11, 0xffff0000, v11\nv_add_f32 v11, {fbits(1e-5)}, v11")
    k("v_cvt_pk_bf16_f32 v11, v11, v11\nv_and_b32 v11, 0xffff0000, v11\nv_sqrt_f32 v11, v11\nv_cvt_pk_bf16_f32 v11, v11, v11\nv_and_b32 v11, 0xffff0000, v11")
    k("v_rcp_f32 v12, v11\nv_mul_f32 v14, v10, v12")
    for j in range(10):
        for q in range(4): k(f"v_lshlrev_b32 v{56+2*q}, 16, v{X+4*j+q}\nv_and_b32 v{57+2*q}, 0xffff0000, v{X+4*j+q}")
        for q in range(4): k(f"v_pk_fma_f32 {vr(56+2*q,2)}, {vr(56+2*q,2)}, v[12:13], v[14:15] op_sel_hi:[1,0,0]")
        for q in range(4): k(f"v_cvt_pk_bf16_f32 v{X+4*j+q}, v{56+2*q}, v{57+2*q}")
        k(f"ds_write_b128 v6, {vr(X+4*j,4)} offset:{128*j}")
        k(tr(TR + 4 * j, 128 * j))
        if not XR: k(f"buffer_store_dwordx4 {vr(TR+40+4*j,4)}, v9, s[4:7], s{20+j//4} offen offset:{1024*(j%4)} sc1")
        if j: k(f"buffer_store_dwordx4 {vr(TR+4*j-4,4)}, v9, s[4:7], s{12+(j-1)//4} offen offset:{1024*((j-1)%4)} sc1")
    k(f"buffer_store_dwordx4 {vr(TR+36,4)}, v9, s[4:7], s14 offen offset:1024 sc1\nv_mov_b32 v3, 1")
    k.stamp(2)
    spin(k, "F_go", "buffer_load_dword v10, off, s[16:19], 0 sc1", ["v_readfirstlane_b32 s66, v10", "s_cmp_lg_u32 s66, 1"])
    k("s_mov_b64 exec, 1\nbuffer_store_dword v3, off, s[4:7], s23 sc1\ns_mov_b64 exec, -1")
    if opt.get("pf", 0):
        k("s_mul_i32 s25, s2, 7680\nv_min_u32 v4, 59, v2\nv_lshlrev_b32 v4, 7, v4\nv_add_u32 v4, s25, v4")
        for i in range(3): k(f"global_load_dword v{16+i}, v4, s[{40+2*i}:{41+2*i}]")
    k.stamp(3)
    k("s_cmp_ge_u32 s2, 240\ns_cbranch_scc1 F_send\ns_barrier\ns_barrier")
    k.stamp(4)
    spin(k, "F_ln", "buffer_load_dwordx4 v[12:15], v8, s[4:7], s24 offen sc1",
         ["v_and_b32 v12, v12, v13", "v_and_b32 v14, v14, v15", "v_and_b32 v12, v12, v14", "v_cmp_ne_u32 vcc, 1, v12", "s_nop 1", "s_cmp_lg_u64 vcc, 0"])
    k.stamp(5)
    k("s_barrier\nF_send:")
    k.end()
    k("F_shuf:"); k.reset()
    k("s_load_dwordx4 s[40:43], s[0:1], 64\ns_load_dwordx2 s[44:45], s[0:1], 80")
    k("s_getpc_b64 s[20:21]\nA_pc0:\ns_add_u32 s20, s20, kA_kernel-A_pc0\ns_addc_u32 s21, s21, -1")
    k("s_lshr_b32 s22, s2, 3\ns_lshl_b32 s22, s22, 1\ns_add_u32 s22, s22, s62\ns_sub_u32 s22, s22, 10\ns_lshl_b32 s22, s22, 12\nv_lshlrev_b32 v3, 6, v2\nv_add_u32 v4, s22, v3")
    k("v_min_u32 v4, code_end-kA_kernel, v4\nglobal_load_dword v20, v4, s[20:21]")
    if XR:
        mksrd(k, 8, 0, 2621440)
        k("s_cmp_ge_u32 s2, 240\ns_cbranch_scc1 F_nox")
        k("s_lshl_b32 s12, s61, 9\ns_add_u32 s12, s12, 512\ns_cmp_eq_u32 s61, 0\ns_cselect_b32 s12, 0, s12\ns_sub_u32 s13, s62, 10\ns_lshl_b32 s14, s13, 6\ns_add_u32 s12, s12, s14\ns_mul_i32 s12, s12, 1280\ns_lshl_b32 s14, s60, 4\ns_add_u32 s12, s12, s14")
        k(f"s_lshl_b32 s13, s13, 10\ns_add_u32 s13, s13, {XRB}\nv_mul_u32_u24 v21, 1280, v2\ns_waitcnt lgkmcnt(0)")
        if opt.get("xw", 0) >= 0: k("s_waitcnt vmcnt(0)")
        for j in range(8):
            if j == 4: k("s_cmp_lg_u32 s61, 0\ns_cbranch_scc1 F_nox")
            k(f"s_add_u32 m0, s13, {2048*j}\ns_add_u32 s14, s12, {128*1280*j}\n!buffer_load_dwordx4 v21, s[8:11], s14 offen lds")
        k("F_nox:\n!s_waitcnt lgkmcnt(0)")
    LD = 64; FR = 16
    k(f"v_lshrrev_b32 v4, 3, v2\nv_and_b32 v5, 7, v2\ns_sub_u32 s20, s62, 10\ns_mul_i32 s20, s20, 20480\ns_add_u32 s20, s20, {SB}")
    k("s_mov_b32 s26, 1966080\ns_mov_b32 s27, 0x00020000\ns_mov_b32 s34, 1966080\ns_mov_b32 s35, 0x00020000")
    SW = opt.get("shw", 4); SP = opt.get("shp", 5)
    k("s_cmp_eq_u32 s2, 255\ns_cbranch_scc1 F_send2\ns_cmp_eq_u32 s62, 11\ns_cbranch_scc1 F_wd\ns_cmp_lt_u32 s2, 63\ns_cbranch_scc1 F_send2")
    k("s_sub_u32 s21, s2, 63\ns_and_b32 s22, s21, 7\ns_lshr_b32 s21, s21, 3\ns_mul_i32 s23, s22, 5")
    k("s_mov_b32 s24, s40\ns_mov_b32 s25, s41\ns_mov_b32 s32, s42\ns_mov_b32 s33, s43")
    k("v_and_b32 v10, 2, v4\nv_xor_b32 v10, v10, v5\nv_mul_u32_u24 v11, 3072, v4\nv_lshl_add_u32 v10, v10, 4, v11\nv_xor_b32 v11, 64, v10")
    k(f"s_mul_i32 s36, s23, {16*3072}\ns_lshl_b32 s37, s21, 7\ns_add_u32 s36, s36, s37")
    k("v_bfe_u32 v3, v2, 4, 1\nv_lshrrev_b32 v6, 5, v2\nv_bfe_u32 v7, v2, 2, 2\nv_and_b32 v8, 3, v2")
    k("v_mul_u32_u24 v48, 2112, v3\nv_lshl_add_u32 v48, v6, 10, v48\nv_lshl_add_u32 v48, v7, 7, v48\nv_lshl_add_u32 v48, v8, 3, v48\nv_and_b32 v7, 2, v7\nv_lshl_add_u32 v48, v7, 4, v48\nv_add_u32 v48, s20, v48")
    for w in range(1, 4): k(f"v_xor_b32 v{48+w}, {32*w}, v48")
    for w in range(4): k(f"v_mov_b32 v{52+w}, 0")
    if XR: k("s_barrier\ns_barrier\n!s_waitcnt vmcnt(0)" + "\ns_barrier" * (SW - 2))
    elif SW >= 0: k("s_waitcnt vmcnt(0)" + "\ns_barrier" * SW)
    k.stamp(1)
    for t in range(5):
        for h in range(2):
            if t or h: k(f"s_add_u32 s36, s36, {8*3072}")
            for g in range(2): k(f"s_add_u32 m0, s20, {4096*t+2048*g+1024*h}\nbuffer_load_dwordx4 v{10+g}, s[{24+8*g}:{27+8*g}], s36 offen{NT('w')} lds")
        k.tag(f"w{t}")
    k(f"s_mul_i32 s47, s21, {4*41984}\ns_lshl_b32 s36, s23, 10\ns_add_u32 s47, s47, {LY.W1P}\ns_add_u32 s36, s36, s47\ns_add_u32 s37, s36, 41984\ns_add_u32 s38, s37, 41984\ns_add_u32 s39, s38, 41984\nv_add_u32 v12, 4096, v9")
    k("s_barrier\n" * (SP - max(SW, 0)) + f"s_setprio {opt.get('sprio', 3)}")
    k.stamp(2)
    def rd(t):
        k.waitvm(f"w{t}")
        for w in range(4):
            for e in range(2): k(f"ds_read_b64_tr_b16 {vr(LD+16*t+4*w+2*e,2)}, v{48+w} offset:{4096*t+512*e}")
    rd(0)
    for t in range(5):
        if t < 4: rd(t + 1)
        for w in range(4): k(f"buffer_store_dwordx4 {vr(LD+16*t+4*w,4)}, v{9 if t < 4 else 12}, s[4:7], s{36+w} offen offset:{1024*(t%4)} sc1")
    for t in range(5):
        for q in range(4):
            for w in range(4): k(f"v_dot2c_f32_bf16 v{52+w}, s30, v{LD+16*t+4*w+q}")
    k("v_and_b32 v4, 31, v2\nv_lshlrev_b32 v4, 4, v4\nv_mul_u32_u24 v5, 41984, v6\nv_add_u32 v4, v4, v5")
    k(f"s_lshr_b32 s36, s22, 2\ns_lshl_b32 s36, s36, 9\ns_and_b32 s37, s22, 3\ns_lshl_b32 s37, s37, 2\ns_add_u32 s36, s36, s37\ns_add_u32 s36, s36, s47\ns_add_u32 s36, s36, 40960\ns_add_u32 s37, s36, {2*41984}")
    for w in (0, 2):
        a = 52 + w
        k(f"v_permlane32_swap_b32 v{a}, v{a+1}\nv_add_f32 v{a}, v{a}, v{a+1}\nv_cvt_pk_bf16_f32 v{a+1}, v{a}, v{a}\nv_and_b32 v{a+1}, 0xffff0000, v{a+1}\nv_sub_f32 v{a}, v{a}, v{a+1}\nv_cvt_pk_bf16_f32 v{a}, v{a+1}, v{a}")
        k(f"buffer_store_dword v{a}, v4, s[4:7], s{36+w//2} offen")
    k("F_send2:\n!s_waitcnt vmcnt(0)")
    k.end()
    k("F_wd:"); k.reset()
    k("s_cmp_lt_u32 s2, 15\ns_cbranch_scc1 F_send2\ns_waitcnt lgkmcnt(0)")
    k(f"s_mov_b32 s24, s44\ns_mov_b32 s25, s45\ns_mov_b32 s39, {LY.WDP}")
    k("v_and_b32 v10, 2, v4\nv_lshlrev_b32 v10, 1, v10\nv_bfe_u32 v11, v4, 2, 1\nv_lshl_add_u32 v10, v11, 1, v10\nv_xor_b32 v10, v10, v5\nv_mul_u32_u24 v11, 1280, v4\nv_lshl_add_u32 v10, v10, 4, v11")
    k("s_sub_u32 s21, s2, 15\ns_mul_i32 s50, s21, 13108\ns_lshr_b32 s50, s50, 16\ns_mul_i32 s23, s50, 5\ns_sub_u32 s51, s21, s23\ns_lshl_b32 s51, s51, 1")
    k(f"s_mul_i32 s36, s50, {32*1280}\ns_lshl_b32 s37, s51, 7\ns_add_u32 s36, s36, s37")
    k("v_bfe_u32 v7, v2, 2, 2\nv_and_b32 v8, 3, v2\nv_lshrrev_b32 v6, 5, v2\nv_bfe_u32 v3, v2, 4, 1")
    k("v_lshlrev_b32 v48, 11, v6\nv_lshl_add_u32 v48, v3, 9, v48\nv_lshl_add_u32 v48, v7, 7, v48\nv_add_u32 v48, s20, v48")
    k("v_and_b32 v7, 2, v7\nv_lshlrev_b32 v7, 5, v7\nv_lshl_add_u32 v7, v3, 5, v7")
    if XR: k("s_barrier\ns_barrier\n!s_waitcnt vmcnt(0)" + "\ns_barrier" * (SW - 2))
    elif SW >= 0: k("s_waitcnt vmcnt(0)" + "\ns_barrier" * SW)
    k.stamp(1)
    for i in range(4):
        if i: k(f"s_add_u32 s36, s36, {8*1280}")
        for t in range(2): k(f"s_add_u32 m0, s20, {4096*t+1024*i-128*t}\nbuffer_load_dwordx4 v10, s[24:27], s36 offen offset:{128*t}{NT('w')} lds")
    for t in range(2):
        for vv in range(2):
            k(f"s_lshl_b32 s36, s51, 1\ns_add_u32 s36, s36, {2*t+vv}\ns_mul_i32 s37, s36, 52\ns_lshr_b32 s37, s37, 8\ns_mul_i32 s37, s37, 5\ns_sub_u32 s36, s36, s37\ns_cmp_eq_u32 s36, 2\ns_cselect_b32 s36, 3, 4\ns_cselect_b32 s37, 32, 8")
            a = 49 + 4 * t + 2 * vv
            k(f"v_lshlrev_b32 v{a}, s36, v8\nv_add_u32 v{a}, {64*vv}, v{a}\nv_add_u32 v{a+1}, s37, v{a}\nv_xor_b32 v{a}, v{a}, v7\nv_xor_b32 v{a+1}, v{a+1}, v7\nv_add_u32 v{a}, v{a}, v48\nv_add_u32 v{a+1}, v{a+1}, v48")
        for i in range(4):
            k(f"s_lshl_b32 s36, s51, 2\ns_add_u32 s36, s36, {4*t+i}\ns_mul_i32 s37, s36, 52\ns_lshr_b32 s37, s37, 8\ns_mul_i32 s38, s37, 5\ns_sub_u32 s36, s36, s38")
            k(f"s_and_b32 s38, s37, 1\ns_sub_u32 s36, s36, s38\ns_cselect_b32 s36, 4, s36\ns_mul_i32 s37, s37, 48\ns_add_u32 s37, s37, s50\ns_mul_i32 s37, s37, 5\ns_add_u32 s37, s37, s36\ns_lshl_b32 s37, s37, 10\ns_add_u32 s{52+4*t+i}, s37, s39")
    k("s_barrier\n" * (SP - max(SW, 0)) + f"s_setprio {opt.get('sprio', 3)}")
    k.stamp(2)
    k("s_waitcnt vmcnt(0)")
    for t in range(2):
        for i in range(4):
            for e2 in range(2): k(f"ds_read_b64_tr_b16 {vr(LD+16*t+4*i+2*e2,2)}, v{49+4*t+i} offset:{4096*t+1024*e2}")
    for i in range(8): k(f"buffer_store_dwordx4 {vr(LD+4*i,4)}, v9, s[4:7], s{52+i} offen sc1")
    k.end()
    k("F_end:\ns_endpgm")
    data = [".p2align 7", "A_tab:"] + [f".long 0x{x:08x}" for x in LY.gather_table(0)]
    return dict(name="kA_kernel", code=k.finish(), data=data, grid=256, block=768, lds=SB + 28672 + (16384 if XR else 0), vgpr=opt.get("nv", 168), agpr=0)
```

```python
from asmlib import K, vr
import layout as LY
import math
from gen_cd import fbits
from gen_ab import mksrd, LOG2E
BIG = 0x7000000

def kgen(k, opt, PBASE, early, mid):
    RS = 288; PB = 16 * RS; WB = 2 * PB
    k("s_load_dwordx8 s[8:15], s[0:1], 8\ns_load_dwordx4 s[16:19], s[0:1], 40")
    k(f"s_mul_i32 s20, s2, 384\nv_lshlrev_b32 v3, 1, v0\nv_add_u32 v3, s20, v3\ns_lshl_b32 s21, s2, 1\nv_mov_b32 v4, s21")
    k("s_getpc_b64 s[22:23]\nA_pc1:\ns_add_u32 s22, s22, A_tab-A_pc1\ns_addc_u32 s23, s23, 0\nv_lshlrev_b32 v5, 4, v0")
    k("s_waitcnt lgkmcnt(0)")
    nt = " nt" if opt.get("ntx", 0) else ""
    k(f"global_load_ushort v10, v4, s[16:17]\nglobal_load_ushort v6, v3, s[8:9]{nt}\nglobal_load_ushort v7, v3, s[10:11]{nt}\nglobal_load_ushort v8, v3, s[12:13]{nt}\nglobal_load_ushort v9, v3, s[14:15]{nt}\nglobal_load_ushort v11, v4, s[18:19]")
    k("global_load_dwordx4 v[12:15], v5, s[22:23]")
    early()
    k(f"s_mul_i32 s27, s26, {3*WB}\ns_add_u32 s27, s27, {PBASE}\ns_mul_i32 s24, s3, {WB}\ns_add_u32 s24, s24, s27\ns_mul_i32 s28, s26, 1600\ns_mul_i32 s29, s28, 0x10001")
    k(f"v_lshl_add_u32 v16, v2, 2, s24\nv_and_b32 v17, 15, v2\nv_mul_u32_u24 v17, {RS}, v17\nv_lshrrev_b32 v18, 4, v2\nv_lshl_add_u32 v17, v18, 4, v17\nv_add_u32 v17, s24, v17")
    k(f"v_mov_b32 v18, 0x3f80\nds_write_b32 v16, v18 offset:{PB}\nv_mov_b32 v18, 0\nv_mov_b32 v19, s28\nds_write_b32 v19, v18 offset:1536")
    k(f"s_mul_i32 s25, s2, 3072\ns_add_u32 s25, s25, {LY.KP}")
    k(f"v_lshlrev_b32 v10, 16, v10\nv_lshlrev_b32 v6, 16, v6\nv_mul_f32 v10, {fbits(LOG2E)}, v10\nv_mul_f32 v6, {fbits(LOG2E)}, v6\nv_exp_f32 v10, v10\nv_exp_f32 v6, v6")
    k("v_lshlrev_b32 v7, 16, v7\nv_cvt_pk_bf16_f32 v6, v6, v10\nv_and_b32 v10, 0xffff0000, v6\nv_lshlrev_b32 v6, 16, v6")
    k(f"v_mul_f32 v6, v6, v10\nv_mul_f32 v7, v7, v10\nv_mul_f32 v6, {fbits(-LOG2E)}, v6\nv_mul_f32 v7, 0.15915494, v7")
    k(f"v_mul_f32 v18, 0x43000000, v6\nv_mul_f32 v19, 0x43000000, v7\nv_fract_f32 v7, v7\nv_fract_f32 v19, v19")
    k.stamp(1)
    W = {n: 20 + 2 * i for i, n in enumerate((1, 2, 4, 8, 3, 5, 6, 7))}
    G = {m: 36 + 2 * (m - 1) for m in range(1, 8)}
    k(f"v_exp_f32 v6, v6\nv_exp_f32 v18, v18\nv_cos_f32 v{W[1]}, v7\nv_sin_f32 v{W[1]+1}, v7\nv_cos_f32 v{G[1]}, v19\nv_sin_f32 v{G[1]+1}, v19")
    k("v_lshlrev_b32 v8, 16, v8\nv_lshlrev_b32 v9, 16, v9\nv_add_f32 v10, v10, v10")
    k(f"v_pk_mul_f32 {vr(W[1],2)}, {vr(W[1],2)}, v[6:7] op_sel_hi:[1,0]\nv_pk_mul_f32 {vr(G[1],2)}, {vr(G[1],2)}, v[18:19] op_sel_hi:[1,0]")
    k("v_pk_mul_f32 v[8:9], v[8:9], v[10:11] op_sel_hi:[1,0]")
    tmp = [50, 52, 54, 56]; ti = [0]; cv = [58, 59, 60, 61]; ci = [0]; chain = [0]
    def cm(d, x, y):
        t = tmp[2 * chain[0] + ti[0] % 2]; ti[0] += 1
        return [f"v_pk_mul_f32 {vr(t,2)}, {vr(x,2)}, {vr(y,2)} op_sel:[0,0] op_sel_hi:[0,1]",
                f"v_pk_fma_f32 {vr(d,2)}, {vr(x,2)}, {vr(y,2)}, {vr(t,2)} op_sel:[1,1,0] op_sel_hi:[1,0,1] neg_lo:[0,1,0]"]
    def wr(x, buf, row, neg=False):
        c = cv[2 * chain[0] + ci[0] % 2]; ci[0] += 1
        return [f"v_cvt_pk_bf16_f32 v{c}, v{x}, {'-' if neg else ''}v{x+1}", f"ds_write_b32 v16, v{c} offset:{buf*PB+row*RS}"]
    def zipl(*ls):
        for i in range(max(len(l) for l in ls)):
            for l in ls:
                if i < len(l): k(l[i])
    GA, GB, VA, VB = 62, 64, 66, 68
    gl = wr(G[1], 1, 1); prev = G[1]
    for m in range(2, 17):
        d = G.get(m, GA if m & 1 else GB)
        gl += cm(d, prev, G[1]); prev = d
        if m < 16: gl += wr(d, 1, m)
    G16 = prev
    chain[0] = 1
    vl = cm(W[2], W[1], W[1]) + cm(W[4], W[2], W[2]) + cm(W[8], W[4], W[4]) + wr(8, 0, 0, True); prev = 8
    for b in range(1, 16):
        d = VA if b & 1 else VB
        vl += cm(d, prev, W[8]) + wr(d, 0, b, True); prev = d
    zipl(vl, gl)
    VF = 72; UF = 88; D = [104, 108, 112]
    for s in range(4): k(f"ds_read_b128 {vr(VF+4*s,4)}, v17 offset:{64*s}\nds_read_b128 {vr(UF+4*s,4)}, v17 offset:{PB+64*s}")
    a = wr(G16, 0, 0) + wr(W[4], 0, 1) + wr(W[2], 0, 9) + cm(W[6], W[2], W[4]) + wr(W[6], 0, 13)
    chain[0] = 0
    b = cm(W[3], W[1], W[2]) + cm(W[5], W[1], W[4]) + cm(W[7], W[3], W[4])
    zipl(a, b)
    def mm(t, uf):
        for s in range(4): k(f"v_mfma_f32_16x16x32_bf16 {vr(D[t],4)}, {vr(uf+4*s,4)}, {vr(VF+4*s,4)}, {'0' if s==0 else vr(D[t],4)}")
    mm(0, UF)
    jobs = [(W[4], m, 0, 1 + m) for m in range(1, 8)] + [(W[2], m, 0, 9 + m) for m in range(1, 4)] + [(W[6], m, 0, 13 + m) for m in range(1, 3)]
    def run(jobs):
        for i in range(0, len(jobs), 2):
            ls = []
            for j, (w, m, buf, row) in enumerate(jobs[i:i+2]):
                d = (GA, VA)[j]; chain[0] = j
                ls.append(cm(d, w, G[m]) + wr(d, buf, row))
            zipl(*ls)
    run(jobs)
    for s in range(4): k(f"ds_read_b128 {vr(UF+4*s,4)}, v17 offset:{64*s}")
    chain[0] = 0; a = wr(W[1], 1, 1) + wr(W[5], 1, 3)
    chain[0] = 1; b = wr(W[3], 1, 2) + wr(W[7], 1, 4)
    zipl(a, b)
    run([(W[6], 3, 1, 0)] + [(W[o], 1, 1, 5 + i) for i, o in enumerate((1, 3, 5, 7))])
    for s in range(4): k(f"ds_read_b128 {vr(32+4*s,4)}, v17 offset:{PB+64*s}")
    mm(1, UF)
    mm(2, 32)
    k("v_lshl_add_u32 v16, v2, 4, s24\nv_lshl_add_u32 v17, v0, 4, s27")
    for i in range(4): k(f"v_add_u32 v{12+i}, s29, v{12+i}")
    for t in range(3): k(f"ds_write_b128 v16, {vr(D[t],4)} offset:{1024*t}")
    for i in range(4): k(f"v_and_b32 v{20+2*i}, 0xffff, v{12+i}\nv_lshrrev_b32 v{21+2*i}, 16, v{12+i}")
    k("v_lshlrev_b32 v11, 16, v11\nv_cmp_eq_u32 vcc, 0, v0\nv_lshl_add_u32 v18, v0, 3, s28\nv_cndmask_b32 v11, 0, v11, vcc")
    k.stamp(2)
    k("s_waitcnt lgkmcnt(0)\ns_barrier")
    for w in range(3): k(f"ds_read_b128 {vr(72+4*w,4)}, v17 offset:{w*WB}")
    k("v_add_f32 v72, v72, v11")
    k("v_pk_add_f32 v[72:73], v[72:73], v[76:77]\nv_pk_add_f32 v[74:75], v[74:75], v[78:79]\nv_pk_add_f32 v[72:73], v[72:73], v[80:81]\nv_pk_add_f32 v[74:75], v[74:75], v[82:83]")
    k(f"v_cvt_pk_bf16_f32 v72, v72, v73\nv_cvt_pk_bf16_f32 v73, v74, v75\nds_write_b64 v18, v[72:73]")
    k("s_waitcnt lgkmcnt(0)\ns_barrier")
    for i in range(8): k(f"ds_read_u16 v{28+i}, v{20+i}")
    for i in range(4): k(f"v_lshl_or_b32 v{12+i}, v{29+2*i}, 16, v{28+2*i}")
    k("buffer_store_dwordx4 v[12:15], v5, s[4:7], s25 offen sc1")
    mid()
    return PBASE + 9 * WB

def spin(k, nm, load, test):
    k(f"s_mov_b32 s67, 0\n{nm}:\n!{load}\n!s_add_u32 s67, s67, 1\n!s_waitcnt vmcnt(0)")
    k(f"!s_cmp_gt_u32 s67, 0xffff\n!s_cbranch_scc1 {nm}_ok")
    for t in test: k("!" + t)
    k(f"!s_cbranch_scc1 {nm}\n{nm}_ok:")
    k.reset()

def kF(opt):
    k = K()
    NT = lambda n: " nt" if opt.get("nt" + n, 0) else ""
    LNF = LY.FLG + 8192; KF = LY.FLG + 16384
    UB = 0; KB = 36864; XB = 61440; SH = XB + 16384; RS = 2112
    LNB = 4864 + 9 * 9216; XS = 10752; SB = LNB + 2 * XS
    XR = opt.get("xr", 0); XRB = SB + 28672; LDSZ = SB + 28672 + (16384 if XR else 0)
    UR = opt.get("ur", 0); XS_ = opt.get("xs", 1)
    if UR: XR = 1; UB = LNB; XRB = UB + 36864; MBX = XRB + 32768; LDSZ = MBX + 64; SB = 5120; SH = 61440
    k("s_cmp_ge_u32 s2, 256\ns_cbranch_scc1 F_end")
    if opt.get("rot1"): k("s_add_u32 s2, s2, 255\ns_and_b32 s2, s2, 255")
    if opt.get("st"): k("s_lshl_b32 s2, s2, 1")
    k.st_init(opt.get("st"), 0)
    if opt.get("st"): k("s_lshr_b32 s2, s2, 1")
    mksrd(k, 4, 104, LY.WS_END)
    k("v_lshrrev_b32 v1, 6, v0\nv_and_b32 v2, 63, v0\nv_readfirstlane_b32 s62, v1")
    k("s_lshr_b32 s60, s2, 3\ns_mul_i32 s61, s60, 26\ns_lshr_b32 s61, s61, 8\ns_mul_i32 s14, s61, 10\ns_sub_u32 s60, s60, s14\ns_and_b32 s14, s2, 7\ns_mul_i32 s14, s14, 10\ns_add_u32 s60, s60, s14")
    k("s_cmp_ge_u32 s62, 9\ns_cbranch_scc1 F_side\ns_cmp_ge_u32 s2, 240\ns_cbranch_scc1 F_init")
    k("s_mul_i32 s26, s62, 86\ns_lshr_b32 s26, s26, 8\ns_mul_i32 s3, s26, 3\ns_sub_u32 s3, s62, s3\ns_mul_i32 s14, s61, 3\ns_add_u32 s14, s14, s26\ns_cmp_eq_u32 s14, 8\ns_cbranch_scc1 F_idle")
    k("s_lshl_b32 s2, s60, 3\ns_add_u32 s2, s2, s14\ns_lshl_b32 s14, s3, 6\nv_add_u32 v0, s14, v2")
    AU = 120; XA = 130; HV = 131; UV = 156; L16 = 157; UW = 158; KW = 159; XW = 160; ZA = 161; UL = 88
    MK = {n: 132 + 4 * i for i, n in enumerate("abcoes")}; MK["d"] = MK["b"]
    def early(skip8=False):
        k("v_mov_b32 v21, s62\nv_lshl_add_u32 v20, v21, 6, v2")
        k(f"v_lshrrev_b32 v24, 3, v2\nv_and_b32 v25, 7, v2\nv_lshrrev_b32 v26, 4, v2\nv_and_b32 v27, 1, v21\nv_lshl_add_u32 v27, v27, 2, v26\nv_xor_b32 v27, v25, v27\nv_mul_u32_u24 v24, 10240, v24\nv_lshl_add_u32 v{UV}, v27, 4, v24")
        k(f"s_lshl_b32 s32, s60, 7\ns_add_u32 s64, s32, {KF}\ns_mul_i32 s56, s62, 81920\ns_add_u32 s32, s32, s56\ns_lshl_b32 s56, s62, 10")
        k(f"v_lshlrev_b32 v{L16}, 4, v2\nv_add_u32 v{UW}, s56, v{L16}\nv_add_u32 v{XW}, {XB}, v{UW}\nv_lshlrev_b32 v{ZA}, 3, v20")
        k(f"s_lshl_b32 s52, s60, 3\ns_add_u32 s52, s52, s62\ns_mul_i32 s52, s52, 3072\ns_add_u32 s52, s52, {LY.KP}\ns_mul_i32 s53, s62, 3072\ns_add_u32 s53, s53, {KB}\nv_add_u32 v{KW}, s53, v{L16}")
        k("s_lshl_b32 s65, s61, 2\ns_add_u32 s65, s65, s64\ns_lshl_b32 s56, s26, 2\ns_add_u32 s64, s64, s56")
        for d, c in ((40, "s_cmp_ge_u32 s61, 1"), (44, "s_cmp_eq_u32 s61, 2"), (48, "s_cmp_eq_u32 s61, 0")):
            k(f"s_mov_b32 s{d}, s4\ns_mov_b32 s{d+1}, s5\n{c}\ns_cselect_b32 s{d+2}, s6, 0\ns_mov_b32 s{d+3}, s7")
        k("s_lshl_b32 s57, s61, 9\ns_add_u32 s57, s57, 512\ns_cmp_eq_u32 s61, 0\ns_cselect_b32 s57, 0, s57")
        k(f"s_mul_i32 s36, s57, 1280\ns_add_u32 s36, s36, s32\ns_add_u32 s36, s36, {LY.XT}\ns_add_u32 s37, s36, {8*81920}")
        k(f"s_add_u32 s33, s32, {8*81920}\ns_add_u32 s34, s32, {16*81920}\ns_add_u32 s35, s32, {24*81920}")
        k(f"v_add_u32 v22, s57, v20\nv_lshlrev_b32 v{HV}, 4, v22")
        k(f"s_lshl_b32 s54, s60, 15\ns_add_u32 s54, s54, {LY.H}\ns_add_u32 s55, s54, 8192")
        if skip8: k("s_cmp_eq_u32 s62, 8\ns_cbranch_scc1 F_e8")
        k("v_and_b32 v23, 15, v2\nv_lshl_add_u32 v22, v23, 1, v26")
        for m in range(5):
            off = 32 - 2 + 4 * m if m < 4 else 32 - 3
            k(f"v_add_u32 v25, {off}, v22\nv_bfe_u32 v24, v25, 1, 3\nv_xor_b32 v24, v24, v21\nv_lshlrev_b32 v25, 7, v25\nv_lshl_add_u32 v{AU+m}, v24, 4, v25")
            if UR: k(f"v_add_u32 v{AU+m}, {UB}, v{AU+m}")
        if UR: k(f"v_mov_b32 v28, 0\nv_mov_b32 v29, 0\nv_add_u32 v{ZA}, {UB}, v{ZA}\nds_write_b64 v{ZA}, v[28:29]")
        k(f"v_sub_u32 v25, 15, v23\nv_lshrrev_b32 v25, 1, v25\nv_lshl_add_u32 v25, v26, 2, v25\nv_and_b32 v24, 1, v23\nv_xor_b32 v24, 1, v24\nv_mul_u32_u24 v24, 464, v24\nv_add_u32 v25, v25, v24\nv_lshl_add_u32 v{AU+5}, v25, 2, s53\nv_add_u32 v{AU+6}, 512, v{AU+5}")
        k(f"v_sub_u32 v25, 295, v23\nv_lshl_add_u32 v25, v26, 2, v25\nv_lshl_add_u32 v{AU+7}, v25, 2, s53")
        k(f"s_mul_i32 s56, s62, {RS}\ns_add_u32 s56, s56, {SH}\nv_lshlrev_b32 v25, 5, v23\nv_lshl_add_u32 v25, v26, 3, v25\nv_add_u32 v{AU+8}, s56, v25")
        k(f"v_bfe_u32 v25, v2, 2, 2\nv_mul_u32_u24 v25, {RS}, v25\nv_and_b32 v24, 3, v2\nv_lshl_add_u32 v25, v24, 3, v25\nv_lshrrev_b32 v24, 4, v20\nv_lshl_add_u32 v25, v24, 5, v25\nv_add_u32 v{AU+9}, {SH}, v25")
        F = 40
        k("v_lshlrev_b32 v25, 3, v26\nv_sub_u32 v25, v23, v25\nv_add_u32 v24, 15, v25\nv_add_u32 v25, 16, v25\nv_and_b32 v25, 0xffff, v25\nv_lshl_or_b32 v25, v24, 16, v25\ns_mov_b32 s39, 0x3f803f80")
        for c in range(3, 21): k(f"v_pk_sub_i16 v{F+c-3}, v25, {c} op_sel_hi:[1,0]")
        for c in range(3, 21): k(f"v_pk_ashrrev_i16 v{F+c-3}, 15, v{F+c-3} op_sel_hi:[0,1]")
        win = dict(a=(3, 6), b=(6, 11), c=(11, 14), o=(5, 12), e=(4, 13))
        for n in "abcoe":
            lo, hi = win[n]
            for p in range(4): k(f"v_bitop3_b32 v{MK[n]+p}, v{F+lo+2*p-3}, v{F+hi+2*p-3}, s39 bitop3:0x28")
        for p in range(4): k(f"v_xor_b32 v{MK['s']+p}, v{F+2*p}, v{F+2+2*p}")
        if UR: k(f"v_add_u32 v{XA}, {XRB}, v{HV}")
        elif XR: k(f"v_lshlrev_b32 v{XA}, 4, v20\nv_add_u32 v{XA}, {XRB}, v{XA}")
        else: k(f"v_lshrrev_b32 v25, 1, v26\nv_lshl_add_u32 v25, v23, 1, v25\nv_lshlrev_b32 v25, 7, v25\nv_and_b32 v24, 7, v23\nv_xor_b32 v24, v24, v21\nv_lshl_add_u32 v25, v24, 4, v25\nv_and_b32 v24, 1, v26\nv_lshl_add_u32 v25, v24, 3, v25\nv_add_u32 v{XA}, {XB}, v25")
    def early8():
        early(True); k("F_e8:")
    def uxl():
        for i, (srd, so) in enumerate(((4, 32), (4, 33), (40, 34), (44, 35)) if XR else ((4, 32), (4, 33), (4, 36), (40, 34), (44, 35), (48, 37))):
            k(f"!buffer_load_dwordx4 {vr(UL+4*i,4)}, v{UV}, s[{srd}:{srd+3}], s{so} offen sc1")
    def mid():
        k("s_cmp_eq_u32 s62, 8\ns_cbranch_scc1 F_m8\nF_b:")
    assert kgen(k, opt, 4864, early8, mid) == LNB
    k("v_mov_b32 v4, 1\nv_mov_b32 v6, 0\nv_mov_b32 v7, 0\ns_mov_b32 s63, 0")
    k("s_waitcnt vmcnt(0)\ns_barrier")
    k("s_cmp_lg_u32 s62, 0\ns_cbranch_scc1 F_nf\n!s_mov_b64 exec, 1\n!buffer_store_dword v4, off, s[4:7], s65 sc1\n!s_mov_b64 exec, -1\nF_nf:")
    k.stamp(3)
    KL = 76
    if not UR:
        uxl()
        k(f"ds_write_b64 v{ZA}, v[6:7]")
        P1 = opt.get("kp1", 1)
        UXW = ((UW, 4096), (UW, 12288), (XW, 0), (UW, 20480), (UW, 28672), (XW, 8192))
        if XR: UXW = [x for x in UXW if x[0] == UW]
        for i, (a, o) in enumerate(UXW):
            if i == P1: k("!buffer_load_dword v5, off, s[4:7], s64 sc1")
            k(f"!s_waitcnt vmcnt({len(UXW)-1-i+(i>=P1)})\nds_write_b128 v{a}, {vr(UL+4*i,4)} offset:{o}")
        k("!s_waitcnt vmcnt(0)\nv_readfirstlane_b32 s66, v5\ns_cmp_lg_u32 s66, 1\ns_cbranch_scc1 F_k0")
        for j in range(3): k(f"!buffer_load_dwordx4 {vr(KL+4*j,4)}, v{L16}, s[4:7], s52 offen offset:{1024*j} sc1")
        k("s_mov_b32 s63, 1\nF_k0:\ns_waitcnt lgkmcnt(0)\ns_barrier")
        k.stamp(4); k("s_waitcnt lgkmcnt(0)" if k.on else "")
    k("F_dry:")
    k("s_cmp_eq_u32 s61, 1\ns_cbranch_scc1 B_t1\ns_cmp_eq_u32 s61, 2\ns_cbranch_scc1 B_t2")
    for third, tiles in enumerate(([0, 1, 2, 3], [4, 5], [6, 7])):
        k(f"B_t{third}:"); k.reset()
        ACC = {T: 8 + 4 * i for i, T in enumerate(tiles)}
        pool = [r for r in range(8 + 4 * len(tiles), 120, 4) if not KL <= r < KL + 12] + [164]
        def ld(v, r):
            if v[0] == "B":
                b = v[1]; return [f"ds_read_b128 {vr(r,4)}, v{AU+b%4} offset:{(b//4)*2048}"] if b >= 0 else [f"ds_read_b128 {vr(r,4)}, v{NEG+b%4} offset:{(b//4+2)*2048 if b%4 else 0}"]
            if v[0] == "B24": return [f"ds_read_b128 {vr(r,4)}, v{AU+4} offset:{v[1]*4096}"]
            if v[0] == "A":
                o = 16 * (16 - v[1]); a = AU + 5
                if o >= 128: o -= 128; a = AU + 6
            else:
                o = {"oe": 112, "ab": 128, "cd": 176}[v[0]] - 16 * v[1]; a = AU + 7
            return [f"ds_read2_b32 {vr(r,2)}, v{a} offset0:{o} offset1:{o+1}", f"ds_read2_b32 {vr(r+2,2)}, v{a} offset0:{o+2} offset1:{o+3}"]
        if third == 0:
            NEG = pool.pop()
            for m in range(4): k(f"v_subrev_u32 v{NEG+m}, {4096 if m else 2048}, v{AU+m}")
        full = []
        for q in range(17):
            for T in reversed(tiles):
                if 8 * T - q >= -7: full.append(("M", T, ("A", q), ("B", 8 * T - q)))
        if third == 0: full.sort(key=lambda o: -o[3][1])
        sops = []; tops = []
        for Tp in range(8):
            for pr, Ds in (("ab", (2, 3, 4)), ("cd", (2, 3, 4)), ("oe", (4, 5, 6, 7))):
                us = [T for T in tiles if T - Tp in Ds]
                if not us: continue
                sops.append((pr, Tp))
                for T in us: tops.append(("M", T, ("P", pr, Tp), (pr, T - Tp)))
        spec = [("M", T, ("spec",), ("B", 8 * (T - 4))) for T in tiles if T >= 4]
        ops = []
        for i, (pr, Tp) in enumerate(sops):
            for n in pr: ops.append(("S", n, Tp, ("B24", Tp) if n in "de" else ("B", 8 * Tp, "s")))
            if i: ops.append(("cvt",) + sops[i - 1])
        ops.append(("K",)); ops.append(("cvt",) + sops[-1])
        ops.insert(min(opt.get(f"kp{third}", opt.get("kp", 2)), len(ops) - 2), ("poll",))
        ops += tops + spec + full
        KI = ops.index(("K",))
        def vals(o):
            if o[0] == "M": return [v for v in o[2:] if v[0] not in ("P", "spec")]
            if o[0] == "S": return [o[3]]
            return []
        last = {}
        for i, o in enumerate(ops):
            for v in vals(o): last[v] = i
            if o[0] == "M" and o[2][0] == "P": last[o[2]] = i
        reg = {}; LA = opt.get("bla", 5); mn = [99]
        def prefetch(i, cur):
            if i < len(ops) and not (cur < KI < i):
                for v in vals(ops[i]):
                    if v not in reg:
                        reg[v] = pool.pop(0); mn[0] = min(mn[0], len(pool))
                        for s in ld(v, reg[v]): k(s)
        for i in range(LA): prefetch(i, 0)
        if not XR:
            for i, T in enumerate(tiles): k(f"ds_read_b64 {vr(ACC[T]+2,2)}, v{XA} offset:{4096*i}")
        seen = set() if XR else set(tiles)
        specdone = False
        for i, o in enumerate(ops):
            if o[0] == "poll":
                k("s_waitcnt lgkmcnt(0)" if UR else f"s_waitcnt lgkmcnt(0)\ns_cmp_lg_u32 s63, 0\ns_cbranch_scc1 F_k1{third}")
                spin(k, f"F_pk{third}", "buffer_load_dword v5, off, s[4:7], s64 sc1", ["v_readfirstlane_b32 s66, v5", "s_cmp_lg_u32 s66, 1"])
                for j in range(3): k(f"!buffer_load_dwordx4 {vr(KL+4*j,4)}, v{L16}, s[4:7], s52 offen offset:{1024*j} sc1")
                k(f"F_k1{third}:")
                if UR: k("s_barrier"); k.stamp(4); k("s_waitcnt lgkmcnt(0)" if k.on else "")
                elif opt.get("zb"): k("s_barrier")
            elif o[0] == "K":
                for T in ([] if XR else tiles):
                    a = ACC[T]
                    k(f"v_lshlrev_b32 v{a}, 16, v{a+2}\nv_and_b32 v{a+1}, 0xffff0000, v{a+2}\nv_lshlrev_b32 v{a+2}, 16, v{a+3}\nv_and_b32 v{a+3}, 0xffff0000, v{a+3}")
                for j in range(3): k(f"s_waitcnt vmcnt({2-j})\nds_write_b128 v{KW}, {vr(KL+4*j,4)} offset:{1024*j}")
                k.stamp(5); k("s_waitcnt lgkmcnt(0)" if k.on else "")
                pool += [KL, KL + 4, KL + 8]
                if third: k(f"v_mov_b32 v4, s53\nds_read_b32 v4, v4 offset:{456*4}")
                for j in range(1, LA): prefetch(i + j, i)
            elif o[0] == "S":
                r = pool.pop(0); reg[("S", o[1], o[2])] = r; mn[0] = min(mn[0], len(pool))
                k(f"v_mfma_f32_16x16x32_bf16 {vr(r,4)}, {vr(reg[o[3]],4)}, {vr(MK[o[1]],4)}, 0")
            elif o[0] == "cvt":
                r0 = reg.pop(("S", o[1][0], o[2])); r1 = reg.pop(("S", o[1][1], o[2]))
                for p in range(4): k(f"v_cvt_pk_bf16_f32 v{r0+p}, v{r0+p}, v{r1+p}")
                reg[("P", o[1], o[2])] = r0; pool.append(r1)
            else:
                T = o[1]
                if o[2][0] == "spec":
                    if not specdone:
                        for p in range(4): k(f"v_and_b32 v{MK['s']+p}, v{MK['s']+p}, v4")
                        specdone = True
                    a = MK["s"]
                else: a = reg[o[2]]
                k(f"v_mfma_f32_16x16x32_bf16 {vr(ACC[T],4)}, {vr(a,4)}, {vr(reg[o[3]],4)}, {vr(ACC[T],4) if T in seen else 0}")
                seen.add(T)
            if XR and i == len(ops) - opt.get("xl", 6):
                XQ = [pool.pop(0) for _ in range(len(tiles) // 2)]
                for rnd, r in enumerate(XQ): k(f"ds_read_b128 {vr(r,4)}, v{XA} offset:{8192*rnd}")
            for v in list(reg):
                if last.get(v) == i: pool.append(reg.pop(v))
            prefetch(i + LA, i)
        if XR:
            XF = 132
            k("s_mov_b32 s38, 0x3f80\ns_mov_b32 s39, 0x3f800000")
            for rnd, r in enumerate(XQ):
                for q in range(4): k(f"v_lshlrev_b32 v{XF+8*rnd+2*q}, 16, v{r+q}\nv_and_b32 v{XF+8*rnd+2*q+1}, 0xffff0000, v{r+q}")
        print("third", third, "ops", len(ops), "S", 2 * len(sops), "min pool", mn[0])
        for i, T in enumerate(tiles):
            a = ACC[T]
            k(f"v_cvt_pk_bf16_f32 v{a}, v{a}, v{a+1}\nv_cvt_pk_bf16_f32 v{a+1}, v{a+2}, v{a+3}\nds_write_b64 v{AU+8}, {vr(a,2)} offset:{512*i}")
        if opt.get("dry"): k("s_cbranch_execz F_end")
        nr = len(tiles) // 2
        k("s_waitcnt lgkmcnt(0)\ns_barrier")
        for rnd in range(nr):
            k(f"ds_read_b64_tr_b16 {vr(80+4*rnd,2)}, v{AU+9} offset:{1024*rnd}\nds_read_b64_tr_b16 {vr(82+4*rnd,2)}, v{AU+9} offset:{1024*rnd+4*RS}")
        for rnd in range(nr):
            if XR:
                for q in range(4): k(f"v_dot2c_f32_bf16 v{XF+8*rnd+2*q}, s38, v{80+4*rnd+q}\nv_dot2c_f32_bf16 v{XF+8*rnd+2*q+1}, s39, v{80+4*rnd+q}")
                for q in range(4): k(f"v_cvt_pk_bf16_f32 v{80+4*rnd+q}, v{XF+8*rnd+2*q}, v{XF+8*rnd+2*q+1}")
            k(f"buffer_store_dwordx4 {vr(80+4*rnd,4)}, v{HV}, s[4:7], s{54+rnd} offen sc1")
        k.end()
    k("F_idle:"); k.reset()
    k("s_cmp_eq_u32 s62, 8\ns_cbranch_scc1 F_end\ns_waitcnt lgkmcnt(0)")
    early(); k("s_barrier\ns_barrier\ns_branch F_b")
    k("F_m8:"); k.reset()
    k("s_waitcnt vmcnt(0)\ns_barrier")
    k("s_mov_b32 s63, 1\ns_mov_b64 exec, 0\ns_branch F_dry" if opt.get("dry") else "s_endpgm")
    k("F_init:"); k.reset()
    I0 = opt.get("i0", 0)
    k("s_endpgm\nF_init0:" if I0 else "s_cmp_lg_u32 s2, 255\ns_cbranch_scc1 F_end\ns_cmp_lg_u32 s62, 0\ns_cbranch_scc1 F_end")
    mksrd(k, 8, 96, 256)
    k(f"v_mov_b32 v8, 0\nv_mov_b32 v9, 0\nv_mov_b32 v10, 0\nv_mov_b32 v11, 0\nv_lshlrev_b32 v4, 4, v2\nv_lshlrev_b32 v5, 7, v2\ns_mov_b32 s12, {LY.FLG}\ns_mov_b32 s15, {LNF}\ns_mov_b32 s13, {KF}\ns_mov_b32 s14, {KF+2048}\nv_mov_b32 v6, 1\ns_waitcnt lgkmcnt(0)")
    if UR:
        k("v_add_u32 v7, 4096, v4\nbuffer_load_dword v12, off, s[8:11], 0 sc1")
        for j in range(8): k(f"buffer_store_dwordx4 v[8:11], v{4 if j < 4 else 7}, s[4:7], s15 offen offset:{1024*(j%4)} sc1")
    k("buffer_store_dwordx4 v[8:11], v5, s[4:7], s15 offen sc1\nbuffer_store_dwordx4 v[8:11], v5, s[4:7], s13 offen sc1\nbuffer_store_dwordx4 v[8:11], v5, s[4:7], s14 offen sc1")
    k("s_waitcnt vmcnt(0)\ns_mov_b64 exec, 1\nbuffer_store_dword v6, off, s[8:11], 0 sc1\ns_mov_b64 exec, -1")
    k("buffer_store_dwordx4 v[8:11], v5, s[4:7], s12 offen sc1\n" + ("s_nop 1\nv_lshlrev_b32 v9, 4, v2\ns_branch F_shuf2" if I0 else "s_endpgm"))
    GX = 64; GS = 40
    def h_setup(w):
        k(f"s_lshl_b32 s13, s61, 1\ns_add_u32 s13, s13, 4\ns_mul_i32 s12, {w}, {256*1280}\ns_lshl_b32 s14, s60, 4\ns_add_u32 s12, s12, s14\nv_mul_u32_u24 v21, 1280, v2\ns_sub_u32 s14, s13, 1")
        for j in range(3): k(f"s_add_u32 s15, {w}, {3*j}\ns_min_u32 s15, s15, s14\ns_lshl_b32 s15, s15, 10\ns_add_u32 s{48+j}, s15, {LNF}")
        k(f"s_sub_u32 s13, s13, {w}\ns_lshl_b32 s14, {w}, 12\ns_add_u32 s15, s14, {XRB}\ns_add_u32 s14, s14, {UB+4096}\nv_add_u32 v22, s15, v9\nv_add_u32 v23, s14, v9")
        k("v_lshrrev_b32 v26, 4, v2\nv_bfe_u32 v24, v2, 1, 1\nv_lshl_add_u32 v24, v26, 1, v24\nv_bfe_u32 v25, v2, 2, 2\nv_lshl_add_u32 v24, v24, 3, v25\nv_and_b32 v25, 1, v2\nv_lshl_add_u32 v24, v24, 1, v25\nv_lshl_add_u32 v24, v24, 3, s14")
        k("v_lshlrev_b32 v26, 4, v26\nv_xor_b32 v25, v26, v23\nv_xor_b32 v26, 64, v25")
    def h_gather(nm):
        for j in range(3):
            if j: k(f"s_cmp_le_u32 s13, {3*j}\ns_cbranch_scc1 {nm}_g")
            for q in range(4): k(f"s_add_u32 s14, s12, {(768*j+64*q)*1280}\n!buffer_load_dwordx4 {vr(GX+16*j+4*q,4)}, v21, s[8:11], s14 offen" + ["", " nt", " sc0", " sc1", " sc0 sc1"][opt.get("gm", 0)])
        k(f"{nm}_g:")
    def h_proc(nm):
        spin(k, nm + "_s", "\n!".join(f"buffer_load_dwordx4 {vr(GS+4*j,4)}, v9, s[4:7], s{48+j} offen sc1" for j in range(3)),
             [f"v_min3_u32 v28, v{GS}, v{GS+1}, v{GS+2}"] + [f"v_min3_u32 v28, v28, v{GS+i}, v{GS+i+1}" for i in range(3, 11, 2)] + [f"v_min_u32 v28, v28, v{GS+11}", "v_cmp_eq_u32 vcc, 0, v28", "s_nop 1", "s_cmp_lg_u64 vcc, 0"])
        k.stamp(3)
        HB = opt.get("hb", 0)
        for j in range(3):
            if j: k(f"s_cmp_le_u32 s13, {3*j}\ns_cbranch_scc1 {nm}_p")
            if HB: k(f"s_cmp_gt_u32 s13, {3*j+3}\ns_cbranch_scc1 {nm}_b{j}\ns_barrier\ns_barrier\n{nm}_b{j}:")
            for q in range(4): k(f"ds_write_b128 v22, {vr(GX+16*j+4*q,4)} offset:{12288*j+1024*q}\nv_and_b32 v{112+2*q}, 0xffff0000, v{GS+4*j+q}\nv_rcp_f32 v{112+2*q}, v{112+2*q}\nv_lshlrev_b32 v{GS+4*j+q}, 16, v{GS+4*j+q}")
            for q in range(4): k(f"v_mul_f32 v{120+2*q}, v{GS+4*j+q}, v{112+2*q}")
            for q in range(5):
                if q < 4:
                    x = GX + 16 * j + 4 * q; o = 12288 * j + 1024 * q
                    for e in range(4): k(f"v_lshlrev_b32 v{28+2*e}, 16, v{x+e}\nv_and_b32 v{29+2*e}, 0xffff0000, v{x+e}")
                    for e in range(4): k(f"v_pk_fma_f32 {vr(28+2*e,2)}, {vr(28+2*e,2)}, {vr(112+2*q,2)}, {vr(120+2*q,2)} op_sel_hi:[1,0,0]")
                    for e in range(4): k(f"v_cvt_pk_bf16_f32 v{128+4*q+e}, v{28+2*e}, v{29+2*e}")
                    k(f"ds_write_b128 v23, {vr(128+4*q,4)} offset:{o}\nds_read_b64_tr_b16 {vr(144+4*q,2)}, v24 offset:{o}\nds_read_b64_tr_b16 {vr(146+4*q,2)}, v24 offset:{o+64}")
                if q: k(f"ds_write_b128 v{25+((q-1)&1)}, {vr(144+4*(q-1),4)} offset:{12288*j+1024*(q-1)}")
            k("s_waitcnt lgkmcnt(0)")
        k(f"{nm}_p:"); k.reset()
        k.stamp(4)
        return 2 if HB else 0
    k("F_side:"); k.reset()
    k("v_lshlrev_b32 v9, 4, v2\ns_mov_b32 s30, 0x3f803f80\ns_cmp_lg_u32 s62, 9\ns_cbranch_scc1 F_shuf")
    if opt.get("prio", 3): k(f"s_setprio {opt.get('prio', 3)}")
    mksrd(k, 8, 0, 2621440); mksrd(k, 16, 96, 256)
    if opt.get("pf", 0): k("s_load_dwordx4 s[40:43], s[0:1], 64\ns_load_dwordx2 s[44:45], s[0:1], 80")
    k("v_lshrrev_b32 v3, 3, v2\nv_and_b32 v4, 7, v2\nv_lshlrev_b32 v4, 4, v4\nv_mul_u32_u24 v5, 1280, v3\nv_add_u32 v5, v5, v4\ns_mul_i32 s12, s2, 10240")
    X = 16; TR = 64
    for j in range(10): k(f"buffer_load_dwordx4 {vr(X+4*j,4)}, v5, s[8:11], s12 offen offset:{128*j}{NT('x')}")
    k(f"v_mul_u32_u24 v6, 1344, v3\nv_add_u32 v6, v6, v4\nv_add_u32 v6, {LNB}, v6")
    k(f"v_bfe_u32 v7, v2, 2, 2\nv_mul_u32_u24 v7, 1344, v7\nv_and_b32 v8, 3, v2\nv_lshl_add_u32 v7, v8, 3, v7\nv_bfe_u32 v8, v2, 4, 2\nv_lshl_add_u32 v7, v8, 5, v7\nv_add_u32 v7, {LNB}, v7")
    k(f"s_add_u32 s13, s12, 4096\ns_add_u32 s14, s12, 8192\ns_add_u32 s20, s12, {LY.XT}\ns_add_u32 s21, s13, {LY.XT}\ns_add_u32 s22, s14, {LY.XT}\ns_and_b32 s23, s2, 63\ns_lshl_b32 s23, s23, 7\ns_lshr_b32 s24, s2, 6\ns_lshl_b32 s24, s24, 2\ns_add_u32 s23, s23, s24\ns_add_u32 s23, s23, {LNF}\ns_mov_b32 s24, {LNF}\nv_lshlrev_b32 v8, 7, v2")
    k("v_mov_b32 v10, 0\nv_mov_b32 v11, 0\nv_mov_b32 v12, 0\nv_mov_b32 v13, 0")
    for q in range(40):
        if UR and q == opt.get("gq", 1): k("buffer_load_dword v60, off, s[16:19], 0 sc1")
        k(f"v_dot2c_f32_bf16 v{10+2*(q&1)}, s30, v{X+q}\nv_dot2c_f32_bf16 v{11+2*(q&1)}, v{X+q}, v{X+q}")
        if q % 4 == 3 and not XR: k(f"ds_write_b128 v6, {vr(X+q-3,4)} offset:{XS+32*(q-3)}")
    k.stamp(1)
    tr = lambda r, o: f"ds_read_b64_tr_b16 {vr(r,2)}, v7 offset:{o}\nds_read_b64_tr_b16 {vr(r+2,2)}, v7 offset:{o+4*1344}"
    k("v_add_f32 v10, v10, v12\nv_add_f32 v11, v11, v13")
    for j in range(0 if XR else 10): k(tr(TR + 40 + 4 * j, XS + 128 * j))
    for m in ("quad_perm:[1,0,3,2]", "quad_perm:[2,3,0,1]", "row_half_mirror"):
        k(f"v_add_f32_dpp v10, v10, v10 {m} row_mask:0xf bank_mask:0xf\nv_add_f32_dpp v11, v11, v11 {m} row_mask:0xf bank_mask:0xf")
    k(f"v_mul_f32 v10, {fbits(-1/640)}, v10\nv_mul_f32 v11, {fbits(1/640)}, v11\nv_fma_f32 v11, -v10, v10, v11\nv_max_f32 v11, 0, v11")
    k(f"v_cvt_pk_bf16_f32 v11, v10, v11\nv_lshlrev_b32 v10, 16, v11\nv_and_b32 v11, 0xffff0000, v11\nv_add_f32 v11, {fbits(1e-5)}, v11")
    k("v_cvt_pk_bf16_f32 v11, v11, v11\nv_and_b32 v11, 0xffff0000, v11\nv_sqrt_f32 v11, v11\nv_cvt_pk_bf16_f32 v11, v11, v11\nv_and_b32 v11, 0xffff0000, v11")
    if UR:
        k(f"v_lshrrev_b32 v10, 16, v10\nv_or_b32 v10, v10, v11\nv_lshlrev_b32 v3, 4, v3\ns_lshr_b32 s23, s2, 5\ns_lshl_b32 s23, s23, 10\ns_and_b32 s24, s2, 7\ns_lshl_b32 s24, s24, 7\ns_add_u32 s23, s23, s24\ns_bfe_u32 s24, s2, 0x20003\ns_lshl_b32 s24, s24, 2\ns_add_u32 s23, s23, s24\ns_add_u32 s23, s23, {LNF}")
        k("!s_waitcnt vmcnt(0)\n!v_readfirstlane_b32 s66, v60\ns_cmp_eq_u32 s66, 1\ns_cbranch_scc1 F_go_ok")
        spin(k, "F_go", "buffer_load_dword v60, off, s[16:19], 0 sc1", ["v_readfirstlane_b32 s66, v60", "s_cmp_lg_u32 s66, 1"])
        k("s_mov_b32 exec_lo, 0x01010101\ns_mov_b32 exec_hi, 0x01010101\nbuffer_store_dword v10, v3, s[4:7], s23 offen sc1\ns_mov_b64 exec, -1")
        k.stamp(2)
        k("s_cmp_ge_u32 s2, 240\ns_cbranch_scc1 F_send")
        if XS_: k(f"v_mov_b32 v12, 1\nv_mov_b32 v13, 1\nv_mov_b32 v11, {MBX}\nds_write_b64 v11, v[12:13]")
        h_setup(2); h_gather("F_hl"); h_proc("F_hl")
        k("F_send:")
        k.end()
    else:
        k("v_rcp_f32 v12, v11\nv_mul_f32 v14, v10, v12")
        for j in range(10):
            for q in range(4): k(f"v_lshlrev_b32 v{56+2*q}, 16, v{X+4*j+q}\nv_and_b32 v{57+2*q}, 0xffff0000, v{X+4*j+q}")
            for q in range(4): k(f"v_pk_fma_f32 {vr(56+2*q,2)}, {vr(56+2*q,2)}, v[12:13], v[14:15] op_sel_hi:[1,0,0]")
            for q in range(4): k(f"v_cvt_pk_bf16_f32 v{X+4*j+q}, v{56+2*q}, v{57+2*q}")
            k(f"ds_write_b128 v6, {vr(X+4*j,4)} offset:{128*j}")
            k(tr(TR + 4 * j, 128 * j))
            if not XR: k(f"buffer_store_dwordx4 {vr(TR+40+4*j,4)}, v9, s[4:7], s{20+j//4} offen offset:{1024*(j%4)} sc1")
            if j: k(f"buffer_store_dwordx4 {vr(TR+4*j-4,4)}, v9, s[4:7], s{12+(j-1)//4} offen offset:{1024*((j-1)%4)} sc1")
        k(f"buffer_store_dwordx4 {vr(TR+36,4)}, v9, s[4:7], s14 offen offset:1024 sc1\nv_mov_b32 v3, 1")
        k.stamp(2)
        spin(k, "F_go", "buffer_load_dword v10, off, s[16:19], 0 sc1", ["v_readfirstlane_b32 s66, v10", "s_cmp_lg_u32 s66, 1"])
        k("s_mov_b64 exec, 1\nbuffer_store_dword v3, off, s[4:7], s23 sc1\ns_mov_b64 exec, -1")
        if opt.get("pf", 0):
            k("s_mul_i32 s25, s2, 7680\nv_min_u32 v4, 59, v2\nv_lshlrev_b32 v4, 7, v4\nv_add_u32 v4, s25, v4")
            for i in range(3): k(f"global_load_dword v{16+i}, v4, s[{40+2*i}:{41+2*i}]")
        k.stamp(3)
        k("s_cmp_ge_u32 s2, 240\ns_cbranch_scc1 F_send\ns_barrier\ns_barrier")
        k.stamp(4)
        spin(k, "F_ln", "buffer_load_dwordx4 v[12:15], v8, s[4:7], s24 offen sc1",
             ["v_and_b32 v12, v12, v13", "v_and_b32 v14, v14, v15", "v_and_b32 v12, v12, v14", "v_cmp_ne_u32 vcc, 1, v12", "s_nop 1", "s_cmp_lg_u64 vcc, 0"])
        k.stamp(5)
        k("s_barrier\nF_send:")
        k.end()
    k("F_shuf:"); k.reset()
    if I0: k("s_lshl_b32 s20, s2, 4\ns_add_u32 s20, s20, s62\ns_cmp_eq_u32 s20, 11\ns_cbranch_scc1 F_init0\nF_shuf2:")
    k("s_load_dwordx4 s[40:43], s[0:1], 64\ns_load_dwordx2 s[44:45], s[0:1], 80")
    k("s_getpc_b64 s[20:21]\nA_pc0:\ns_add_u32 s20, s20, kA_kernel-A_pc0\ns_addc_u32 s21, s21, -1")
    k("s_lshr_b32 s22, s2, 3\ns_lshl_b32 s22, s22, 1\ns_add_u32 s22, s22, s62\ns_sub_u32 s22, s22, 10\ns_lshl_b32 s22, s22, 12\nv_lshlrev_b32 v3, 6, v2\nv_add_u32 v4, s22, v3")
    k("v_min_u32 v4, code_end-kA_kernel, v4\nglobal_load_dword v20, v4, s[20:21]")
    NB = 0
    if UR:
        mksrd(k, 8, 0, 2621440); mksrd(k, 16, 96, 256)
        k("s_cmp_ge_u32 s2, 240\ns_cbranch_scc1 F_nox\ns_sub_u32 s28, s62, 10")
        if opt.get("hprio"): k(f"s_setprio {opt['hprio']}")
        if XS_: k(f"s_lshl_b32 s14, s28, 2\ns_add_u32 s14, s14, {MBX}\nv_mov_b32 v27, s14\nv_mov_b32 v28, 0\nds_write_b32 v27, v28")
        h_setup("s28")
        k("s_waitcnt lgkmcnt(0)" + ("\ns_waitcnt vmcnt(0)" if opt.get("xw", 0) >= 0 else ""))
        go2 = lambda: spin(k, "F_go2", "buffer_load_dword v60, off, s[16:19], 0 sc1", ["v_readfirstlane_b32 s66, v60", "s_cmp_lg_u32 s66, 1"])
        if XS_:
            k("s_mov_b32 s67, 0\nF_mb:\n!ds_read_b32 v28, v27\n!s_add_u32 s67, s67, 1\n!s_waitcnt lgkmcnt(0)\n!v_readfirstlane_b32 s66, v28\n!s_cmp_eq_u32 s66, 1\n!s_cbranch_scc1 F_go2_ok\n!s_cmp_lt_u32 s67, 256\n!s_cbranch_scc1 F_mb")
            go2()
        k.stamp(5)
        h_gather("F_hs")
        if not XS_: go2()
        NB = h_proc("F_hs")
        if NB: k("s_branch F_nox2\nF_nox:\ns_barrier\ns_barrier\nF_nox2:\n!s_waitcnt lgkmcnt(0)")
        else: k("F_nox:\n!s_waitcnt lgkmcnt(0)")
    elif XR:
        mksrd(k, 8, 0, 2621440)
        k("s_cmp_ge_u32 s2, 240\ns_cbranch_scc1 F_nox")
        k("s_lshl_b32 s12, s61, 9\ns_add_u32 s12, s12, 512\ns_cmp_eq_u32 s61, 0\ns_cselect_b32 s12, 0, s12\ns_sub_u32 s13, s62, 10\ns_lshl_b32 s14, s13, 6\ns_add_u32 s12, s12, s14\ns_mul_i32 s12, s12, 1280\ns_lshl_b32 s14, s60, 4\ns_add_u32 s12, s12, s14")
        k(f"s_lshl_b32 s13, s13, 10\ns_add_u32 s13, s13, {XRB}\nv_mul_u32_u24 v21, 1280, v2\ns_waitcnt lgkmcnt(0)")
        if opt.get("xw", 0) >= 0: k("s_waitcnt vmcnt(0)")
        for j in range(8):
            if j == 4: k("s_cmp_lg_u32 s61, 0\ns_cbranch_scc1 F_nox")
            k(f"s_add_u32 m0, s13, {2048*j}\ns_add_u32 s14, s12, {128*1280*j}\n!buffer_load_dwordx4 v21, s[8:11], s14 offen lds")
        k("F_nox:\n!s_waitcnt lgkmcnt(0)")
    LD = 64; FR = 16
    k(f"v_lshrrev_b32 v4, 3, v2\nv_and_b32 v5, 7, v2\ns_sub_u32 s20, s62, 10\ns_mul_i32 s20, s20, 20480\ns_add_u32 s20, s20, {SB}")
    k("s_mov_b32 s26, 1966080\ns_mov_b32 s27, 0x00020000\ns_mov_b32 s34, 1966080\ns_mov_b32 s35, 0x00020000")
    SW = opt.get("shw", 4); SP = opt.get("shp", 5)
    k("s_cmp_eq_u32 s2, 255\ns_cbranch_scc1 F_send2\ns_cmp_eq_u32 s62, 11\ns_cbranch_scc1 F_wd\ns_cmp_lt_u32 s2, 63\ns_cbranch_scc1 F_send2")
    k("s_sub_u32 s21, s2, 63\ns_and_b32 s22, s21, 7\ns_lshr_b32 s21, s21, 3\ns_mul_i32 s23, s22, 5")
    k("s_mov_b32 s24, s40\ns_mov_b32 s25, s41\ns_mov_b32 s32, s42\ns_mov_b32 s33, s43")
    k("v_and_b32 v10, 2, v4\nv_xor_b32 v10, v10, v5\nv_mul_u32_u24 v11, 3072, v4\nv_lshl_add_u32 v10, v10, 4, v11\nv_xor_b32 v11, 64, v10")
    k(f"s_mul_i32 s36, s23, {16*3072}\ns_lshl_b32 s37, s21, 7\ns_add_u32 s36, s36, s37")
    k("v_bfe_u32 v3, v2, 4, 1\nv_lshrrev_b32 v6, 5, v2\nv_bfe_u32 v7, v2, 2, 2\nv_and_b32 v8, 3, v2")
    k("v_mul_u32_u24 v48, 2112, v3\nv_lshl_add_u32 v48, v6, 10, v48\nv_lshl_add_u32 v48, v7, 7, v48\nv_lshl_add_u32 v48, v8, 3, v48\nv_and_b32 v7, 2, v7\nv_lshl_add_u32 v48, v7, 4, v48\nv_add_u32 v48, s20, v48")
    for w in range(1, 4): k(f"v_xor_b32 v{48+w}, {32*w}, v48")
    for w in range(4): k(f"v_mov_b32 v{52+w}, 0")
    if UR: k("!s_waitcnt vmcnt(0)" + "\ns_barrier" * (SW - NB))
    elif XR: k("s_barrier\ns_barrier\n!s_waitcnt vmcnt(0)" + "\ns_barrier" * (SW - 2))
    elif SW >= 0: k("s_waitcnt vmcnt(0)" + "\ns_barrier" * SW)
    k.stamp(1)
    for t in range(5):
        for h in range(2):
            if t or h: k(f"s_add_u32 s36, s36, {8*3072}")
            for g in range(2): k(f"s_add_u32 m0, s20, {4096*t+2048*g+1024*h}\nbuffer_load_dwordx4 v{10+g}, s[{24+8*g}:{27+8*g}], s36 offen{NT('w')} lds")
        k.tag(f"w{t}")
    k(f"s_mul_i32 s47, s21, {4*41984}\ns_lshl_b32 s36, s23, 10\ns_add_u32 s47, s47, {LY.W1P}\ns_add_u32 s36, s36, s47\ns_add_u32 s37, s36, 41984\ns_add_u32 s38, s37, 41984\ns_add_u32 s39, s38, 41984\nv_add_u32 v12, 4096, v9")
    k("s_barrier\n" * (SP - max(SW, 0)) + f"s_setprio {opt.get('sprio', 3)}")
    k.stamp(2)
    def rd(t):
        k.waitvm(f"w{t}")
        for w in range(4):
            for e in range(2): k(f"ds_read_b64_tr_b16 {vr(LD+16*t+4*w+2*e,2)}, v{48+w} offset:{4096*t+512*e}")
    rd(0)
    for t in range(5):
        if t < 4: rd(t + 1)
        for w in range(4): k(f"buffer_store_dwordx4 {vr(LD+16*t+4*w,4)}, v{9 if t < 4 else 12}, s[4:7], s{36+w} offen offset:{1024*(t%4)} sc1")
    for t in range(5):
        for q in range(4):
            for w in range(4): k(f"v_dot2c_f32_bf16 v{52+w}, s30, v{LD+16*t+4*w+q}")
    k("v_and_b32 v4, 31, v2\nv_lshlrev_b32 v4, 4, v4\nv_mul_u32_u24 v5, 41984, v6\nv_add_u32 v4, v4, v5")
    k(f"s_lshr_b32 s36, s22, 2\ns_lshl_b32 s36, s36, 9\ns_and_b32 s37, s22, 3\ns_lshl_b32 s37, s37, 2\ns_add_u32 s36, s36, s37\ns_add_u32 s36, s36, s47\ns_add_u32 s36, s36, 40960\ns_add_u32 s37, s36, {2*41984}")
    for w in (0, 2):
        a = 52 + w
        k(f"v_permlane32_swap_b32 v{a}, v{a+1}\nv_add_f32 v{a}, v{a}, v{a+1}\nv_cvt_pk_bf16_f32 v{a+1}, v{a}, v{a}\nv_and_b32 v{a+1}, 0xffff0000, v{a+1}\nv_sub_f32 v{a}, v{a}, v{a+1}\nv_cvt_pk_bf16_f32 v{a}, v{a+1}, v{a}")
        k(f"buffer_store_dword v{a}, v4, s[4:7], s{36+w//2} offen")
    k("F_send2:\n!s_waitcnt vmcnt(0)")
    k.end()
    k("F_wd:"); k.reset()
    k("s_cmp_lt_u32 s2, 15\ns_cbranch_scc1 F_send2\ns_waitcnt lgkmcnt(0)")
    k(f"s_mov_b32 s24, s44\ns_mov_b32 s25, s45\ns_mov_b32 s39, {LY.WDP}")
    k("v_and_b32 v10, 2, v4\nv_lshlrev_b32 v10, 1, v10\nv_bfe_u32 v11, v4, 2, 1\nv_lshl_add_u32 v10, v11, 1, v10\nv_xor_b32 v10, v10, v5\nv_mul_u32_u24 v11, 1280, v4\nv_lshl_add_u32 v10, v10, 4, v11")
    k("s_sub_u32 s21, s2, 15\ns_mul_i32 s50, s21, 13108\ns_lshr_b32 s50, s50, 16\ns_mul_i32 s23, s50, 5\ns_sub_u32 s51, s21, s23\ns_lshl_b32 s51, s51, 1")
    k(f"s_mul_i32 s36, s50, {32*1280}\ns_lshl_b32 s37, s51, 7\ns_add_u32 s36, s36, s37")
    k("v_bfe_u32 v7, v2, 2, 2\nv_and_b32 v8, 3, v2\nv_lshrrev_b32 v6, 5, v2\nv_bfe_u32 v3, v2, 4, 1")
    k("v_lshlrev_b32 v48, 11, v6\nv_lshl_add_u32 v48, v3, 9, v48\nv_lshl_add_u32 v48, v7, 7, v48\nv_add_u32 v48, s20, v48")
    k("v_and_b32 v7, 2, v7\nv_lshlrev_b32 v7, 5, v7\nv_lshl_add_u32 v7, v3, 5, v7")
    if UR: k("!s_waitcnt vmcnt(0)" + "\ns_barrier" * (SW - NB))
    elif XR: k("s_barrier\ns_barrier\n!s_waitcnt vmcnt(0)" + "\ns_barrier" * (SW - 2))
    elif SW >= 0: k("s_waitcnt vmcnt(0)" + "\ns_barrier" * SW)
    k.stamp(1)
    for i in range(4):
        if i: k(f"s_add_u32 s36, s36, {8*1280}")
        for t in range(2): k(f"s_add_u32 m0, s20, {4096*t+1024*i-128*t}\nbuffer_load_dwordx4 v10, s[24:27], s36 offen offset:{128*t}{NT('w')} lds")
    for t in range(2):
        for vv in range(2):
            k(f"s_lshl_b32 s36, s51, 1\ns_add_u32 s36, s36, {2*t+vv}\ns_mul_i32 s37, s36, 52\ns_lshr_b32 s37, s37, 8\ns_mul_i32 s37, s37, 5\ns_sub_u32 s36, s36, s37\ns_cmp_eq_u32 s36, 2\ns_cselect_b32 s36, 3, 4\ns_cselect_b32 s37, 32, 8")
            a = 49 + 4 * t + 2 * vv
            k(f"v_lshlrev_b32 v{a}, s36, v8\nv_add_u32 v{a}, {64*vv}, v{a}\nv_add_u32 v{a+1}, s37, v{a}\nv_xor_b32 v{a}, v{a}, v7\nv_xor_b32 v{a+1}, v{a+1}, v7\nv_add_u32 v{a}, v{a}, v48\nv_add_u32 v{a+1}, v{a+1}, v48")
        for i in range(4):
            k(f"s_lshl_b32 s36, s51, 2\ns_add_u32 s36, s36, {4*t+i}\ns_mul_i32 s37, s36, 52\ns_lshr_b32 s37, s37, 8\ns_mul_i32 s38, s37, 5\ns_sub_u32 s36, s36, s38")
            k(f"s_and_b32 s38, s37, 1\ns_sub_u32 s36, s36, s38\ns_cselect_b32 s36, 4, s36\ns_mul_i32 s37, s37, 48\ns_add_u32 s37, s37, s50\ns_mul_i32 s37, s37, 5\ns_add_u32 s37, s37, s36\ns_lshl_b32 s37, s37, 10\ns_add_u32 s{52+4*t+i}, s37, s39")
    k("s_barrier\n" * (SP - max(SW, 0)) + f"s_setprio {opt.get('sprio', 3)}")
    k.stamp(2)
    k("s_waitcnt vmcnt(0)")
    for t in range(2):
        for i in range(4):
            for e2 in range(2): k(f"ds_read_b64_tr_b16 {vr(LD+16*t+4*i+2*e2,2)}, v{49+4*t+i} offset:{4096*t+1024*e2}")
    for i in range(8): k(f"buffer_store_dwordx4 {vr(LD+4*i,4)}, v9, s[4:7], s{52+i} offen sc1")
    k.end()
    k("F_end:\ns_endpgm")
    data = [".p2align 7", "A_tab:"] + [f".long 0x{x:08x}" for x in LY.gather_table(0)]
    return dict(name="kA_kernel", code=k.finish(), data=data, grid=256, block=768, lds=LDSZ, vgpr=opt.get("nv", 168), agpr=0)
```

```python
from asmlib import K, vr
import layout as LY
import math
from gen_cd import fbits
from gen_ab import mksrd, LOG2E
BIG = 0x7000000

def kgen(k, opt, PBASE, early, mid):
    RS = 288; PB = 16 * RS; WB = 2 * PB
    k("s_load_dwordx8 s[8:15], s[0:1], 8\ns_load_dwordx4 s[16:19], s[0:1], 40")
    k(f"s_mul_i32 s20, s2, 384\nv_lshlrev_b32 v3, 1, v0\nv_add_u32 v3, s20, v3\ns_lshl_b32 s21, s2, 1\nv_mov_b32 v4, s21")
    k("s_getpc_b64 s[22:23]\nA_pc1:\ns_add_u32 s22, s22, A_tab-A_pc1\ns_addc_u32 s23, s23, 0\nv_lshlrev_b32 v5, 4, v0")
    k("s_waitcnt lgkmcnt(0)")
    nt = " nt" if opt.get("ntx", 0) else ""
    k(f"global_load_ushort v10, v4, s[16:17]\nglobal_load_ushort v6, v3, s[8:9]{nt}\nglobal_load_ushort v7, v3, s[10:11]{nt}\nglobal_load_ushort v8, v3, s[12:13]{nt}\nglobal_load_ushort v9, v3, s[14:15]{nt}\nglobal_load_ushort v11, v4, s[18:19]")
    k("global_load_dwordx4 v[12:15], v5, s[22:23]")
    early()
    k(f"s_mul_i32 s27, s26, {3*WB}\ns_add_u32 s27, s27, {PBASE}\ns_mul_i32 s24, s3, {WB}\ns_add_u32 s24, s24, s27\ns_mul_i32 s28, s26, 1600\ns_mul_i32 s29, s28, 0x10001")
    k(f"v_lshl_add_u32 v16, v2, 2, s24\nv_and_b32 v17, 15, v2\nv_mul_u32_u24 v17, {RS}, v17\nv_lshrrev_b32 v18, 4, v2\nv_lshl_add_u32 v17, v18, 4, v17\nv_add_u32 v17, s24, v17")
    k(f"v_mov_b32 v18, 0x3f80\nds_write_b32 v16, v18 offset:{PB}\nv_mov_b32 v18, 0\nv_mov_b32 v19, s28\nds_write_b32 v19, v18 offset:1536")
    k(f"s_mul_i32 s25, s2, 3072\ns_add_u32 s25, s25, {LY.KP}")
    k(f"v_lshlrev_b32 v10, 16, v10\nv_lshlrev_b32 v6, 16, v6\nv_mul_f32 v10, {fbits(LOG2E)}, v10\nv_mul_f32 v6, {fbits(LOG2E)}, v6\nv_exp_f32 v10, v10\nv_exp_f32 v6, v6")
    k("v_lshlrev_b32 v7, 16, v7\nv_cvt_pk_bf16_f32 v6, v6, v10\nv_and_b32 v10, 0xffff0000, v6\nv_lshlrev_b32 v6, 16, v6")
    k(f"v_mul_f32 v6, v6, v10\nv_mul_f32 v7, v7, v10\nv_mul_f32 v6, {fbits(-LOG2E)}, v6\nv_mul_f32 v7, 0.15915494, v7")
    k(f"v_mul_f32 v18, 0x43000000, v6\nv_mul_f32 v19, 0x43000000, v7\nv_fract_f32 v7, v7\nv_fract_f32 v19, v19")
    k.stamp(1)
    W = {n: 20 + 2 * i for i, n in enumerate((1, 2, 4, 8, 3, 5, 6, 7))}
    G = {m: 36 + 2 * (m - 1) for m in range(1, 8)}
    k(f"v_exp_f32 v6, v6\nv_exp_f32 v18, v18\nv_cos_f32 v{W[1]}, v7\nv_sin_f32 v{W[1]+1}, v7\nv_cos_f32 v{G[1]}, v19\nv_sin_f32 v{G[1]+1}, v19")
    k("v_lshlrev_b32 v8, 16, v8\nv_lshlrev_b32 v9, 16, v9\nv_add_f32 v10, v10, v10")
    k(f"v_pk_mul_f32 {vr(W[1],2)}, {vr(W[1],2)}, v[6:7] op_sel_hi:[1,0]\nv_pk_mul_f32 {vr(G[1],2)}, {vr(G[1],2)}, v[18:19] op_sel_hi:[1,0]")
    k("v_pk_mul_f32 v[8:9], v[8:9], v[10:11] op_sel_hi:[1,0]")
    tmp = [50, 52, 54, 56]; ti = [0]; cv = [58, 59, 60, 61]; ci = [0]; chain = [0]
    def cm(d, x, y):
        t = tmp[2 * chain[0] + ti[0] % 2]; ti[0] += 1
        return [f"v_pk_mul_f32 {vr(t,2)}, {vr(x,2)}, {vr(y,2)} op_sel:[0,0] op_sel_hi:[0,1]",
                f"v_pk_fma_f32 {vr(d,2)}, {vr(x,2)}, {vr(y,2)}, {vr(t,2)} op_sel:[1,1,0] op_sel_hi:[1,0,1] neg_lo:[0,1,0]"]
    def wr(x, buf, row, neg=False):
        c = cv[2 * chain[0] + ci[0] % 2]; ci[0] += 1
        return [f"v_cvt_pk_bf16_f32 v{c}, v{x}, {'-' if neg else ''}v{x+1}", f"ds_write_b32 v16, v{c} offset:{buf*PB+row*RS}"]
    def zipl(*ls):
        for i in range(max(len(l) for l in ls)):
            for l in ls:
                if i < len(l): k(l[i])
    GA, GB, VA, VB = 62, 64, 66, 68
    gl = wr(G[1], 1, 1); prev = G[1]
    for m in range(2, 17):
        d = G.get(m, GA if m & 1 else GB)
        gl += cm(d, prev, G[1]); prev = d
        if m < 16: gl += wr(d, 1, m)
    G16 = prev
    chain[0] = 1
    vl = cm(W[2], W[1], W[1]) + cm(W[4], W[2], W[2]) + cm(W[8], W[4], W[4]) + wr(8, 0, 0, True); prev = 8
    for b in range(1, 16):
        d = VA if b & 1 else VB
        vl += cm(d, prev, W[8]) + wr(d, 0, b, True); prev = d
    zipl(vl, gl)
    VF = 72; UF = 88; D = [104, 108, 112]
    for s in range(4): k(f"ds_read_b128 {vr(VF+4*s,4)}, v17 offset:{64*s}\nds_read_b128 {vr(UF+4*s,4)}, v17 offset:{PB+64*s}")
    a = wr(G16, 0, 0) + wr(W[4], 0, 1) + wr(W[2], 0, 9) + cm(W[6], W[2], W[4]) + wr(W[6], 0, 13)
    chain[0] = 0
    b = cm(W[3], W[1], W[2]) + cm(W[5], W[1], W[4]) + cm(W[7], W[3], W[4])
    zipl(a, b)
    def mm(t, uf):
        for s in range(4): k(f"v_mfma_f32_16x16x32_bf16 {vr(D[t],4)}, {vr(uf+4*s,4)}, {vr(VF+4*s,4)}, {'0' if s==0 else vr(D[t],4)}")
    mm(0, UF)
    jobs = [(W[4], m, 0, 1 + m) for m in range(1, 8)] + [(W[2], m, 0, 9 + m) for m in range(1, 4)] + [(W[6], m, 0, 13 + m) for m in range(1, 3)]
    def run(jobs):
        for i in range(0, len(jobs), 2):
            ls = []
            for j, (w, m, buf, row) in enumerate(jobs[i:i+2]):
                d = (GA, VA)[j]; chain[0] = j
                ls.append(cm(d, w, G[m]) + wr(d, buf, row))
            zipl(*ls)
    run(jobs)
    for s in range(4): k(f"ds_read_b128 {vr(UF+4*s,4)}, v17 offset:{64*s}")
    chain[0] = 0; a = wr(W[1], 1, 1) + wr(W[5], 1, 3)
    chain[0] = 1; b = wr(W[3], 1, 2) + wr(W[7], 1, 4)
    zipl(a, b)
    run([(W[6], 3, 1, 0)] + [(W[o], 1, 1, 5 + i) for i, o in enumerate((1, 3, 5, 7))])
    for s in range(4): k(f"ds_read_b128 {vr(32+4*s,4)}, v17 offset:{PB+64*s}")
    mm(1, UF)
    mm(2, 32)
    k("v_lshl_add_u32 v16, v2, 4, s24\nv_lshl_add_u32 v17, v0, 4, s27")
    for i in range(4): k(f"v_add_u32 v{12+i}, s29, v{12+i}")
    for t in range(3): k(f"ds_write_b128 v16, {vr(D[t],4)} offset:{1024*t}")
    for i in range(4): k(f"v_and_b32 v{20+2*i}, 0xffff, v{12+i}\nv_lshrrev_b32 v{21+2*i}, 16, v{12+i}")
    k("v_lshlrev_b32 v11, 16, v11\nv_cmp_eq_u32 vcc, 0, v0\nv_lshl_add_u32 v18, v0, 3, s28\nv_cndmask_b32 v11, 0, v11, vcc")
    k.stamp(2)
    k("s_waitcnt lgkmcnt(0)\ns_barrier")
    for w in range(3): k(f"ds_read_b128 {vr(72+4*w,4)}, v17 offset:{w*WB}")
    k("v_add_f32 v72, v72, v11")
    k("v_pk_add_f32 v[72:73], v[72:73], v[76:77]\nv_pk_add_f32 v[74:75], v[74:75], v[78:79]\nv_pk_add_f32 v[72:73], v[72:73], v[80:81]\nv_pk_add_f32 v[74:75], v[74:75], v[82:83]")
    k(f"v_cvt_pk_bf16_f32 v72, v72, v73\nv_cvt_pk_bf16_f32 v73, v74, v75\nds_write_b64 v18, v[72:73]")
    k("s_waitcnt lgkmcnt(0)\ns_barrier")
    for i in range(8): k(f"ds_read_u16 v{28+i}, v{20+i}")
    for i in range(4): k(f"v_lshl_or_b32 v{12+i}, v{29+2*i}, 16, v{28+2*i}")
    k("buffer_store_dwordx4 v[12:15], v5, s[4:7], s25 offen sc1")
    mid()
    return PBASE + 9 * WB

def spin(k, nm, load, test):
    k(f"s_mov_b32 s67, 0\n{nm}:\n!{load}\n!s_add_u32 s67, s67, 1\n!s_waitcnt vmcnt(0)")
    k(f"!s_cmp_gt_u32 s67, 0xffff\n!s_cbranch_scc1 {nm}_ok")
    for t in test: k("!" + t)
    k(f"!s_cbranch_scc1 {nm}\n{nm}_ok:")
    k.reset()

def kF(opt):
    k = K()
    NT = lambda n: " nt" if opt.get("nt" + n, 0) else ""
    LNF = LY.FLG + 8192; KF = LY.FLG + 16384
    UB = 0; KB = 36864; XB = 61440; SH = XB + 16384; RS = 2112
    LNB = 4864 + 9 * 9216; XS = 10752; SB = LNB + 2 * XS
    XR = opt.get("xr", 0); XRB = SB + 28672; LDSZ = SB + 28672 + (16384 if XR else 0)
    UR = opt.get("ur", 0); XS_ = opt.get("xs", 1)
    if UR: XR = 1; UB = LNB; XRB = UB + 36864; MBX = XRB + 32768; LDSZ = MBX + 64; SB = 5120; SH = 61440
    k("s_cmp_ge_u32 s2, 256\ns_cbranch_scc1 F_end")
    if opt.get("rot1"): k("s_add_u32 s2, s2, 255\ns_and_b32 s2, s2, 255")
    if opt.get("st"): k("s_lshl_b32 s2, s2, 1")
    k.st_init(opt.get("st"), 0)
    if opt.get("st"): k("s_lshr_b32 s2, s2, 1")
    mksrd(k, 4, 104, LY.WS_END)
    k("v_lshrrev_b32 v1, 6, v0\nv_and_b32 v2, 63, v0\nv_readfirstlane_b32 s62, v1")
    k("s_lshr_b32 s60, s2, 3\ns_mul_i32 s61, s60, 26\ns_lshr_b32 s61, s61, 8\ns_mul_i32 s14, s61, 10\ns_sub_u32 s60, s60, s14\ns_and_b32 s14, s2, 7\ns_mul_i32 s14, s14, 10\ns_add_u32 s60, s60, s14")
    k("s_cmp_ge_u32 s62, 9\ns_cbranch_scc1 F_side\ns_cmp_ge_u32 s2, 240\ns_cbranch_scc1 F_init")
    k("s_mul_i32 s26, s62, 86\ns_lshr_b32 s26, s26, 8\ns_mul_i32 s3, s26, 3\ns_sub_u32 s3, s62, s3\ns_mul_i32 s14, s61, 3\ns_add_u32 s14, s14, s26\ns_cmp_eq_u32 s14, 8\ns_cbranch_scc1 F_idle")
    k("s_lshl_b32 s2, s60, 3\ns_add_u32 s2, s2, s14\ns_lshl_b32 s14, s3, 6\nv_add_u32 v0, s14, v2")
    AU = 120; XA = 130; HV = 131; UV = 156; L16 = 157; UW = 158; KW = 159; XW = 160; ZA = 161; UL = 88
    MK = {n: 132 + 4 * i for i, n in enumerate("abcoes")}; MK["d"] = MK["b"]
    def early(skip8=False):
        k("v_mov_b32 v21, s62\nv_lshl_add_u32 v20, v21, 6, v2")
        k(f"v_lshrrev_b32 v24, 3, v2\nv_and_b32 v25, 7, v2\nv_lshrrev_b32 v26, 4, v2\nv_and_b32 v27, 1, v21\nv_lshl_add_u32 v27, v27, 2, v26\nv_xor_b32 v27, v25, v27\nv_mul_u32_u24 v24, 10240, v24\nv_lshl_add_u32 v{UV}, v27, 4, v24")
        k(f"s_lshl_b32 s32, s60, 7\ns_add_u32 s64, s32, {KF}\ns_mul_i32 s56, s62, 81920\ns_add_u32 s32, s32, s56\ns_lshl_b32 s56, s62, 10")
        k(f"v_lshlrev_b32 v{L16}, 4, v2\nv_add_u32 v{UW}, s56, v{L16}\nv_add_u32 v{XW}, {XB}, v{UW}\nv_lshlrev_b32 v{ZA}, 3, v20")
        k(f"s_lshl_b32 s52, s60, 3\ns_add_u32 s52, s52, s62\ns_mul_i32 s52, s52, 3072\ns_add_u32 s52, s52, {LY.KP}\ns_mul_i32 s53, s62, 3072\ns_add_u32 s53, s53, {KB}\nv_add_u32 v{KW}, s53, v{L16}")
        k("s_lshl_b32 s65, s61, 2\ns_add_u32 s65, s65, s64\ns_lshl_b32 s56, s26, 2\ns_add_u32 s64, s64, s56")
        for d, c in ((40, "s_cmp_ge_u32 s61, 1"), (44, "s_cmp_eq_u32 s61, 2"), (48, "s_cmp_eq_u32 s61, 0")):
            k(f"s_mov_b32 s{d}, s4\ns_mov_b32 s{d+1}, s5\n{c}\ns_cselect_b32 s{d+2}, s6, 0\ns_mov_b32 s{d+3}, s7")
        k("s_lshl_b32 s57, s61, 9\ns_add_u32 s57, s57, 512\ns_cmp_eq_u32 s61, 0\ns_cselect_b32 s57, 0, s57")
        k(f"s_mul_i32 s36, s57, 1280\ns_add_u32 s36, s36, s32\ns_add_u32 s36, s36, {LY.XT}\ns_add_u32 s37, s36, {8*81920}")
        k(f"s_add_u32 s33, s32, {8*81920}\ns_add_u32 s34, s32, {16*81920}\ns_add_u32 s35, s32, {24*81920}")
        k(f"v_add_u32 v22, s57, v20\nv_lshlrev_b32 v{HV}, 4, v22")
        k(f"s_lshl_b32 s54, s60, 15\ns_add_u32 s54, s54, {LY.H}\ns_add_u32 s55, s54, 8192")
        if skip8: k("s_cmp_eq_u32 s62, 8\ns_cbranch_scc1 F_e8")
        k("v_and_b32 v23, 15, v2\nv_lshl_add_u32 v22, v23, 1, v26")
        for m in range(5):
            off = 32 - 2 + 4 * m if m < 4 else 32 - 3
            k(f"v_add_u32 v25, {off}, v22\nv_bfe_u32 v24, v25, 1, 3\nv_xor_b32 v24, v24, v21\nv_lshlrev_b32 v25, 7, v25\nv_lshl_add_u32 v{AU+m}, v24, 4, v25")
            if UR: k(f"v_add_u32 v{AU+m}, {UB}, v{AU+m}")
        if UR: k(f"v_mov_b32 v28, 0\nv_mov_b32 v29, 0\nv_add_u32 v{ZA}, {UB}, v{ZA}\nds_write_b64 v{ZA}, v[28:29]")
        k(f"v_sub_u32 v25, 15, v23\nv_lshrrev_b32 v25, 1, v25\nv_lshl_add_u32 v25, v26, 2, v25\nv_and_b32 v24, 1, v23\nv_xor_b32 v24, 1, v24\nv_mul_u32_u24 v24, 464, v24\nv_add_u32 v25, v25, v24\nv_lshl_add_u32 v{AU+5}, v25, 2, s53\nv_add_u32 v{AU+6}, 512, v{AU+5}")
        k(f"v_sub_u32 v25, 295, v23\nv_lshl_add_u32 v25, v26, 2, v25\nv_lshl_add_u32 v{AU+7}, v25, 2, s53")
        k(f"s_mul_i32 s56, s62, {RS}\ns_add_u32 s56, s56, {SH}\nv_lshlrev_b32 v25, 5, v23\nv_lshl_add_u32 v25, v26, 3, v25\nv_add_u32 v{AU+8}, s56, v25")
        k(f"v_bfe_u32 v25, v2, 2, 2\nv_mul_u32_u24 v25, {RS}, v25\nv_and_b32 v24, 3, v2\nv_lshl_add_u32 v25, v24, 3, v25\nv_lshrrev_b32 v24, 4, v20\nv_lshl_add_u32 v25, v24, 5, v25\nv_add_u32 v{AU+9}, {SH}, v25")
        F = 40
        k("v_lshlrev_b32 v25, 3, v26\nv_sub_u32 v25, v23, v25\nv_add_u32 v24, 15, v25\nv_add_u32 v25, 16, v25\nv_and_b32 v25, 0xffff, v25\nv_lshl_or_b32 v25, v24, 16, v25\ns_mov_b32 s39, 0x3f803f80")
        for c in range(3, 21): k(f"v_pk_sub_i16 v{F+c-3}, v25, {c} op_sel_hi:[1,0]")
        for c in range(3, 21): k(f"v_pk_ashrrev_i16 v{F+c-3}, 15, v{F+c-3} op_sel_hi:[0,1]")
        win = dict(a=(3, 6), b=(6, 11), c=(11, 14), o=(5, 12), e=(4, 13))
        for n in "abcoe":
            lo, hi = win[n]
            for p in range(4): k(f"v_bitop3_b32 v{MK[n]+p}, v{F+lo+2*p-3}, v{F+hi+2*p-3}, s39 bitop3:0x28")
        for p in range(4): k(f"v_xor_b32 v{MK['s']+p}, v{F+2*p}, v{F+2+2*p}")
        if UR: k(f"v_add_u32 v{XA}, {XRB}, v{HV}")
        elif XR: k(f"v_lshlrev_b32 v{XA}, 4, v20\nv_add_u32 v{XA}, {XRB}, v{XA}")
        else: k(f"v_lshrrev_b32 v25, 1, v26\nv_lshl_add_u32 v25, v23, 1, v25\nv_lshlrev_b32 v25, 7, v25\nv_and_b32 v24, 7, v23\nv_xor_b32 v24, v24, v21\nv_lshl_add_u32 v25, v24, 4, v25\nv_and_b32 v24, 1, v26\nv_lshl_add_u32 v25, v24, 3, v25\nv_add_u32 v{XA}, {XB}, v25")
    def early8():
        early(True); k("F_e8:")
        if opt.get("l3"): k("s_barrier")
    def uxl():
        for i, (srd, so) in enumerate(((4, 32), (4, 33), (40, 34), (44, 35)) if XR else ((4, 32), (4, 33), (4, 36), (40, 34), (44, 35), (48, 37))):
            k(f"!buffer_load_dwordx4 {vr(UL+4*i,4)}, v{UV}, s[{srd}:{srd+3}], s{so} offen sc1")
    def mid():
        k("s_cmp_eq_u32 s62, 8\ns_cbranch_scc1 F_m8\nF_b:")
    assert kgen(k, opt, 4864, early8, mid) == LNB
    k("v_mov_b32 v4, 1\nv_mov_b32 v6, 0\nv_mov_b32 v7, 0\ns_mov_b32 s63, 0")
    KS = opt.get("ks", 0)
    k("s_barrier" if KS and not opt.get("yw") else "s_waitcnt vmcnt(0)\ns_barrier")
    if not KS: k("s_cmp_lg_u32 s62, 0\ns_cbranch_scc1 F_nf\n!s_mov_b64 exec, 1\n!buffer_store_dword v4, off, s[4:7], s65 sc1\n!s_mov_b64 exec, -1\nF_nf:")
    k.stamp(3)
    KL = 76
    kld = "\n".join(f"!buffer_load_dwordx4 {vr(KL+4*j,4)}, v{L16}, s[4:7], s52 offen offset:{1024*j} sc1" for j in range(3))
    def kchk(nm):
        k(f"s_mov_b32 s67, 0\n{nm}:\n!s_waitcnt vmcnt(0)\n!v_max3_u32 v5, v{KL}, v{KL+1}, v{KL+2}\n!v_max3_u32 v4, v{KL+3}, v{KL+4}, v{KL+5}\n!v_max3_u32 v5, v5, v{KL+6}, v{KL+7}\n!v_max3_u32 v4, v4, v{KL+8}, v{KL+9}\n!v_max3_u32 v5, v5, v{KL+10}, v{KL+11}\n!v_max_u32 v5, v5, v4")
        k(f"!v_cmp_eq_u32 vcc, -1, v5\n!s_add_u32 s67, s67, 1\n!s_nop 0\n!s_cmp_eq_u64 vcc, 0\n!s_cbranch_scc1 {nm}_ok\n!s_cmp_gt_u32 s67, 0x3fff\n!s_cbranch_scc1 {nm}_ok\n{kld}\n!s_branch {nm}\n{nm}_ok:")
    if KS:
        uxl()
        k(f"ds_write_b64 v{ZA}, v[6:7]")
        KQ = opt.get("kq", 0)
        for i in range(4):
            if i == KQ: k(kld)
            k(f"!s_waitcnt vmcnt({3-i+3*(i>=KQ)})\nds_write_b128 v{UW}, {vr(UL+4*i,4)} offset:{4096+8192*i}")
        if KQ == 4: k(kld)
        if KS == 1:
            kchk("F_kc")
            k("s_waitcnt lgkmcnt(0)")
            for j in range(3): k(f"ds_write_b128 v{KW}, {vr(KL+4*j,4)} offset:{1024*j}")
            k("s_barrier")
        else: k("s_waitcnt lgkmcnt(0)\ns_barrier")
        k.stamp(4); k("s_waitcnt lgkmcnt(0)" if k.on else "")
    elif not UR:
        uxl()
        k(f"ds_write_b64 v{ZA}, v[6:7]")
        P1 = opt.get("kp1", 1)
        UXW = ((UW, 4096), (UW, 12288), (XW, 0), (UW, 20480), (UW, 28672), (XW, 8192))
        if XR: UXW = [x for x in UXW if x[0] == UW]
        for i, (a, o) in enumerate(UXW):
            if i == P1: k("!buffer_load_dword v5, off, s[4:7], s64 sc1")
            k(f"!s_waitcnt vmcnt({len(UXW)-1-i+(i>=P1)})\nds_write_b128 v{a}, {vr(UL+4*i,4)} offset:{o}")
        k("!s_waitcnt vmcnt(0)\nv_readfirstlane_b32 s66, v5\ns_cmp_lg_u32 s66, 1\ns_cbranch_scc1 F_k0")
        for j in range(3): k(f"!buffer_load_dwordx4 {vr(KL+4*j,4)}, v{L16}, s[4:7], s52 offen offset:{1024*j} sc1")
        k("s_mov_b32 s63, 1\nF_k0:\ns_waitcnt lgkmcnt(0)\ns_barrier")
        k.stamp(4); k("s_waitcnt lgkmcnt(0)" if k.on else "")
    k("F_dry:")
    k("s_cmp_eq_u32 s61, 1\ns_cbranch_scc1 B_t1\ns_cmp_eq_u32 s61, 2\ns_cbranch_scc1 B_t2")
    for third, tiles in enumerate(([0, 1, 2, 3], [4, 5], [6, 7])):
        k(f"B_t{third}:"); k.reset()
        ACC = {T: 8 + 4 * i for i, T in enumerate(tiles)}
        pool = [r for r in range(8 + 4 * len(tiles), 120, 4) if not KL <= r < KL + 12] + [164]
        def ld(v, r):
            if v[0] == "B":
                b = v[1]; return [f"ds_read_b128 {vr(r,4)}, v{AU+b%4} offset:{(b//4)*2048}"] if b >= 0 else [f"ds_read_b128 {vr(r,4)}, v{NEG+b%4} offset:{(b//4+2)*2048 if b%4 else 0}"]
            if v[0] == "B24": return [f"ds_read_b128 {vr(r,4)}, v{AU+4} offset:{v[1]*4096}"]
            if v[0] == "A":
                o = 16 * (16 - v[1]); a = AU + 5
                if o >= 128: o -= 128; a = AU + 6
            else:
                o = {"oe": 112, "ab": 128, "cd": 176}[v[0]] - 16 * v[1]; a = AU + 7
            return [f"ds_read2_b32 {vr(r,2)}, v{a} offset0:{o} offset1:{o+1}", f"ds_read2_b32 {vr(r+2,2)}, v{a} offset0:{o+2} offset1:{o+3}"]
        if third == 0:
            NEG = pool.pop()
            for m in range(4): k(f"v_subrev_u32 v{NEG+m}, {4096 if m else 2048}, v{AU+m}")
        full = []
        for q in range(17):
            for T in reversed(tiles):
                if 8 * T - q >= -7: full.append(("M", T, ("A", q), ("B", 8 * T - q)))
        if third == 0: full.sort(key=lambda o: -o[3][1])
        sops = []; tops = []
        for Tp in range(8):
            for pr, Ds in (("ab", (2, 3, 4)), ("cd", (2, 3, 4)), ("oe", (4, 5, 6, 7))):
                us = [T for T in tiles if T - Tp in Ds]
                if not us: continue
                sops.append((pr, Tp))
                for T in us: tops.append(("M", T, ("P", pr, Tp), (pr, T - Tp)))
        spec = [("M", T, ("spec",), ("B", 8 * (T - 4))) for T in tiles if T >= 4]
        ops = []
        for i, (pr, Tp) in enumerate(sops):
            for n in pr: ops.append(("S", n, Tp, ("B24", Tp) if n in "de" else ("B", 8 * Tp, "s")))
            if i: ops.append(("cvt",) + sops[i - 1])
        ops.append(("K",)); ops.append(("cvt",) + sops[-1])
        ops.insert(min(opt.get(f"kt{third}", opt.get("kp", 2)), len(ops) - 2), ("poll",))
        ops += tops + spec + full
        KI = ops.index(("K",))
        def vals(o):
            if o[0] == "M": return [v for v in o[2:] if v[0] not in ("P", "spec")]
            if o[0] == "S": return [o[3]]
            return []
        last = {}
        for i, o in enumerate(ops):
            for v in vals(o): last[v] = i
            if o[0] == "M" and o[2][0] == "P": last[o[2]] = i
        reg = {}; LA = opt.get("bla", 5); mn = [99]
        def prefetch(i, cur):
            if i < len(ops) and (KS == 1 or not (cur < KI < i)):
                for v in vals(ops[i]):
                    if v not in reg:
                        reg[v] = pool.pop(0); mn[0] = min(mn[0], len(pool))
                        for s in ld(v, reg[v]): k(s)
        for i in range(LA): prefetch(i, 0)
        if not XR:
            for i, T in enumerate(tiles): k(f"ds_read_b64 {vr(ACC[T]+2,2)}, v{XA} offset:{4096*i}")
        seen = set() if XR else set(tiles)
        specdone = False
        for i, o in enumerate(ops):
            if o[0] == "poll" and KS:
                if KS == 2:
                    kchk(f"F_kc{third}")
                    if opt.get("zb"): k("s_barrier")
            elif o[0] == "poll":
                k("s_waitcnt lgkmcnt(0)" if UR else f"s_waitcnt lgkmcnt(0)\ns_cmp_lg_u32 s63, 0\ns_cbranch_scc1 F_k1{third}")
                spin(k, f"F_pk{third}", "buffer_load_dword v5, off, s[4:7], s64 sc1", ["v_readfirstlane_b32 s66, v5", "s_cmp_lg_u32 s66, 1"])
                for j in range(3): k(f"!buffer_load_dwordx4 {vr(KL+4*j,4)}, v{L16}, s[4:7], s52 offen offset:{1024*j} sc1")
                k(f"F_k1{third}:")
                if UR: k("s_barrier"); k.stamp(4); k("s_waitcnt lgkmcnt(0)" if k.on else "")
                elif opt.get("zb"): k("s_barrier")
            elif o[0] == "K":
                for T in ([] if XR else tiles):
                    a = ACC[T]
                    k(f"v_lshlrev_b32 v{a}, 16, v{a+2}\nv_and_b32 v{a+1}, 0xffff0000, v{a+2}\nv_lshlrev_b32 v{a+2}, 16, v{a+3}\nv_and_b32 v{a+3}, 0xffff0000, v{a+3}")
                for j in range(0 if KS == 1 else 3): k(f"s_waitcnt vmcnt({2-j})\nds_write_b128 v{KW}, {vr(KL+4*j,4)} offset:{1024*j}")
                k.stamp(5); k("s_waitcnt lgkmcnt(0)" if k.on else "")
                pool += [KL, KL + 4, KL + 8]
                if third: k(f"v_mov_b32 v4, s53\nds_read_b32 v4, v4 offset:{456*4}")
                for j in range(1, LA): prefetch(i + j, i)
            elif o[0] == "S":
                r = pool.pop(0); reg[("S", o[1], o[2])] = r; mn[0] = min(mn[0], len(pool))
                k(f"v_mfma_f32_16x16x32_bf16 {vr(r,4)}, {vr(reg[o[3]],4)}, {vr(MK[o[1]],4)}, 0")
            elif o[0] == "cvt":
                r0 = reg.pop(("S", o[1][0], o[2])); r1 = reg.pop(("S", o[1][1], o[2]))
                for p in range(4): k(f"v_cvt_pk_bf16_f32 v{r0+p}, v{r0+p}, v{r1+p}")
                reg[("P", o[1], o[2])] = r0; pool.append(r1)
            else:
                T = o[1]
                if o[2][0] == "spec":
                    if not specdone:
                        for p in range(4): k(f"v_and_b32 v{MK['s']+p}, v{MK['s']+p}, v4")
                        specdone = True
                    a = MK["s"]
                else: a = reg[o[2]]
                k(f"v_mfma_f32_16x16x32_bf16 {vr(ACC[T],4)}, {vr(a,4)}, {vr(reg[o[3]],4)}, {vr(ACC[T],4) if T in seen else 0}")
                seen.add(T)
            if XR and i == len(ops) - opt.get("xl", 6):
                XQ = [pool.pop(0) for _ in range(len(tiles) // 2)]
                for rnd, r in enumerate(XQ): k(f"ds_read_b128 {vr(r,4)}, v{XA} offset:{8192*rnd}")
            for v in list(reg):
                if last.get(v) == i: pool.append(reg.pop(v))
            prefetch(i + LA, i)
        if XR:
            XF = 132
            k("s_mov_b32 s38, 0x3f80\ns_mov_b32 s39, 0x3f800000")
            for rnd, r in enumerate(XQ):
                for q in range(4): k(f"v_lshlrev_b32 v{XF+8*rnd+2*q}, 16, v{r+q}\nv_and_b32 v{XF+8*rnd+2*q+1}, 0xffff0000, v{r+q}")
        print("third", third, "ops", len(ops), "S", 2 * len(sops), "min pool", mn[0])
        for i, T in enumerate(tiles):
            a = ACC[T]
            k(f"v_cvt_pk_bf16_f32 v{a}, v{a}, v{a+1}\nv_cvt_pk_bf16_f32 v{a+1}, v{a+2}, v{a+3}\nds_write_b64 v{AU+8}, {vr(a,2)} offset:{512*i}")
        if opt.get("dry"): k("s_cbranch_execz F_end")
        nr = len(tiles) // 2
        k("s_waitcnt lgkmcnt(0)\ns_barrier")
        for rnd in range(nr):
            k(f"ds_read_b64_tr_b16 {vr(80+4*rnd,2)}, v{AU+9} offset:{1024*rnd}\nds_read_b64_tr_b16 {vr(82+4*rnd,2)}, v{AU+9} offset:{1024*rnd+4*RS}")
        for rnd in range(nr):
            if XR:
                for q in range(4): k(f"v_dot2c_f32_bf16 v{XF+8*rnd+2*q}, s38, v{80+4*rnd+q}\nv_dot2c_f32_bf16 v{XF+8*rnd+2*q+1}, s39, v{80+4*rnd+q}")
                for q in range(4): k(f"v_cvt_pk_bf16_f32 v{80+4*rnd+q}, v{XF+8*rnd+2*q}, v{XF+8*rnd+2*q+1}")
            k(f"buffer_store_dwordx4 {vr(80+4*rnd,4)}, v{HV}, s[4:7], s{54+rnd} offen sc1")
        k.end()
    k("F_idle:"); k.reset()
    k("s_cmp_eq_u32 s62, 8\ns_cbranch_scc1 F_end\ns_waitcnt lgkmcnt(0)")
    early(); k("s_barrier\n" * (3 if opt.get("l3") else 2) + "s_branch F_b")
    k("F_m8:"); k.reset()
    k("s_barrier\ns_barrier" if KS else "s_waitcnt vmcnt(0)\ns_barrier")
    k("s_mov_b32 s63, 1\ns_mov_b64 exec, 0\ns_branch F_dry" if opt.get("dry") else "s_endpgm")
    k("F_init:"); k.reset()
    I0 = opt.get("i0", 0)
    k("s_endpgm\nF_init0:" if I0 else "s_cmp_lg_u32 s2, 255\ns_cbranch_scc1 F_end\ns_cmp_lg_u32 s62, 0\ns_cbranch_scc1 F_end")
    mksrd(k, 8, 96, 256)
    k(f"v_mov_b32 v8, 0\nv_mov_b32 v9, 0\nv_mov_b32 v10, 0\nv_mov_b32 v11, 0\nv_lshlrev_b32 v4, 4, v2\nv_lshlrev_b32 v5, 7, v2\ns_mov_b32 s12, {LY.FLG}\ns_mov_b32 s15, {LNF}\ns_mov_b32 s13, {KF}\ns_mov_b32 s14, {KF+2048}\nv_mov_b32 v6, 1\ns_waitcnt lgkmcnt(0)")
    if UR:
        k("v_add_u32 v7, 4096, v4\nbuffer_load_dword v12, off, s[8:11], 0 sc1")
        for j in range(8): k(f"buffer_store_dwordx4 v[8:11], v{4 if j < 4 else 7}, s[4:7], s15 offen offset:{1024*(j%4)} sc1")
    I1 = opt.get("i1", 0)
    if I1 == 2:
        k("v_add_u32 v7, 4096, v4")
        for j in range(8): k(f"buffer_store_dwordx4 v[8:11], v{4 if j < 4 else 7}, s[4:7], s15 offen offset:{1024*(j%4)} sc1")
    else: k("buffer_store_dwordx4 v[8:11], v5, s[4:7], s15 offen sc1")
    if not KS: k("buffer_store_dwordx4 v[8:11], v5, s[4:7], s13 offen sc1\nbuffer_store_dwordx4 v[8:11], v5, s[4:7], s14 offen sc1")
    k("s_waitcnt vmcnt(0)\ns_mov_b64 exec, 1\nbuffer_store_dword v6, off, s[8:11], 0 sc1\ns_mov_b64 exec, -1")
    if I1: k(f"s_endpgm\nF_ez:\nv_mov_b32 v8, 0\nv_mov_b32 v9, 0\nv_mov_b32 v10, 0\nv_mov_b32 v11, 0\nv_lshlrev_b32 v5, 7, v2\ns_mov_b32 s12, {LY.FLG}\ns_cmp_eq_u32 s62, 11\ns_cbranch_scc1 F_end")
    k("buffer_store_dwordx4 v[8:11], v5, s[4:7], s12 offen sc1\n" + ("s_nop 1\nv_lshlrev_b32 v9, 4, v2\ns_branch F_shuf2" if I0 else "s_endpgm"))
    GX = 64; GS = 40
    def h_setup(w):
        k(f"s_lshl_b32 s13, s61, 1\ns_add_u32 s13, s13, 4\ns_mul_i32 s12, {w}, {256*1280}\ns_lshl_b32 s14, s60, 4\ns_add_u32 s12, s12, s14\nv_mul_u32_u24 v21, 1280, v2\ns_sub_u32 s14, s13, 1")
        for j in range(3): k(f"s_add_u32 s15, {w}, {3*j}\ns_min_u32 s15, s15, s14\ns_lshl_b32 s15, s15, 10\ns_add_u32 s{48+j}, s15, {LNF}")
        k(f"s_sub_u32 s13, s13, {w}\ns_lshl_b32 s14, {w}, 12\ns_add_u32 s15, s14, {XRB}\ns_add_u32 s14, s14, {UB+4096}\nv_add_u32 v22, s15, v9\nv_add_u32 v23, s14, v9")
        k("v_lshrrev_b32 v26, 4, v2\nv_bfe_u32 v24, v2, 1, 1\nv_lshl_add_u32 v24, v26, 1, v24\nv_bfe_u32 v25, v2, 2, 2\nv_lshl_add_u32 v24, v24, 3, v25\nv_and_b32 v25, 1, v2\nv_lshl_add_u32 v24, v24, 1, v25\nv_lshl_add_u32 v24, v24, 3, s14")
        k("v_lshlrev_b32 v26, 4, v26\nv_xor_b32 v25, v26, v23\nv_xor_b32 v26, 64, v25")
    def h_gather(nm):
        for j in range(3):
            if j: k(f"s_cmp_le_u32 s13, {3*j}\ns_cbranch_scc1 {nm}_g")
            for q in range(4): k(f"s_add_u32 s14, s12, {(768*j+64*q)*1280}\n!buffer_load_dwordx4 {vr(GX+16*j+4*q,4)}, v21, s[8:11], s14 offen" + ["", " nt", " sc0", " sc1", " sc0 sc1"][opt.get("gm", 0)])
        k(f"{nm}_g:")
    def h_proc(nm):
        spin(k, nm + "_s", "\n!".join(f"buffer_load_dwordx4 {vr(GS+4*j,4)}, v9, s[4:7], s{48+j} offen sc1" for j in range(3)),
             [f"v_min3_u32 v28, v{GS}, v{GS+1}, v{GS+2}"] + [f"v_min3_u32 v28, v28, v{GS+i}, v{GS+i+1}" for i in range(3, 11, 2)] + [f"v_min_u32 v28, v28, v{GS+11}", "v_cmp_eq_u32 vcc, 0, v28", "s_nop 1", "s_cmp_lg_u64 vcc, 0"])
        k.stamp(3)
        HB = opt.get("hb", 0)
        for j in range(3):
            if j: k(f"s_cmp_le_u32 s13, {3*j}\ns_cbranch_scc1 {nm}_p")
            if HB: k(f"s_cmp_gt_u32 s13, {3*j+3}\ns_cbranch_scc1 {nm}_b{j}\ns_barrier\ns_barrier\n{nm}_b{j}:")
            for q in range(4): k(f"ds_write_b128 v22, {vr(GX+16*j+4*q,4)} offset:{12288*j+1024*q}\nv_and_b32 v{112+2*q}, 0xffff0000, v{GS+4*j+q}\nv_rcp_f32 v{112+2*q}, v{112+2*q}\nv_lshlrev_b32 v{GS+4*j+q}, 16, v{GS+4*j+q}")
            for q in range(4): k(f"v_mul_f32 v{120+2*q}, v{GS+4*j+q}, v{112+2*q}")
            for q in range(5):
                if q < 4:
                    x = GX + 16 * j + 4 * q; o = 12288 * j + 1024 * q
                    for e in range(4): k(f"v_lshlrev_b32 v{28+2*e}, 16, v{x+e}\nv_and_b32 v{29+2*e}, 0xffff0000, v{x+e}")
                    for e in range(4): k(f"v_pk_fma_f32 {vr(28+2*e,2)}, {vr(28+2*e,2)}, {vr(112+2*q,2)}, {vr(120+2*q,2)} op_sel_hi:[1,0,0]")
                    for e in range(4): k(f"v_cvt_pk_bf16_f32 v{128+4*q+e}, v{28+2*e}, v{29+2*e}")
                    k(f"ds_write_b128 v23, {vr(128+4*q,4)} offset:{o}\nds_read_b64_tr_b16 {vr(144+4*q,2)}, v24 offset:{o}\nds_read_b64_tr_b16 {vr(146+4*q,2)}, v24 offset:{o+64}")
                if q: k(f"ds_write_b128 v{25+((q-1)&1)}, {vr(144+4*(q-1),4)} offset:{12288*j+1024*(q-1)}")
            k("s_waitcnt lgkmcnt(0)")
        k(f"{nm}_p:"); k.reset()
        k.stamp(4)
        return 2 if HB else 0
    L3 = opt.get("l3", 0)
    def codepf():
        k("s_getpc_b64 s[20:21]\nA_pc0:\ns_add_u32 s20, s20, kA_kernel-A_pc0\ns_addc_u32 s21, s21, -1")
        k("s_lshr_b32 s22, s2, 3\ns_lshl_b32 s22, s22, 1\ns_and_b32 s23, s62, 1\ns_add_u32 s22, s22, s23\ns_lshl_b32 s22, s22, 12\nv_lshlrev_b32 v118, 6, v2\nv_add_u32 v118, s22, v118")
        k("v_min_u32 v118, code_end-kA_kernel, v118\nglobal_load_dword v117, v118, s[20:21]")
    if L3:
        assert KS and XR and not UR
        MBX = LDSZ; PS = MBX + 64; LDSZ += 64 + 1536
        k("F_side:"); k.reset()
        k(f"s_setprio {opt.get('prio', 3)}")
        mksrd(k, 8, 0, 2621440); mksrd(k, 16, 96, 256)
        k("v_lshlrev_b32 v9, 4, v2\ns_mov_b32 s30, 0x3f803f80\nv_lshrrev_b32 v3, 3, v2\nv_and_b32 v4, 7, v2\nv_lshlrev_b32 v4, 4, v4\nv_mul_u32_u24 v5, 1280, v3\nv_add_u32 v5, v5, v4\ns_mul_i32 s12, s2, 10240")
        k("s_sub_u32 s28, s62, 9\ns_lshl_b32 s29, s28, 2\ns_lshr_b32 s13, s28, 1\ns_sub_u32 s29, s29, s13\ns_lshl_b32 s29, s29, 7\ns_add_u32 s13, s12, s29")
        k("s_mov_b32 s36, s8\ns_mov_b32 s37, s9\ns_cmp_eq_u32 s28, 0\ns_cselect_b32 s38, s10, 0\ns_mov_b32 s39, s11")
        X = 16; TR = 64
        for j in range(4): k(f"buffer_load_dwordx4 {vr(X+4*j,4)}, v5, s[{8 if j < 3 else 36}:{11 if j < 3 else 39}], s13 offen offset:{128*j}{NT('x')}")
        for i in range(4): k(f"v_mov_b32 v{112+i}, -1")
        k(f"s_mul_i32 s26, s61, 3\ns_add_u32 s26, s26, s28\ns_lshl_b32 s25, s60, 3\ns_add_u32 s25, s25, s26\ns_mul_i32 s25, s25, 3072\ns_add_u32 s25, s25, {LY.KP}")
        k("s_mov_b32 s32, s4\ns_mov_b32 s33, s5\ns_cmp_lt_u32 s26, 8\ns_cselect_b32 s34, s6, 0\ns_mov_b32 s35, s7")
        sen = "\n".join(f"buffer_store_dwordx4 v[112:115], v9, s[32:35], s25 offen offset:{1024*j} sc1" for j in range(3))
        SQ = opt.get("sq", 2)
        if SQ == 0: k(sen)
        codepf()
        k(f"v_lshlrev_b32 v119, 3, v2\nv_add_u32 v119, {PS}, v119\ns_lshl_b32 s26, s28, 9\nv_add_u32 v111, s26, v119\nds_write_b64 v111, v[112:113]")
        k(f"v_mov_b32 v10, 0\nv_mov_b32 v11, 0\nv_mov_b32 v12, 0\nv_mov_b32 v13, 0\ns_lshl_b32 s26, s28, 2\ns_add_u32 s26, s26, {MBX-4}\ns_cmp_lg_u32 s28, 0\ns_cselect_b32 s26, s26, {MBX}\nv_mov_b32 v116, s26\ns_cbranch_scc1 F_l3a\n!ds_write_b64 v116, v[10:11]\nF_l3a:")
        k(f"s_add_u32 s29, s29, {LNB}\nv_mul_u32_u24 v6, 1344, v3\nv_add3_u32 v6, v6, v4, s29")
        k(f"v_bfe_u32 v7, v2, 2, 2\nv_mul_u32_u24 v7, 1344, v7\nv_and_b32 v8, 3, v2\nv_lshl_add_u32 v7, v8, 3, v7\nv_bfe_u32 v8, v2, 4, 2\nv_lshl_add_u32 v7, v8, 5, v7\nv_add_u32 v7, s29, v7")
        k(f"s_sub_u32 s29, s29, {LNB}\ns_lshl_b32 s29, s29, 3\ns_add_u32 s12, s12, s29\ns_and_b32 s23, s2, 63\ns_lshl_b32 s23, s23, 7\ns_lshr_b32 s24, s2, 6\ns_lshl_b32 s24, s24, 2\ns_add_u32 s23, s23, s24\ns_add_u32 s23, s23, {LNF}\ns_mov_b32 s24, {LNF}\nv_lshlrev_b32 v8, 7, v2")
        UP = 120
        k("s_waitcnt lgkmcnt(0)\ns_barrier")
        for q in range(16):
            k(f"v_dot2c_f32_bf16 v{10+2*(q&1)}, s30, v{X+q}\nv_dot2c_f32_bf16 v{11+2*(q&1)}, v{X+q}, v{X+q}")
            if q < 16: k(f"v_lshlrev_b32 v{UP+2*q}, 16, v{X+q}\nv_and_b32 v{UP+2*q+1}, 0xffff0000, v{X+q}")
        k.stamp(1)
        tr = lambda r, o: f"ds_read_b64_tr_b16 {vr(r,2)}, v7 offset:{o}\nds_read_b64_tr_b16 {vr(r+2,2)}, v7 offset:{o+4*1344}"
        k("v_add_f32 v10, v10, v12\nv_add_f32 v11, v11, v13")
        for m in ("quad_perm:[1,0,3,2]", "quad_perm:[2,3,0,1]", "row_half_mirror"):
            k(f"v_add_f32_dpp v10, v10, v10 {m} row_mask:0xf bank_mask:0xf\nv_add_f32_dpp v11, v11, v11 {m} row_mask:0xf bank_mask:0xf")
        k("ds_write_b64 v111, v[10:11]")
        if SQ == 1: k(sen)
        k("s_mov_b32 s67, 0\nF_ps:\n!ds_read_b64 v[10:11], v119\n!ds_read_b64 v[12:13], v119 offset:512\n!ds_read_b64 v[14:15], v119 offset:1024\n!s_add_u32 s67, s67, 1\n!s_waitcnt lgkmcnt(0)\n!v_max3_u32 v110, v11, v13, v15\n!v_cmp_eq_u32 vcc, -1, v110\n!v_add_f32 v10, v10, v12\n!v_add_f32 v11, v11, v13\n!s_cmp_eq_u64 vcc, 0\n!s_cbranch_scc1 F_ps_ok\n!s_cmp_lt_u32 s67, 0xffff\n!s_cbranch_scc1 F_ps\nF_ps_ok:\nv_add_f32 v10, v10, v14\nv_add_f32 v11, v11, v15")
        k(f"v_mul_f32 v10, {fbits(-1/640)}, v10\nv_mul_f32 v11, {fbits(1/640)}, v11\nv_fma_f32 v11, -v10, v10, v11\nv_max_f32 v11, 0, v11")
        k(f"v_cvt_pk_bf16_f32 v11, v10, v11\nv_lshlrev_b32 v10, 16, v11\nv_and_b32 v11, 0xffff0000, v11\nv_add_f32 v11, {fbits(1e-5)}, v11")
        k("v_cvt_pk_bf16_f32 v11, v11, v11\nv_and_b32 v11, 0xffff0000, v11\nv_sqrt_f32 v11, v11\nv_cvt_pk_bf16_f32 v11, v11, v11\nv_and_b32 v11, 0xffff0000, v11")
        k("v_rcp_f32 v12, v11\nv_mul_f32 v14, v10, v12")
        def chunk(j):
            for q in range(4): k(f"v_pk_fma_f32 {vr(UP+8*j+2*q,2)}, {vr(UP+8*j+2*q,2)}, v[12:13], v[14:15] op_sel_hi:[1,0,0]")
            for q in range(4): k(f"v_cvt_pk_bf16_f32 v{X+4*j+q}, v{UP+8*j+2*q}, v{UP+8*j+2*q+1}")
            k(f"ds_write_b128 v6, {vr(X+4*j,4)} offset:{128*j}")
            k(tr(TR + 4 * j, 128 * j))
        ust = lambda j: k(f"buffer_store_dwordx4 {vr(TR+4*j,4)}, v9, s[4:7], s12 offen offset:{1024*j} sc1")
        chunk(0); chunk(1); ust(0); chunk(2); ust(1)
        k("s_cmp_eq_u32 s28, 0\ns_cbranch_scc1 F_l3b\n!s_waitcnt lgkmcnt(0)")
        k(f"!buffer_store_dwordx4 {vr(TR+8,4)}, v9, s[4:7], s12 offen offset:2048 sc1" + ("\n!" + sen.replace("\n", "\n!") if SQ == 2 else "") + f"\n!v_mov_b32 v3, 1\n!s_waitcnt vmcnt(0)\n!ds_write_b32 v116, v3\n!s_setprio 0\n!s_waitcnt lgkmcnt(0)\n!s_branch F_shuf\nF_l3b:")
        chunk(3); ust(2); ust(3)
        if SQ == 2: k(sen)
        k("v_mov_b32 v3, 1")
        k.stamp(2)
        k("s_lshl_b32 s12, s61, 9\ns_add_u32 s12, s12, 512\ns_cmp_eq_u32 s61, 0\ns_cselect_b32 s12, 0, s12\ns_mul_i32 s12, s12, 1280\ns_lshl_b32 s14, s60, 4\ns_add_u32 s12, s12, s14\nv_mul_u32_u24 v21, 1280, v2")
        spin(k, "F_go", "buffer_load_dword v10, off, s[16:19], 0 sc1", ["v_readfirstlane_b32 s66, v10", "s_cmp_lg_u32 s66, 1"])
        k("s_mov_b32 s67, 0\nF_mb:\n!ds_read_b64 v[10:11], v116\n!s_add_u32 s67, s67, 1\n!s_waitcnt lgkmcnt(0)\n!v_and_b32 v10, v10, v11\n!s_nop 0\n!v_readfirstlane_b32 s66, v10\n!s_cmp_eq_u32 s66, 1\n!s_cbranch_scc1 F_mb_ok\n!s_cmp_lt_u32 s67, 0xffff\n!s_cbranch_scc1 F_mb\nF_mb_ok:")
        k("s_mov_b64 exec, 1\nbuffer_store_dword v3, off, s[4:7], s23 sc1\ns_mov_b64 exec, -1")
        k.stamp(3)
        k("s_cmp_ge_u32 s2, 240\ns_cbranch_scc1 F_send")
        for j in range(16):
            if j == 8: k("s_cmp_lg_u32 s61, 0\ns_cbranch_scc1 F_l3c")
            k(f"s_mov_b32 m0, {XRB+1024*j}\ns_add_u32 s14, s12, {64*1280*j}\n!buffer_load_dwordx4 v21, s[8:11], s14 offen lds")
        k("F_l3c:")
        LP = opt.get("lp", 0)
        k("s_barrier\n" * (2 - LP))
        if LP: k("!buffer_load_dwordx4 v[12:15], v8, s[4:7], s24 offen sc1\n" + "s_barrier\n" * LP)
        k.stamp(4)
        if LP: k("!s_waitcnt vmcnt(0)\n!v_and_b32 v12, v12, v13\n!v_and_b32 v14, v14, v15\n!v_and_b32 v12, v12, v14\n!v_cmp_ne_u32 vcc, 1, v12\n!s_nop 1\n!s_cmp_eq_u64 vcc, 0\n!s_cbranch_scc1 F_ln_ok")
        spin(k, "F_ln", "buffer_load_dwordx4 v[12:15], v8, s[4:7], s24 offen sc1",
             ["v_and_b32 v12, v12, v13", "v_and_b32 v14, v14, v15", "v_and_b32 v12, v12, v14", "v_cmp_ne_u32 vcc, 1, v12", "s_nop 1", "s_cmp_lg_u64 vcc, 0"])
        k.stamp(5)
        k("s_barrier\nF_send:")
        k.end()
    else:
        k("F_side:"); k.reset()
        k("v_lshlrev_b32 v9, 4, v2\ns_mov_b32 s30, 0x3f803f80\ns_cmp_lg_u32 s62, 9\ns_cbranch_scc1 F_shuf")
        if opt.get("prio", 3): k(f"s_setprio {opt.get('prio', 3)}")
        mksrd(k, 8, 0, 2621440); mksrd(k, 16, 96, 256)
        if opt.get("pf", 0): k("s_load_dwordx4 s[40:43], s[0:1], 64\ns_load_dwordx2 s[44:45], s[0:1], 80")
        k("v_lshrrev_b32 v3, 3, v2\nv_and_b32 v4, 7, v2\nv_lshlrev_b32 v4, 4, v4\nv_mul_u32_u24 v5, 1280, v3\nv_add_u32 v5, v5, v4\ns_mul_i32 s12, s2, 10240")
        X = 16; TR = 64
        for j in range(10): k(f"buffer_load_dwordx4 {vr(X+4*j,4)}, v5, s[8:11], s12 offen offset:{128*j}{NT('x')}")
        k(f"v_mul_u32_u24 v6, 1344, v3\nv_add_u32 v6, v6, v4\nv_add_u32 v6, {LNB}, v6")
        k(f"v_bfe_u32 v7, v2, 2, 2\nv_mul_u32_u24 v7, 1344, v7\nv_and_b32 v8, 3, v2\nv_lshl_add_u32 v7, v8, 3, v7\nv_bfe_u32 v8, v2, 4, 2\nv_lshl_add_u32 v7, v8, 5, v7\nv_add_u32 v7, {LNB}, v7")
        k(f"s_add_u32 s13, s12, 4096\ns_add_u32 s14, s12, 8192\ns_add_u32 s20, s12, {LY.XT}\ns_add_u32 s21, s13, {LY.XT}\ns_add_u32 s22, s14, {LY.XT}\ns_and_b32 s23, s2, 63\ns_lshl_b32 s23, s23, 7\ns_lshr_b32 s24, s2, 6\ns_lshl_b32 s24, s24, 2\ns_add_u32 s23, s23, s24\ns_add_u32 s23, s23, {LNF}\ns_mov_b32 s24, {LNF}\nv_lshlrev_b32 v8, 7, v2")
        k("v_mov_b32 v10, 0\nv_mov_b32 v11, 0\nv_mov_b32 v12, 0\nv_mov_b32 v13, 0")
        if KS:
            assert XR
            for i in range(4): k(f"v_mov_b32 v{112+i}, -1")
            SQ = opt.get("sq", 0)
            k(f"s_lshl_b32 s25, s60, 3\ns_mul_i32 s26, s61, 3\ns_add_u32 s25, s25, s26\ns_mul_i32 s25, s25, 3072\ns_add_u32 s25, s25, {LY.KP}\ns_add_u32 s26, s25, 3072\ns_add_u32 s27, s25, 6144")
            for d, c in ((32, 3), (36, 2)): k(f"s_mov_b32 s{d}, s4\ns_mov_b32 s{d+1}, s5\ns_cmp_lt_u32 s61, {c}\ns_cselect_b32 s{d+2}, s6, 0\ns_mov_b32 s{d+3}, s7")
        for q in range(40):
            if KS and q == SQ and SQ <= 36:
                for j in range(9): k(f"buffer_store_dwordx4 v[112:115], v9, s[{32+4*(j//6)}:{35+4*(j//6)}], s{25+j//3} offen offset:{1024*(j%3)} sc1")
            if UR and q == opt.get("gq", 1): k("buffer_load_dword v60, off, s[16:19], 0 sc1")
            k(f"v_dot2c_f32_bf16 v{10+2*(q&1)}, s30, v{X+q}\nv_dot2c_f32_bf16 v{11+2*(q&1)}, v{X+q}, v{X+q}")
            if KS and q == 37 and SQ > 36:
                k(f"s_cmp_ge_u32 s2, 240\ns_cbranch_scc1 F_nos\ns_lshl_b32 s25, s60, 3\ns_mul_i32 s26, s61, 3\ns_add_u32 s25, s25, s26\ns_mul_i32 s25, s25, 3072\ns_add_u32 s25, s25, {LY.KP}")
                for c in range(3):
                    if c == 2: k("s_cmp_eq_u32 s61, 2\ns_cbranch_scc1 F_nos")
                    for j in range(3): k(f"!buffer_store_dwordx4 v[112:115], v9, s[4:7], s25 offen offset:{1024*j} sc1")
                    if c < 2: k("s_add_u32 s25, s25, 3072")
                k("F_nos:")
            if q % 4 == 3 and not XR: k(f"ds_write_b128 v6, {vr(X+q-3,4)} offset:{XS+32*(q-3)}")
        k.stamp(1)
        tr = lambda r, o: f"ds_read_b64_tr_b16 {vr(r,2)}, v7 offset:{o}\nds_read_b64_tr_b16 {vr(r+2,2)}, v7 offset:{o+4*1344}"
        k("v_add_f32 v10, v10, v12\nv_add_f32 v11, v11, v13")
        for j in range(0 if XR else 10): k(tr(TR + 40 + 4 * j, XS + 128 * j))
        for m in ("quad_perm:[1,0,3,2]", "quad_perm:[2,3,0,1]", "row_half_mirror"):
            k(f"v_add_f32_dpp v10, v10, v10 {m} row_mask:0xf bank_mask:0xf\nv_add_f32_dpp v11, v11, v11 {m} row_mask:0xf bank_mask:0xf")
        k(f"v_mul_f32 v10, {fbits(-1/640)}, v10\nv_mul_f32 v11, {fbits(1/640)}, v11\nv_fma_f32 v11, -v10, v10, v11\nv_max_f32 v11, 0, v11")
        k(f"v_cvt_pk_bf16_f32 v11, v10, v11\nv_lshlrev_b32 v10, 16, v11\nv_and_b32 v11, 0xffff0000, v11\nv_add_f32 v11, {fbits(1e-5)}, v11")
        k("v_cvt_pk_bf16_f32 v11, v11, v11\nv_and_b32 v11, 0xffff0000, v11\nv_sqrt_f32 v11, v11\nv_cvt_pk_bf16_f32 v11, v11, v11\nv_and_b32 v11, 0xffff0000, v11")
        if UR:
            k(f"v_lshrrev_b32 v10, 16, v10\nv_or_b32 v10, v10, v11\nv_lshlrev_b32 v3, 4, v3\ns_lshr_b32 s23, s2, 5\ns_lshl_b32 s23, s23, 10\ns_and_b32 s24, s2, 7\ns_lshl_b32 s24, s24, 7\ns_add_u32 s23, s23, s24\ns_bfe_u32 s24, s2, 0x20003\ns_lshl_b32 s24, s24, 2\ns_add_u32 s23, s23, s24\ns_add_u32 s23, s23, {LNF}")
            k("!s_waitcnt vmcnt(0)\n!v_readfirstlane_b32 s66, v60\ns_cmp_eq_u32 s66, 1\ns_cbranch_scc1 F_go_ok")
            spin(k, "F_go", "buffer_load_dword v60, off, s[16:19], 0 sc1", ["v_readfirstlane_b32 s66, v60", "s_cmp_lg_u32 s66, 1"])
            k("s_mov_b32 exec_lo, 0x01010101\ns_mov_b32 exec_hi, 0x01010101\nbuffer_store_dword v10, v3, s[4:7], s23 offen sc1\ns_mov_b64 exec, -1")
            k.stamp(2)
            k("s_cmp_ge_u32 s2, 240\ns_cbranch_scc1 F_send")
            if XS_: k(f"v_mov_b32 v12, 1\nv_mov_b32 v13, 1\nv_mov_b32 v11, {MBX}\nds_write_b64 v11, v[12:13]")
            h_setup(2); h_gather("F_hl"); h_proc("F_hl")
            k("F_send:")
            k.end()
        else:
            k("v_rcp_f32 v12, v11\nv_mul_f32 v14, v10, v12")
            for j in range(10):
                for q in range(4): k(f"v_lshlrev_b32 v{56+2*q}, 16, v{X+4*j+q}\nv_and_b32 v{57+2*q}, 0xffff0000, v{X+4*j+q}")
                for q in range(4): k(f"v_pk_fma_f32 {vr(56+2*q,2)}, {vr(56+2*q,2)}, v[12:13], v[14:15] op_sel_hi:[1,0,0]")
                for q in range(4): k(f"v_cvt_pk_bf16_f32 v{X+4*j+q}, v{56+2*q}, v{57+2*q}")
                k(f"ds_write_b128 v6, {vr(X+4*j,4)} offset:{128*j}")
                k(tr(TR + 4 * j, 128 * j))
                if not XR: k(f"buffer_store_dwordx4 {vr(TR+40+4*j,4)}, v9, s[4:7], s{20+j//4} offen offset:{1024*(j%4)} sc1")
                if j: k(f"buffer_store_dwordx4 {vr(TR+4*j-4,4)}, v9, s[4:7], s{12+(j-1)//4} offen offset:{1024*((j-1)%4)} sc1")
            k(f"buffer_store_dwordx4 {vr(TR+36,4)}, v9, s[4:7], s14 offen offset:1024 sc1\nv_mov_b32 v3, 1")
            k.stamp(2)
            spin(k, "F_go", "buffer_load_dword v10, off, s[16:19], 0 sc1", ["v_readfirstlane_b32 s66, v10", "s_cmp_lg_u32 s66, 1"])
            k("s_mov_b64 exec, 1\nbuffer_store_dword v3, off, s[4:7], s23 sc1\ns_mov_b64 exec, -1")
            if opt.get("pf", 0):
                k("s_mul_i32 s25, s2, 7680\nv_min_u32 v4, 59, v2\nv_lshlrev_b32 v4, 7, v4\nv_add_u32 v4, s25, v4")
                for i in range(3): k(f"global_load_dword v{16+i}, v4, s[{40+2*i}:{41+2*i}]")
            k.stamp(3)
            LP = opt.get("lp", 0)
            k("s_cmp_ge_u32 s2, 240\ns_cbranch_scc1 F_send\ns_barrier")
            if LP: k("!buffer_load_dwordx4 v[12:15], v8, s[4:7], s24 offen sc1")
            k("s_barrier")
            k.stamp(4)
            if LP: k("!s_waitcnt vmcnt(0)\n!v_and_b32 v12, v12, v13\n!v_and_b32 v14, v14, v15\n!v_and_b32 v12, v12, v14\n!v_cmp_ne_u32 vcc, 1, v12\n!s_nop 1\n!s_cmp_eq_u64 vcc, 0\n!s_cbranch_scc1 F_ln_ok")
            spin(k, "F_ln", "buffer_load_dwordx4 v[12:15], v8, s[4:7], s24 offen sc1",
                 ["v_and_b32 v12, v12, v13", "v_and_b32 v14, v14, v15", "v_and_b32 v12, v12, v14", "v_cmp_ne_u32 vcc, 1, v12", "s_nop 1", "s_cmp_lg_u64 vcc, 0"])
            k.stamp(5)
            k("s_barrier\nF_send:")
            k.end()
    k("F_shuf:"); k.reset()
    if I0: k("s_lshl_b32 s20, s2, 4\ns_add_u32 s20, s20, s62\ns_cmp_eq_u32 s20, 11\ns_cbranch_scc1 F_init0\nF_shuf2:")
    k("s_load_dwordx4 s[40:43], s[0:1], 64\ns_load_dwordx2 s[44:45], s[0:1], 80")
    if not L3:
        k("s_getpc_b64 s[20:21]\nA_pc0:\ns_add_u32 s20, s20, kA_kernel-A_pc0\ns_addc_u32 s21, s21, -1")
        k("s_lshr_b32 s22, s2, 3\ns_lshl_b32 s22, s22, 1\ns_add_u32 s22, s22, s62\ns_sub_u32 s22, s22, 10\ns_lshl_b32 s22, s22, 12\nv_lshlrev_b32 v3, 6, v2\nv_add_u32 v4, s22, v3")
        k("v_min_u32 v4, code_end-kA_kernel, v4\nglobal_load_dword v20, v4, s[20:21]")
    NB = 0
    if UR:
        mksrd(k, 8, 0, 2621440); mksrd(k, 16, 96, 256)
        k("s_cmp_ge_u32 s2, 240\ns_cbranch_scc1 F_nox\ns_sub_u32 s28, s62, 10")
        if opt.get("hprio"): k(f"s_setprio {opt['hprio']}")
        if XS_: k(f"s_lshl_b32 s14, s28, 2\ns_add_u32 s14, s14, {MBX}\nv_mov_b32 v27, s14\nv_mov_b32 v28, 0\nds_write_b32 v27, v28")
        h_setup("s28")
        k("s_waitcnt lgkmcnt(0)" + ("\ns_waitcnt vmcnt(0)" if opt.get("xw", 0) >= 0 else ""))
        go2 = lambda: spin(k, "F_go2", "buffer_load_dword v60, off, s[16:19], 0 sc1", ["v_readfirstlane_b32 s66, v60", "s_cmp_lg_u32 s66, 1"])
        if XS_:
            k("s_mov_b32 s67, 0\nF_mb:\n!ds_read_b32 v28, v27\n!s_add_u32 s67, s67, 1\n!s_waitcnt lgkmcnt(0)\n!v_readfirstlane_b32 s66, v28\n!s_cmp_eq_u32 s66, 1\n!s_cbranch_scc1 F_go2_ok\n!s_cmp_lt_u32 s67, 256\n!s_cbranch_scc1 F_mb")
            go2()
        k.stamp(5)
        h_gather("F_hs")
        if not XS_: go2()
        NB = h_proc("F_hs")
        if NB: k("s_branch F_nox2\nF_nox:\ns_barrier\ns_barrier\nF_nox2:\n!s_waitcnt lgkmcnt(0)")
        else: k("F_nox:\n!s_waitcnt lgkmcnt(0)")
    elif XR and not L3:
        mksrd(k, 8, 0, 2621440)
        k("s_cmp_ge_u32 s2, 240\ns_cbranch_scc1 F_nox")
        k("s_lshl_b32 s12, s61, 9\ns_add_u32 s12, s12, 512\ns_cmp_eq_u32 s61, 0\ns_cselect_b32 s12, 0, s12\ns_sub_u32 s13, s62, 10\ns_lshl_b32 s14, s13, 6\ns_add_u32 s12, s12, s14\ns_mul_i32 s12, s12, 1280\ns_lshl_b32 s14, s60, 4\ns_add_u32 s12, s12, s14")
        k(f"s_lshl_b32 s13, s13, 10\ns_add_u32 s13, s13, {XRB}\nv_mul_u32_u24 v21, 1280, v2\ns_waitcnt lgkmcnt(0)")
        if opt.get("xw", 0) >= 0: k("s_waitcnt vmcnt(0)")
        for j in range(8):
            if j == 4: k("s_cmp_lg_u32 s61, 0\ns_cbranch_scc1 F_nox")
            k(f"s_add_u32 m0, s13, {2048*j}\ns_add_u32 s14, s12, {128*1280*j}\n!buffer_load_dwordx4 v21, s[8:11], s14 offen lds")
        k("F_nox:\n!s_waitcnt lgkmcnt(0)")
    LD = 64; FR = 16
    k(f"v_lshrrev_b32 v4, 3, v2\nv_and_b32 v5, 7, v2\ns_sub_u32 s20, s62, 10\ns_mul_i32 s20, s20, 20480\ns_add_u32 s20, s20, {SB}")
    k("s_mov_b32 s26, 1966080\ns_mov_b32 s27, 0x00020000\ns_mov_b32 s34, 1966080\ns_mov_b32 s35, 0x00020000")
    SW = opt.get("shw", 4); SP = opt.get("shp", 5)
    k(f"s_cmp_eq_u32 s2, 255\ns_cbranch_scc1 {'F_ez' if I1 else 'F_send2'}\ns_cmp_eq_u32 s62, 11\ns_cbranch_scc1 F_wd\ns_cmp_lt_u32 s2, 63\ns_cbranch_scc1 F_send2")
    k("s_sub_u32 s21, s2, 63\ns_and_b32 s22, s21, 7\ns_lshr_b32 s21, s21, 3\ns_mul_i32 s23, s22, 5")
    k("s_mov_b32 s24, s40\ns_mov_b32 s25, s41\ns_mov_b32 s32, s42\ns_mov_b32 s33, s43")
    k("v_and_b32 v10, 2, v4\nv_xor_b32 v10, v10, v5\nv_mul_u32_u24 v11, 3072, v4\nv_lshl_add_u32 v10, v10, 4, v11\nv_xor_b32 v11, 64, v10")
    k(f"s_mul_i32 s36, s23, {16*3072}\ns_lshl_b32 s37, s21, 7\ns_add_u32 s36, s36, s37")
    k("v_bfe_u32 v3, v2, 4, 1\nv_lshrrev_b32 v6, 5, v2\nv_bfe_u32 v7, v2, 2, 2\nv_and_b32 v8, 3, v2")
    k("v_mul_u32_u24 v48, 2112, v3\nv_lshl_add_u32 v48, v6, 10, v48\nv_lshl_add_u32 v48, v7, 7, v48\nv_lshl_add_u32 v48, v8, 3, v48\nv_and_b32 v7, 2, v7\nv_lshl_add_u32 v48, v7, 4, v48\nv_add_u32 v48, s20, v48")
    for w in range(1, 4): k(f"v_xor_b32 v{48+w}, {32*w}, v48")
    for w in range(4): k(f"v_mov_b32 v{52+w}, 0")
    if UR: k("!s_waitcnt vmcnt(0)" + "\ns_barrier" * (SW - NB))
    elif XR: k("s_barrier\ns_barrier\n!s_waitcnt vmcnt(0)" + "\ns_barrier" * (SW - 2))
    elif SW >= 0: k("s_waitcnt vmcnt(0)" + "\ns_barrier" * SW)
    k.stamp(1)
    for t in range(5):
        for h in range(2):
            if t or h: k(f"s_add_u32 s36, s36, {8*3072}")
            for g in range(2): k(f"s_add_u32 m0, s20, {4096*t+2048*g+1024*h}\nbuffer_load_dwordx4 v{10+g}, s[{24+8*g}:{27+8*g}], s36 offen{NT('w')} lds")
        k.tag(f"w{t}")
    k(f"s_mul_i32 s47, s21, {4*41984}\ns_lshl_b32 s36, s23, 10\ns_add_u32 s47, s47, {LY.W1P}\ns_add_u32 s36, s36, s47\ns_add_u32 s37, s36, 41984\ns_add_u32 s38, s37, 41984\ns_add_u32 s39, s38, 41984\nv_add_u32 v12, 4096, v9")
    k("s_barrier\n" * (SP - max(SW, 0)) + f"s_setprio {opt.get('sprio', 3)}")
    k.stamp(2)
    def rd(t):
        k.waitvm(f"w{t}")
        for w in range(4):
            for e in range(2): k(f"ds_read_b64_tr_b16 {vr(LD+16*t+4*w+2*e,2)}, v{48+w} offset:{4096*t+512*e}")
    rd(0)
    for t in range(5):
        if t < 4: rd(t + 1)
        for w in range(4): k(f"buffer_store_dwordx4 {vr(LD+16*t+4*w,4)}, v{9 if t < 4 else 12}, s[4:7], s{36+w} offen offset:{1024*(t%4)} sc1")
    for t in range(5):
        for q in range(4):
            for w in range(4): k(f"v_dot2c_f32_bf16 v{52+w}, s30, v{LD+16*t+4*w+q}")
    k("v_and_b32 v4, 31, v2\nv_lshlrev_b32 v4, 4, v4\nv_mul_u32_u24 v5, 41984, v6\nv_add_u32 v4, v4, v5")
    k(f"s_lshr_b32 s36, s22, 2\ns_lshl_b32 s36, s36, 9\ns_and_b32 s37, s22, 3\ns_lshl_b32 s37, s37, 2\ns_add_u32 s36, s36, s37\ns_add_u32 s36, s36, s47\ns_add_u32 s36, s36, 40960\ns_add_u32 s37, s36, {2*41984}")
    for w in (0, 2):
        a = 52 + w
        k(f"v_permlane32_swap_b32 v{a}, v{a+1}\nv_add_f32 v{a}, v{a}, v{a+1}\nv_cvt_pk_bf16_f32 v{a+1}, v{a}, v{a}\nv_and_b32 v{a+1}, 0xffff0000, v{a+1}\nv_sub_f32 v{a}, v{a}, v{a+1}\nv_cvt_pk_bf16_f32 v{a}, v{a+1}, v{a}")
        k(f"buffer_store_dword v{a}, v4, s[4:7], s{36+w//2} offen")
    k("F_send2:\n!s_waitcnt vmcnt(0)")
    k.end()
    k("F_wd:"); k.reset()
    k("s_cmp_lt_u32 s2, 15\ns_cbranch_scc1 F_send2\ns_waitcnt lgkmcnt(0)")
    k(f"s_mov_b32 s24, s44\ns_mov_b32 s25, s45\ns_mov_b32 s39, {LY.WDP}")
    k("v_and_b32 v10, 2, v4\nv_lshlrev_b32 v10, 1, v10\nv_bfe_u32 v11, v4, 2, 1\nv_lshl_add_u32 v10, v11, 1, v10\nv_xor_b32 v10, v10, v5\nv_mul_u32_u24 v11, 1280, v4\nv_lshl_add_u32 v10, v10, 4, v11")
    k("s_sub_u32 s21, s2, 15\ns_mul_i32 s50, s21, 13108\ns_lshr_b32 s50, s50, 16\ns_mul_i32 s23, s50, 5\ns_sub_u32 s51, s21, s23\ns_lshl_b32 s51, s51, 1")
    k(f"s_mul_i32 s36, s50, {32*1280}\ns_lshl_b32 s37, s51, 7\ns_add_u32 s36, s36, s37")
    k("v_bfe_u32 v7, v2, 2, 2\nv_and_b32 v8, 3, v2\nv_lshrrev_b32 v6, 5, v2\nv_bfe_u32 v3, v2, 4, 1")
    k("v_lshlrev_b32 v48, 11, v6\nv_lshl_add_u32 v48, v3, 9, v48\nv_lshl_add_u32 v48, v7, 7, v48\nv_add_u32 v48, s20, v48")
    k("v_and_b32 v7, 2, v7\nv_lshlrev_b32 v7, 5, v7\nv_lshl_add_u32 v7, v3, 5, v7")
    if UR: k("!s_waitcnt vmcnt(0)" + "\ns_barrier" * (SW - NB))
    elif XR: k("s_barrier\ns_barrier\n!s_waitcnt vmcnt(0)" + "\ns_barrier" * (SW - 2))
    elif SW >= 0: k("s_waitcnt vmcnt(0)" + "\ns_barrier" * SW)
    k.stamp(1)
    for i in range(4):
        if i: k(f"s_add_u32 s36, s36, {8*1280}")
        for t in range(2): k(f"s_add_u32 m0, s20, {4096*t+1024*i-128*t}\nbuffer_load_dwordx4 v10, s[24:27], s36 offen offset:{128*t}{NT('w')} lds")
    for t in range(2):
        for vv in range(2):
            k(f"s_lshl_b32 s36, s51, 1\ns_add_u32 s36, s36, {2*t+vv}\ns_mul_i32 s37, s36, 52\ns_lshr_b32 s37, s37, 8\ns_mul_i32 s37, s37, 5\ns_sub_u32 s36, s36, s37\ns_cmp_eq_u32 s36, 2\ns_cselect_b32 s36, 3, 4\ns_cselect_b32 s37, 32, 8")
            a = 49 + 4 * t + 2 * vv
            k(f"v_lshlrev_b32 v{a}, s36, v8\nv_add_u32 v{a}, {64*vv}, v{a}\nv_add_u32 v{a+1}, s37, v{a}\nv_xor_b32 v{a}, v{a}, v7\nv_xor_b32 v{a+1}, v{a+1}, v7\nv_add_u32 v{a}, v{a}, v48\nv_add_u32 v{a+1}, v{a+1}, v48")
        for i in range(4):
            k(f"s_lshl_b32 s36, s51, 2\ns_add_u32 s36, s36, {4*t+i}\ns_mul_i32 s37, s36, 52\ns_lshr_b32 s37, s37, 8\ns_mul_i32 s38, s37, 5\ns_sub_u32 s36, s36, s38")
            k(f"s_and_b32 s38, s37, 1\ns_sub_u32 s36, s36, s38\ns_cselect_b32 s36, 4, s36\ns_mul_i32 s37, s37, 48\ns_add_u32 s37, s37, s50\ns_mul_i32 s37, s37, 5\ns_add_u32 s37, s37, s36\ns_lshl_b32 s37, s37, 10\ns_add_u32 s{52+4*t+i}, s37, s39")
    k("s_barrier\n" * (SP - max(SW, 0)) + f"s_setprio {opt.get('sprio', 3)}")
    k.stamp(2)
    k("s_waitcnt vmcnt(0)")
    for t in range(2):
        for i in range(4):
            for e2 in range(2): k(f"ds_read_b64_tr_b16 {vr(LD+16*t+4*i+2*e2,2)}, v{49+4*t+i} offset:{4096*t+1024*e2}")
    for i in range(8): k(f"buffer_store_dwordx4 {vr(LD+4*i,4)}, v9, s[4:7], s{52+i} offen sc1")
    k.end()
    k("F_end:\ns_endpgm")
    data = [".p2align 7", "A_tab:"] + [f".long 0x{x:08x}" for x in LY.gather_table(0)]
    return dict(name="kA_kernel", code=k.finish(), data=data, grid=256, block=768, lds=LDSZ, vgpr=opt.get("nv", 168), agpr=0)
```

```python
from asmlib import K, vr
import layout as LY
import math
from gen_cd import fbits
from gen_ab import mksrd, LOG2E
BIG = 0x7000000

def kgen(k, opt, PBASE, early, mid):
    RS = 288; PB = 16 * RS; WB = 2 * PB
    k("s_load_dwordx8 s[8:15], s[0:1], 8\ns_load_dwordx4 s[16:19], s[0:1], 40")
    k(f"s_mul_i32 s20, s2, 384\nv_lshlrev_b32 v3, 1, v0\nv_add_u32 v3, s20, v3\ns_lshl_b32 s21, s2, 1\nv_mov_b32 v4, s21")
    k("s_getpc_b64 s[22:23]\nA_pc1:\ns_add_u32 s22, s22, A_tab-A_pc1\ns_addc_u32 s23, s23, 0\nv_lshlrev_b32 v5, 4, v0")
    k("s_waitcnt lgkmcnt(0)")
    nt = " nt" if opt.get("ntx", 0) else ""
    k(f"global_load_ushort v10, v4, s[16:17]\nglobal_load_ushort v6, v3, s[8:9]{nt}\nglobal_load_ushort v7, v3, s[10:11]{nt}\nglobal_load_ushort v8, v3, s[12:13]{nt}\nglobal_load_ushort v9, v3, s[14:15]{nt}\nglobal_load_ushort v11, v4, s[18:19]")
    k("global_load_dwordx4 v[12:15], v5, s[22:23]")
    early()
    k(f"s_mul_i32 s27, s26, {3*WB}\ns_add_u32 s27, s27, {PBASE}\ns_mul_i32 s24, s3, {WB}\ns_add_u32 s24, s24, s27\ns_mul_i32 s28, s26, 1600\ns_mul_i32 s29, s28, 0x10001")
    k(f"v_lshl_add_u32 v16, v2, 2, s24\nv_and_b32 v17, 15, v2\nv_mul_u32_u24 v17, {RS}, v17\nv_lshrrev_b32 v18, 4, v2\nv_lshl_add_u32 v17, v18, 4, v17\nv_add_u32 v17, s24, v17")
    k(f"v_mov_b32 v18, 0x3f80\nds_write_b32 v16, v18 offset:{PB}\nv_mov_b32 v18, 0\nv_mov_b32 v19, s28\nds_write_b32 v19, v18 offset:1536")
    k(f"s_mul_i32 s25, s2, 3072\ns_add_u32 s25, s25, {LY.KP}")
    k(f"v_lshlrev_b32 v10, 16, v10\nv_lshlrev_b32 v6, 16, v6\nv_mul_f32 v10, {fbits(LOG2E)}, v10\nv_mul_f32 v6, {fbits(LOG2E)}, v6\nv_exp_f32 v10, v10\nv_exp_f32 v6, v6")
    k("v_lshlrev_b32 v7, 16, v7\nv_cvt_pk_bf16_f32 v6, v6, v10\nv_and_b32 v10, 0xffff0000, v6\nv_lshlrev_b32 v6, 16, v6")
    k(f"v_mul_f32 v6, v6, v10\nv_mul_f32 v7, v7, v10\nv_mul_f32 v6, {fbits(-LOG2E)}, v6\nv_mul_f32 v7, 0.15915494, v7")
    k(f"v_mul_f32 v18, 0x43000000, v6\nv_mul_f32 v19, 0x43000000, v7\nv_fract_f32 v7, v7\nv_fract_f32 v19, v19")
    k.stamp(1)
    W = {n: 20 + 2 * i for i, n in enumerate((1, 2, 4, 8, 3, 5, 6, 7))}
    G = {m: 36 + 2 * (m - 1) for m in range(1, 8)}
    k(f"v_exp_f32 v6, v6\nv_exp_f32 v18, v18\nv_cos_f32 v{W[1]}, v7\nv_sin_f32 v{W[1]+1}, v7\nv_cos_f32 v{G[1]}, v19\nv_sin_f32 v{G[1]+1}, v19")
    k("v_lshlrev_b32 v8, 16, v8\nv_lshlrev_b32 v9, 16, v9\nv_add_f32 v10, v10, v10")
    k(f"v_pk_mul_f32 {vr(W[1],2)}, {vr(W[1],2)}, v[6:7] op_sel_hi:[1,0]\nv_pk_mul_f32 {vr(G[1],2)}, {vr(G[1],2)}, v[18:19] op_sel_hi:[1,0]")
    k("v_pk_mul_f32 v[8:9], v[8:9], v[10:11] op_sel_hi:[1,0]")
    tmp = [50, 52, 54, 56]; ti = [0]; cv = [58, 59, 60, 61]; ci = [0]; chain = [0]
    def cm(d, x, y):
        t = tmp[2 * chain[0] + ti[0] % 2]; ti[0] += 1
        return [f"v_pk_mul_f32 {vr(t,2)}, {vr(x,2)}, {vr(y,2)} op_sel:[0,0] op_sel_hi:[0,1]",
                f"v_pk_fma_f32 {vr(d,2)}, {vr(x,2)}, {vr(y,2)}, {vr(t,2)} op_sel:[1,1,0] op_sel_hi:[1,0,1] neg_lo:[0,1,0]"]
    def wr(x, buf, row, neg=False):
        c = cv[2 * chain[0] + ci[0] % 2]; ci[0] += 1
        return [f"v_cvt_pk_bf16_f32 v{c}, v{x}, {'-' if neg else ''}v{x+1}", f"ds_write_b32 v16, v{c} offset:{buf*PB+row*RS}"]
    def zipl(*ls):
        for i in range(max(len(l) for l in ls)):
            for l in ls:
                if i < len(l): k(l[i])
    GA, GB, VA, VB = 62, 64, 66, 68
    gl = wr(G[1], 1, 1); prev = G[1]
    for m in range(2, 17):
        d = G.get(m, GA if m & 1 else GB)
        gl += cm(d, prev, G[1]); prev = d
        if m < 16: gl += wr(d, 1, m)
    G16 = prev
    chain[0] = 1
    vl = cm(W[2], W[1], W[1]) + cm(W[4], W[2], W[2]) + cm(W[8], W[4], W[4]) + wr(8, 0, 0, True); prev = 8
    for b in range(1, 16):
        d = VA if b & 1 else VB
        vl += cm(d, prev, W[8]) + wr(d, 0, b, True); prev = d
    zipl(vl, gl)
    VF = 72; UF = 88; D = [104, 108, 112]
    for s in range(4): k(f"ds_read_b128 {vr(VF+4*s,4)}, v17 offset:{64*s}\nds_read_b128 {vr(UF+4*s,4)}, v17 offset:{PB+64*s}")
    a = wr(G16, 0, 0) + wr(W[4], 0, 1) + wr(W[2], 0, 9) + cm(W[6], W[2], W[4]) + wr(W[6], 0, 13)
    chain[0] = 0
    b = cm(W[3], W[1], W[2]) + cm(W[5], W[1], W[4]) + cm(W[7], W[3], W[4])
    zipl(a, b)
    def mm(t, uf):
        for s in range(4): k(f"v_mfma_f32_16x16x32_bf16 {vr(D[t],4)}, {vr(uf+4*s,4)}, {vr(VF+4*s,4)}, {'0' if s==0 else vr(D[t],4)}")
    mm(0, UF)
    jobs = [(W[4], m, 0, 1 + m) for m in range(1, 8)] + [(W[2], m, 0, 9 + m) for m in range(1, 4)] + [(W[6], m, 0, 13 + m) for m in range(1, 3)]
    def run(jobs):
        for i in range(0, len(jobs), 2):
            ls = []
            for j, (w, m, buf, row) in enumerate(jobs[i:i+2]):
                d = (GA, VA)[j]; chain[0] = j
                ls.append(cm(d, w, G[m]) + wr(d, buf, row))
            zipl(*ls)
    run(jobs)
    for s in range(4): k(f"ds_read_b128 {vr(UF+4*s,4)}, v17 offset:{64*s}")
    chain[0] = 0; a = wr(W[1], 1, 1) + wr(W[5], 1, 3)
    chain[0] = 1; b = wr(W[3], 1, 2) + wr(W[7], 1, 4)
    zipl(a, b)
    run([(W[6], 3, 1, 0)] + [(W[o], 1, 1, 5 + i) for i, o in enumerate((1, 3, 5, 7))])
    for s in range(4): k(f"ds_read_b128 {vr(32+4*s,4)}, v17 offset:{PB+64*s}")
    mm(1, UF)
    mm(2, 32)
    k("v_lshl_add_u32 v16, v2, 4, s24\nv_lshl_add_u32 v17, v0, 4, s27")
    for i in range(4): k(f"v_add_u32 v{12+i}, s29, v{12+i}")
    for t in range(3): k(f"ds_write_b128 v16, {vr(D[t],4)} offset:{1024*t}")
    for i in range(4): k(f"v_and_b32 v{20+2*i}, 0xffff, v{12+i}\nv_lshrrev_b32 v{21+2*i}, 16, v{12+i}")
    k("v_lshlrev_b32 v11, 16, v11\nv_cmp_eq_u32 vcc, 0, v0\nv_lshl_add_u32 v18, v0, 3, s28\nv_cndmask_b32 v11, 0, v11, vcc")
    k.stamp(2)
    k("s_waitcnt lgkmcnt(0)\ns_barrier")
    for w in range(3): k(f"ds_read_b128 {vr(72+4*w,4)}, v17 offset:{w*WB}")
    k("v_add_f32 v72, v72, v11")
    k("v_pk_add_f32 v[72:73], v[72:73], v[76:77]\nv_pk_add_f32 v[74:75], v[74:75], v[78:79]\nv_pk_add_f32 v[72:73], v[72:73], v[80:81]\nv_pk_add_f32 v[74:75], v[74:75], v[82:83]")
    k(f"v_cvt_pk_bf16_f32 v72, v72, v73\nv_cvt_pk_bf16_f32 v73, v74, v75\nds_write_b64 v18, v[72:73]")
    k("s_waitcnt lgkmcnt(0)\ns_barrier")
    for i in range(8): k(f"ds_read_u16 v{28+i}, v{20+i}")
    for i in range(4): k(f"v_lshl_or_b32 v{12+i}, v{29+2*i}, 16, v{28+2*i}")
    k("buffer_store_dwordx4 v[12:15], v5, s[4:7], s25 offen sc1")
    mid()
    return PBASE + 9 * WB

def spin(k, nm, load, test):
    k(f"s_mov_b32 s67, 0\n{nm}:\n!{load}\n!s_add_u32 s67, s67, 1\n!s_waitcnt vmcnt(0)")
    k(f"!s_cmp_gt_u32 s67, 0xffff\n!s_cbranch_scc1 {nm}_ok")
    for t in test: k("!" + t)
    k(f"!s_cbranch_scc1 {nm}\n{nm}_ok:")
    k.reset()

def kF(opt):
    k = K()
    NT = lambda n: " nt" if opt.get("nt" + n, 0) else ""
    LNF = LY.FLG + 8192; KF = LY.FLG + 16384
    UB = 0; KB = 36864; XB = 61440; SH = XB + 16384; RS = 2112
    LNB = 4864 + 9 * 9216; XS = 10752; SB = LNB + 2 * XS
    XR = opt.get("xr", 0); XRB = SB + 28672; LDSZ = SB + 28672 + (16384 if XR else 0)
    LDSZ0 = LDSZ
    UR = opt.get("ur", 0); XS_ = opt.get("xs", 1)
    if UR: XR = 1; UB = LNB; XRB = UB + 36864; MBX = XRB + 32768; LDSZ = MBX + 64; SB = 5120; SH = 61440
    k("s_cmp_ge_u32 s2, 256\ns_cbranch_scc1 F_end")
    if opt.get("rot1"): k("s_add_u32 s2, s2, 255\ns_and_b32 s2, s2, 255")
    if opt.get("st"): k("s_lshl_b32 s2, s2, 1")
    k.st_init(opt.get("st"), 0)
    if opt.get("st"): k("s_lshr_b32 s2, s2, 1")
    mksrd(k, 4, 104, LY.WS_END)
    k("v_lshrrev_b32 v1, 6, v0\nv_and_b32 v2, 63, v0\nv_readfirstlane_b32 s62, v1")
    k("s_lshr_b32 s60, s2, 3\ns_mul_i32 s61, s60, 26\ns_lshr_b32 s61, s61, 8\ns_mul_i32 s14, s61, 10\ns_sub_u32 s60, s60, s14\ns_and_b32 s14, s2, 7\ns_mul_i32 s14, s14, 10\ns_add_u32 s60, s60, s14")
    k("s_cmp_ge_u32 s62, 9\ns_cbranch_scc1 F_side\ns_cmp_ge_u32 s2, 240\ns_cbranch_scc1 F_init")
    k("s_mul_i32 s26, s62, 86\ns_lshr_b32 s26, s26, 8\ns_mul_i32 s3, s26, 3\ns_sub_u32 s3, s62, s3\ns_mul_i32 s14, s61, 3\ns_add_u32 s14, s14, s26\ns_cmp_eq_u32 s14, 8\ns_cbranch_scc1 F_idle")
    k("s_lshl_b32 s2, s60, 3\ns_add_u32 s2, s2, s14\ns_lshl_b32 s14, s3, 6\nv_add_u32 v0, s14, v2")
    AU = 120; XA = 130; HV = 131; UV = 156; L16 = 157; UW = 158; KW = 159; XW = 160; ZA = 161; UL = 88
    MK = {n: 132 + 4 * i for i, n in enumerate("abcoes")}; MK["d"] = MK["b"]
    def early(skip8=False):
        k("v_mov_b32 v21, s62\nv_lshl_add_u32 v20, v21, 6, v2")
        k(f"v_lshrrev_b32 v24, 3, v2\nv_and_b32 v25, 7, v2\nv_lshrrev_b32 v26, 4, v2\nv_and_b32 v27, 1, v21\nv_lshl_add_u32 v27, v27, 2, v26\nv_xor_b32 v27, v25, v27\nv_mul_u32_u24 v24, 10240, v24\nv_lshl_add_u32 v{UV}, v27, 4, v24")
        k(f"s_lshl_b32 s32, s60, 7\ns_add_u32 s64, s32, {KF}\ns_mul_i32 s56, s62, 81920\ns_add_u32 s32, s32, s56\ns_lshl_b32 s56, s62, 10")
        k(f"v_lshlrev_b32 v{L16}, 4, v2\nv_add_u32 v{UW}, s56, v{L16}\nv_add_u32 v{XW}, {XB}, v{UW}\nv_lshlrev_b32 v{ZA}, 3, v20")
        k(f"s_lshl_b32 s52, s60, 3\ns_add_u32 s52, s52, s62\ns_mul_i32 s52, s52, 3072\ns_add_u32 s52, s52, {LY.KP}\ns_mul_i32 s53, s62, 3072\ns_add_u32 s53, s53, {KB}\nv_add_u32 v{KW}, s53, v{L16}")
        k("s_lshl_b32 s65, s61, 2\ns_add_u32 s65, s65, s64\ns_lshl_b32 s56, s26, 2\ns_add_u32 s64, s64, s56")
        for d, c in ((40, "s_cmp_ge_u32 s61, 1"), (44, "s_cmp_eq_u32 s61, 2"), (48, "s_cmp_eq_u32 s61, 0")):
            k(f"s_mov_b32 s{d}, s4\ns_mov_b32 s{d+1}, s5\n{c}\ns_cselect_b32 s{d+2}, s6, 0\ns_mov_b32 s{d+3}, s7")
        k("s_lshl_b32 s57, s61, 9\ns_add_u32 s57, s57, 512\ns_cmp_eq_u32 s61, 0\ns_cselect_b32 s57, 0, s57")
        k(f"s_mul_i32 s36, s57, 1280\ns_add_u32 s36, s36, s32\ns_add_u32 s36, s36, {LY.XT}\ns_add_u32 s37, s36, {8*81920}")
        k(f"s_add_u32 s33, s32, {8*81920}\ns_add_u32 s34, s32, {16*81920}\ns_add_u32 s35, s32, {24*81920}")
        k(f"v_add_u32 v22, s57, v20\nv_lshlrev_b32 v{HV}, 4, v22")
        k(f"s_lshl_b32 s54, s60, 15\ns_add_u32 s54, s54, {LY.H}\ns_add_u32 s55, s54, 8192")
        if opt.get("fb"): k(f"v_mov_b32 v162, {LDSZ0}\nv_mov_b32 v163, 1")
        if skip8: k("s_cmp_eq_u32 s62, 8\ns_cbranch_scc1 F_e8")
        k("v_and_b32 v23, 15, v2\nv_lshl_add_u32 v22, v23, 1, v26")
        for m in range(5):
            off = 32 - 2 + 4 * m if m < 4 else 32 - 3
            k(f"v_add_u32 v25, {off}, v22\nv_bfe_u32 v24, v25, 1, 3\nv_xor_b32 v24, v24, v21\nv_lshlrev_b32 v25, 7, v25\nv_lshl_add_u32 v{AU+m}, v24, 4, v25")
            if UR: k(f"v_add_u32 v{AU+m}, {UB}, v{AU+m}")
        if UR: k(f"v_mov_b32 v28, 0\nv_mov_b32 v29, 0\nv_add_u32 v{ZA}, {UB}, v{ZA}\nds_write_b64 v{ZA}, v[28:29]")
        k(f"v_sub_u32 v25, 15, v23\nv_lshrrev_b32 v25, 1, v25\nv_lshl_add_u32 v25, v26, 2, v25\nv_and_b32 v24, 1, v23\nv_xor_b32 v24, 1, v24\nv_mul_u32_u24 v24, 464, v24\nv_add_u32 v25, v25, v24\nv_lshl_add_u32 v{AU+5}, v25, 2, s53\nv_add_u32 v{AU+6}, 512, v{AU+5}")
        k(f"v_sub_u32 v25, 295, v23\nv_lshl_add_u32 v25, v26, 2, v25\nv_lshl_add_u32 v{AU+7}, v25, 2, s53")
        k(f"s_mul_i32 s56, s62, {RS}\ns_add_u32 s56, s56, {SH}\nv_lshlrev_b32 v25, 5, v23\nv_lshl_add_u32 v25, v26, 3, v25\nv_add_u32 v{AU+8}, s56, v25")
        k(f"v_bfe_u32 v25, v2, 2, 2\nv_mul_u32_u24 v25, {RS}, v25\nv_and_b32 v24, 3, v2\nv_lshl_add_u32 v25, v24, 3, v25\nv_lshrrev_b32 v24, 4, v20\nv_lshl_add_u32 v25, v24, 5, v25\nv_add_u32 v{AU+9}, {SH}, v25")
        F = 40
        k("v_lshlrev_b32 v25, 3, v26\nv_sub_u32 v25, v23, v25\nv_add_u32 v24, 15, v25\nv_add_u32 v25, 16, v25\nv_and_b32 v25, 0xffff, v25\nv_lshl_or_b32 v25, v24, 16, v25\ns_mov_b32 s39, 0x3f803f80")
        for c in range(3, 21): k(f"v_pk_sub_i16 v{F+c-3}, v25, {c} op_sel_hi:[1,0]")
        for c in range(3, 21): k(f"v_pk_ashrrev_i16 v{F+c-3}, 15, v{F+c-3} op_sel_hi:[0,1]")
        win = dict(a=(3, 6), b=(6, 11), c=(11, 14), o=(5, 12), e=(4, 13))
        for n in "abcoe":
            lo, hi = win[n]
            for p in range(4): k(f"v_bitop3_b32 v{MK[n]+p}, v{F+lo+2*p-3}, v{F+hi+2*p-3}, s39 bitop3:0x28")
        for p in range(4): k(f"v_xor_b32 v{MK['s']+p}, v{F+2*p}, v{F+2+2*p}")
        if UR: k(f"v_add_u32 v{XA}, {XRB}, v{HV}")
        elif XR: k(f"v_lshlrev_b32 v{XA}, 4, v20\nv_add_u32 v{XA}, {XRB}, v{XA}")
        else: k(f"v_lshrrev_b32 v25, 1, v26\nv_lshl_add_u32 v25, v23, 1, v25\nv_lshlrev_b32 v25, 7, v25\nv_and_b32 v24, 7, v23\nv_xor_b32 v24, v24, v21\nv_lshl_add_u32 v25, v24, 4, v25\nv_and_b32 v24, 1, v26\nv_lshl_add_u32 v25, v24, 3, v25\nv_add_u32 v{XA}, {XB}, v25")
    def early8():
        early(True); k("F_e8:")
        if opt.get("l3"): k("s_barrier")
    def uxl():
        for i, (srd, so) in enumerate(((4, 32), (4, 33), (40, 34), (44, 35)) if XR else ((4, 32), (4, 33), (4, 36), (40, 34), (44, 35), (48, 37))):
            k(f"!buffer_load_dwordx4 {vr(UL+4*i,4)}, v{UV}, s[{srd}:{srd+3}], s{so} offen sc1")
    def mid():
        k("s_cmp_eq_u32 s62, 8\ns_cbranch_scc1 F_m8\nF_b:")
    assert kgen(k, opt, 4864, early8, mid) == LNB
    k("v_mov_b32 v4, 1\nv_mov_b32 v6, 0\nv_mov_b32 v7, 0\ns_mov_b32 s63, 0")
    KS = opt.get("ks", 0)
    k("s_barrier" if KS and not opt.get("yw") else "s_waitcnt vmcnt(0)\ns_barrier")
    if not KS: k("s_cmp_lg_u32 s62, 0\ns_cbranch_scc1 F_nf\n!s_mov_b64 exec, 1\n!buffer_store_dword v4, off, s[4:7], s65 sc1\n!s_mov_b64 exec, -1\nF_nf:")
    k.stamp(3)
    KL = 76
    kld = "\n".join(f"!buffer_load_dwordx4 {vr(KL+4*j,4)}, v{L16}, s[4:7], s52 offen offset:{1024*j} sc1" for j in range(3))
    def kchk(nm):
        k(f"s_mov_b32 s67, 0\n{nm}:\n!s_waitcnt vmcnt(0)\n!v_max3_u32 v5, v{KL}, v{KL+1}, v{KL+2}\n!v_max3_u32 v4, v{KL+3}, v{KL+4}, v{KL+5}\n!v_max3_u32 v5, v5, v{KL+6}, v{KL+7}\n!v_max3_u32 v4, v4, v{KL+8}, v{KL+9}\n!v_max3_u32 v5, v5, v{KL+10}, v{KL+11}\n!v_max_u32 v5, v5, v4")
        k(f"!v_cmp_eq_u32 vcc, -1, v5\n!s_add_u32 s67, s67, 1\n!s_nop 0\n!s_cmp_eq_u64 vcc, 0\n!s_cbranch_scc1 {nm}_ok\n!s_cmp_gt_u32 s67, 0x3fff\n!s_cbranch_scc1 {nm}_ok\n{kld}\n!s_branch {nm}\n{nm}_ok:")
    if KS:
        uxl()
        k(f"ds_write_b64 v{ZA}, v[6:7]")
        KQ = opt.get("kq", 0)
        for i in range(4):
            if i == KQ: k(kld)
            k(f"!s_waitcnt vmcnt({3-i+3*(i>=KQ)})\nds_write_b128 v{UW}, {vr(UL+4*i,4)} offset:{4096+8192*i}")
        if KQ == 4: k(kld)
        if KS == 1:
            kchk("F_kc")
            k("s_waitcnt lgkmcnt(0)")
            for j in range(3): k(f"ds_write_b128 v{KW}, {vr(KL+4*j,4)} offset:{1024*j}")
            k("s_barrier")
        else: k("s_waitcnt lgkmcnt(0)\ns_barrier")
        k.stamp(4); k("s_waitcnt lgkmcnt(0)" if k.on else "")
    elif not UR:
        uxl()
        k(f"ds_write_b64 v{ZA}, v[6:7]")
        P1 = opt.get("kp1", 1)
        UXW = ((UW, 4096), (UW, 12288), (XW, 0), (UW, 20480), (UW, 28672), (XW, 8192))
        if XR: UXW = [x for x in UXW if x[0] == UW]
        for i, (a, o) in enumerate(UXW):
            if i == P1: k("!buffer_load_dword v5, off, s[4:7], s64 sc1")
            k(f"!s_waitcnt vmcnt({len(UXW)-1-i+(i>=P1)})\nds_write_b128 v{a}, {vr(UL+4*i,4)} offset:{o}")
        k("!s_waitcnt vmcnt(0)\nv_readfirstlane_b32 s66, v5\ns_cmp_lg_u32 s66, 1\ns_cbranch_scc1 F_k0")
        for j in range(3): k(f"!buffer_load_dwordx4 {vr(KL+4*j,4)}, v{L16}, s[4:7], s52 offen offset:{1024*j} sc1")
        k("s_mov_b32 s63, 1\nF_k0:\ns_waitcnt lgkmcnt(0)\ns_barrier")
        k.stamp(4); k("s_waitcnt lgkmcnt(0)" if k.on else "")
    k("F_dry:")
    k("s_cmp_eq_u32 s61, 1\ns_cbranch_scc1 B_t1\ns_cmp_eq_u32 s61, 2\ns_cbranch_scc1 B_t2")
    for third, tiles in enumerate(([0, 1, 2, 3], [4, 5], [6, 7])):
        k(f"B_t{third}:"); k.reset()
        ACC = {T: 8 + 4 * i for i, T in enumerate(tiles)}
        pool = [r for r in range(8 + 4 * len(tiles), 120, 4) if not KL <= r < KL + 12] + [164]
        def ld(v, r):
            if v[0] == "B":
                b = v[1]; return [f"ds_read_b128 {vr(r,4)}, v{AU+b%4} offset:{(b//4)*2048}"] if b >= 0 else [f"ds_read_b128 {vr(r,4)}, v{NEG+b%4} offset:{(b//4+2)*2048 if b%4 else 0}"]
            if v[0] == "B24": return [f"ds_read_b128 {vr(r,4)}, v{AU+4} offset:{v[1]*4096}"]
            if v[0] == "A":
                o = 16 * (16 - v[1]); a = AU + 5
                if o >= 128: o -= 128; a = AU + 6
            else:
                o = {"oe": 112, "ab": 128, "cd": 176}[v[0]] - 16 * v[1]; a = AU + 7
            return [f"ds_read2_b32 {vr(r,2)}, v{a} offset0:{o} offset1:{o+1}", f"ds_read2_b32 {vr(r+2,2)}, v{a} offset0:{o+2} offset1:{o+3}"]
        if third == 0:
            NEG = pool.pop()
            for m in range(4): k(f"v_subrev_u32 v{NEG+m}, {4096 if m else 2048}, v{AU+m}")
        full = []
        for q in range(17):
            for T in reversed(tiles):
                if 8 * T - q >= -7: full.append(("M", T, ("A", q), ("B", 8 * T - q)))
        if third == 0: full.sort(key=lambda o: -o[3][1])
        sops = []; tops = []
        for Tp in range(8):
            for pr, Ds in (("ab", (2, 3, 4)), ("cd", (2, 3, 4)), ("oe", (4, 5, 6, 7))):
                us = [T for T in tiles if T - Tp in Ds]
                if not us: continue
                sops.append((pr, Tp))
                for T in us: tops.append(("M", T, ("P", pr, Tp), (pr, T - Tp)))
        spec = [("M", T, ("spec",), ("B", 8 * (T - 4))) for T in tiles if T >= 4]
        ops = []
        for i, (pr, Tp) in enumerate(sops):
            for n in pr: ops.append(("S", n, Tp, ("B24", Tp) if n in "de" else ("B", 8 * Tp, "s")))
            if i: ops.append(("cvt",) + sops[i - 1])
        ops.append(("K",)); ops.append(("cvt",) + sops[-1])
        ops.insert(min(opt.get(f"kt{third}", opt.get("kp", 2)), len(ops) - 2), ("poll",))
        ops += tops + spec + full
        KI = ops.index(("K",))
        def vals(o):
            if o[0] == "M": return [v for v in o[2:] if v[0] not in ("P", "spec")]
            if o[0] == "S": return [o[3]]
            return []
        last = {}
        for i, o in enumerate(ops):
            for v in vals(o): last[v] = i
            if o[0] == "M" and o[2][0] == "P": last[o[2]] = i
        reg = {}; LA = opt.get("bla", 5); mn = [99]
        def prefetch(i, cur):
            if i < len(ops) and (KS == 1 or not (cur < KI < i)):
                for v in vals(ops[i]):
                    if v not in reg:
                        reg[v] = pool.pop(0); mn[0] = min(mn[0], len(pool))
                        for s in ld(v, reg[v]): k(s)
        for i in range(LA): prefetch(i, 0)
        if not XR:
            for i, T in enumerate(tiles): k(f"ds_read_b64 {vr(ACC[T]+2,2)}, v{XA} offset:{4096*i}")
        seen = set() if XR else set(tiles)
        specdone = False
        for i, o in enumerate(ops):
            if o[0] == "poll" and KS:
                if KS == 2:
                    kchk(f"F_kc{third}")
                    if opt.get("zb"): k("s_barrier")
            elif o[0] == "poll":
                k("s_waitcnt lgkmcnt(0)" if UR else f"s_waitcnt lgkmcnt(0)\ns_cmp_lg_u32 s63, 0\ns_cbranch_scc1 F_k1{third}")
                spin(k, f"F_pk{third}", "buffer_load_dword v5, off, s[4:7], s64 sc1", ["v_readfirstlane_b32 s66, v5", "s_cmp_lg_u32 s66, 1"])
                for j in range(3): k(f"!buffer_load_dwordx4 {vr(KL+4*j,4)}, v{L16}, s[4:7], s52 offen offset:{1024*j} sc1")
                k(f"F_k1{third}:")
                if UR: k("s_barrier"); k.stamp(4); k("s_waitcnt lgkmcnt(0)" if k.on else "")
                elif opt.get("zb"): k("s_barrier")
            elif o[0] == "K":
                for T in ([] if XR else tiles):
                    a = ACC[T]
                    k(f"v_lshlrev_b32 v{a}, 16, v{a+2}\nv_and_b32 v{a+1}, 0xffff0000, v{a+2}\nv_lshlrev_b32 v{a+2}, 16, v{a+3}\nv_and_b32 v{a+3}, 0xffff0000, v{a+3}")
                for j in range(0 if KS == 1 else 3): k(f"s_waitcnt vmcnt({2-j})\nds_write_b128 v{KW}, {vr(KL+4*j,4)} offset:{1024*j}")
                k.stamp(5); k("s_waitcnt lgkmcnt(0)" if k.on else "")
                pool += [KL, KL + 4, KL + 8]
                if third: k(f"v_mov_b32 v4, s53\nds_read_b32 v4, v4 offset:{456*4}")
                for j in range(1, LA): prefetch(i + j, i)
            elif o[0] == "S":
                r = pool.pop(0); reg[("S", o[1], o[2])] = r; mn[0] = min(mn[0], len(pool))
                k(f"v_mfma_f32_16x16x32_bf16 {vr(r,4)}, {vr(reg[o[3]],4)}, {vr(MK[o[1]],4)}, 0")
            elif o[0] == "cvt":
                r0 = reg.pop(("S", o[1][0], o[2])); r1 = reg.pop(("S", o[1][1], o[2]))
                for p in range(4): k(f"v_cvt_pk_bf16_f32 v{r0+p}, v{r0+p}, v{r1+p}")
                reg[("P", o[1], o[2])] = r0; pool.append(r1)
            else:
                T = o[1]
                if o[2][0] == "spec":
                    if not specdone:
                        for p in range(4): k(f"v_and_b32 v{MK['s']+p}, v{MK['s']+p}, v4")
                        specdone = True
                    a = MK["s"]
                else: a = reg[o[2]]
                k(f"v_mfma_f32_16x16x32_bf16 {vr(ACC[T],4)}, {vr(a,4)}, {vr(reg[o[3]],4)}, {vr(ACC[T],4) if T in seen else 0}")
                seen.add(T)
            if XR and i == len(ops) - opt.get("xl", 6):
                XQ = [pool.pop(0) for _ in range(len(tiles) // 2)]
                for rnd, r in enumerate(XQ): k(f"ds_read_b128 {vr(r,4)}, v{XA} offset:{8192*rnd}")
            for v in list(reg):
                if last.get(v) == i: pool.append(reg.pop(v))
            prefetch(i + LA, i)
        if XR:
            XF = 132
            k("s_mov_b32 s38, 0x3f80\ns_mov_b32 s39, 0x3f800000")
            for rnd, r in enumerate(XQ):
                for q in range(4): k(f"v_lshlrev_b32 v{XF+8*rnd+2*q}, 16, v{r+q}\nv_and_b32 v{XF+8*rnd+2*q+1}, 0xffff0000, v{r+q}")
        print("third", third, "ops", len(ops), "S", 2 * len(sops), "min pool", mn[0])
        for i, T in enumerate(tiles):
            a = ACC[T]
            k(f"v_cvt_pk_bf16_f32 v{a}, v{a}, v{a+1}\nv_cvt_pk_bf16_f32 v{a+1}, v{a+2}, v{a+3}\nds_write_b64 v{AU+8}, {vr(a,2)} offset:{512*i}")
        if opt.get("dry"): k("s_cbranch_execz F_end")
        nr = len(tiles) // 2
        if opt.get("fb"):
            assert opt.get("l3")
            k(f"s_mov_b64 exec, 1\n!ds_add_u32 v162, v163 offset:8\ns_mov_b64 exec, -1\ns_mov_b32 s67, 0\nF_fb{third}:\n!ds_read_b32 v4, v162 offset:8\n!s_add_u32 s67, s67, 1\n!s_waitcnt lgkmcnt(0)\n!v_readfirstlane_b32 s66, v4\n!s_cmp_ge_u32 s66, 8\n!s_cbranch_scc1 F_fb{third}_ok\n!s_cmp_lt_u32 s67, 0xfffff\n!s_cbranch_scc1 F_fb{third}\nF_fb{third}_ok:")
            k.reset()
        else: k("s_waitcnt lgkmcnt(0)\ns_barrier")
        for rnd in range(nr):
            k(f"ds_read_b64_tr_b16 {vr(80+4*rnd,2)}, v{AU+9} offset:{1024*rnd}\nds_read_b64_tr_b16 {vr(82+4*rnd,2)}, v{AU+9} offset:{1024*rnd+4*RS}")
        for rnd in range(nr):
            if XR:
                for q in range(4): k(f"v_dot2c_f32_bf16 v{XF+8*rnd+2*q}, s38, v{80+4*rnd+q}\nv_dot2c_f32_bf16 v{XF+8*rnd+2*q+1}, s39, v{80+4*rnd+q}")
                for q in range(4): k(f"v_cvt_pk_bf16_f32 v{80+4*rnd+q}, v{XF+8*rnd+2*q}, v{XF+8*rnd+2*q+1}")
            k(f"buffer_store_dwordx4 {vr(80+4*rnd,4)}, v{HV}, s[4:7], s{54+rnd} offen sc1")
        k.end()
    k("F_idle:"); k.reset()
    k("s_cmp_eq_u32 s62, 8\ns_cbranch_scc1 F_end\ns_waitcnt lgkmcnt(0)")
    early(); k("s_barrier\n" * (3 if opt.get("l3") else 2) + "s_branch F_b")
    k("F_m8:"); k.reset()
    k("s_barrier\ns_barrier" if KS else "s_waitcnt vmcnt(0)\ns_barrier")
    k("s_mov_b32 s63, 1\ns_mov_b64 exec, 0\ns_branch F_dry" if opt.get("dry") else "s_endpgm")
    k("F_init:"); k.reset()
    I0 = opt.get("i0", 0)
    k("s_endpgm\nF_init0:" if I0 else "s_cmp_lg_u32 s2, 255\ns_cbranch_scc1 F_end\ns_cmp_lg_u32 s62, 0\ns_cbranch_scc1 F_end")
    mksrd(k, 8, 96, 256)
    k(f"v_mov_b32 v8, 0\nv_mov_b32 v9, 0\nv_mov_b32 v10, 0\nv_mov_b32 v11, 0\nv_lshlrev_b32 v4, 4, v2\nv_lshlrev_b32 v5, 7, v2\ns_mov_b32 s12, {LY.FLG}\ns_mov_b32 s15, {LNF}\ns_mov_b32 s13, {KF}\ns_mov_b32 s14, {KF+2048}\nv_mov_b32 v6, 1\ns_waitcnt lgkmcnt(0)")
    if UR:
        k("v_add_u32 v7, 4096, v4\nbuffer_load_dword v12, off, s[8:11], 0 sc1")
        for j in range(8): k(f"buffer_store_dwordx4 v[8:11], v{4 if j < 4 else 7}, s[4:7], s15 offen offset:{1024*(j%4)} sc1")
    I1 = opt.get("i1", 0)
    if I1 == 2:
        k("v_add_u32 v7, 4096, v4")
        for j in range(8): k(f"buffer_store_dwordx4 v[8:11], v{4 if j < 4 else 7}, s[4:7], s15 offen offset:{1024*(j%4)} sc1")
    else: k("buffer_store_dwordx4 v[8:11], v5, s[4:7], s15 offen sc1")
    if not KS: k("buffer_store_dwordx4 v[8:11], v5, s[4:7], s13 offen sc1\nbuffer_store_dwordx4 v[8:11], v5, s[4:7], s14 offen sc1")
    k("s_waitcnt vmcnt(0)\ns_mov_b64 exec, 1\nbuffer_store_dword v6, off, s[8:11], 0 sc1\ns_mov_b64 exec, -1")
    if I1: k(f"s_endpgm\nF_ez:\nv_mov_b32 v8, 0\nv_mov_b32 v9, 0\nv_mov_b32 v10, 0\nv_mov_b32 v11, 0\nv_lshlrev_b32 v5, 7, v2\ns_mov_b32 s12, {LY.FLG}\ns_cmp_eq_u32 s62, 11\ns_cbranch_scc1 F_end")
    k("buffer_store_dwordx4 v[8:11], v5, s[4:7], s12 offen sc1\n" + ("s_nop 1\nv_lshlrev_b32 v9, 4, v2\ns_branch F_shuf2" if I0 else "s_endpgm"))
    GX = 64; GS = 40
    def h_setup(w):
        k(f"s_lshl_b32 s13, s61, 1\ns_add_u32 s13, s13, 4\ns_mul_i32 s12, {w}, {256*1280}\ns_lshl_b32 s14, s60, 4\ns_add_u32 s12, s12, s14\nv_mul_u32_u24 v21, 1280, v2\ns_sub_u32 s14, s13, 1")
        for j in range(3): k(f"s_add_u32 s15, {w}, {3*j}\ns_min_u32 s15, s15, s14\ns_lshl_b32 s15, s15, 10\ns_add_u32 s{48+j}, s15, {LNF}")
        k(f"s_sub_u32 s13, s13, {w}\ns_lshl_b32 s14, {w}, 12\ns_add_u32 s15, s14, {XRB}\ns_add_u32 s14, s14, {UB+4096}\nv_add_u32 v22, s15, v9\nv_add_u32 v23, s14, v9")
        k("v_lshrrev_b32 v26, 4, v2\nv_bfe_u32 v24, v2, 1, 1\nv_lshl_add_u32 v24, v26, 1, v24\nv_bfe_u32 v25, v2, 2, 2\nv_lshl_add_u32 v24, v24, 3, v25\nv_and_b32 v25, 1, v2\nv_lshl_add_u32 v24, v24, 1, v25\nv_lshl_add_u32 v24, v24, 3, s14")
        k("v_lshlrev_b32 v26, 4, v26\nv_xor_b32 v25, v26, v23\nv_xor_b32 v26, 64, v25")
    def h_gather(nm):
        for j in range(3):
            if j: k(f"s_cmp_le_u32 s13, {3*j}\ns_cbranch_scc1 {nm}_g")
            for q in range(4): k(f"s_add_u32 s14, s12, {(768*j+64*q)*1280}\n!buffer_load_dwordx4 {vr(GX+16*j+4*q,4)}, v21, s[8:11], s14 offen" + ["", " nt", " sc0", " sc1", " sc0 sc1"][opt.get("gm", 0)])
        k(f"{nm}_g:")
    def h_proc(nm):
        spin(k, nm + "_s", "\n!".join(f"buffer_load_dwordx4 {vr(GS+4*j,4)}, v9, s[4:7], s{48+j} offen sc1" for j in range(3)),
             [f"v_min3_u32 v28, v{GS}, v{GS+1}, v{GS+2}"] + [f"v_min3_u32 v28, v28, v{GS+i}, v{GS+i+1}" for i in range(3, 11, 2)] + [f"v_min_u32 v28, v28, v{GS+11}", "v_cmp_eq_u32 vcc, 0, v28", "s_nop 1", "s_cmp_lg_u64 vcc, 0"])
        k.stamp(3)
        HB = opt.get("hb", 0)
        for j in range(3):
            if j: k(f"s_cmp_le_u32 s13, {3*j}\ns_cbranch_scc1 {nm}_p")
            if HB: k(f"s_cmp_gt_u32 s13, {3*j+3}\ns_cbranch_scc1 {nm}_b{j}\ns_barrier\ns_barrier\n{nm}_b{j}:")
            for q in range(4): k(f"ds_write_b128 v22, {vr(GX+16*j+4*q,4)} offset:{12288*j+1024*q}\nv_and_b32 v{112+2*q}, 0xffff0000, v{GS+4*j+q}\nv_rcp_f32 v{112+2*q}, v{112+2*q}\nv_lshlrev_b32 v{GS+4*j+q}, 16, v{GS+4*j+q}")
            for q in range(4): k(f"v_mul_f32 v{120+2*q}, v{GS+4*j+q}, v{112+2*q}")
            for q in range(5):
                if q < 4:
                    x = GX + 16 * j + 4 * q; o = 12288 * j + 1024 * q
                    for e in range(4): k(f"v_lshlrev_b32 v{28+2*e}, 16, v{x+e}\nv_and_b32 v{29+2*e}, 0xffff0000, v{x+e}")
                    for e in range(4): k(f"v_pk_fma_f32 {vr(28+2*e,2)}, {vr(28+2*e,2)}, {vr(112+2*q,2)}, {vr(120+2*q,2)} op_sel_hi:[1,0,0]")
                    for e in range(4): k(f"v_cvt_pk_bf16_f32 v{128+4*q+e}, v{28+2*e}, v{29+2*e}")
                    k(f"ds_write_b128 v23, {vr(128+4*q,4)} offset:{o}\nds_read_b64_tr_b16 {vr(144+4*q,2)}, v24 offset:{o}\nds_read_b64_tr_b16 {vr(146+4*q,2)}, v24 offset:{o+64}")
                if q: k(f"ds_write_b128 v{25+((q-1)&1)}, {vr(144+4*(q-1),4)} offset:{12288*j+1024*(q-1)}")
            k("s_waitcnt lgkmcnt(0)")
        k(f"{nm}_p:"); k.reset()
        k.stamp(4)
        return 2 if HB else 0
    L3 = opt.get("l3", 0)
    def codepf():
        k("s_getpc_b64 s[20:21]\nA_pc0:\ns_add_u32 s20, s20, kA_kernel-A_pc0\ns_addc_u32 s21, s21, -1")
        k("s_lshr_b32 s22, s2, 3\ns_lshl_b32 s22, s22, 1\ns_and_b32 s23, s62, 1\ns_add_u32 s22, s22, s23\ns_lshl_b32 s22, s22, 12\nv_lshlrev_b32 v118, 6, v2\nv_add_u32 v118, s22, v118")
        k("v_min_u32 v118, code_end-kA_kernel, v118\nglobal_load_dword v117, v118, s[20:21]")
    if L3:
        assert KS and XR and not UR
        MBX = LDSZ; PS = MBX + 64; LDSZ += 64 + 1536
        k("F_side:"); k.reset()
        k(f"s_setprio {opt.get('prio', 3)}")
        mksrd(k, 8, 0, 2621440); mksrd(k, 16, 96, 256)
        k("v_lshlrev_b32 v9, 4, v2\ns_mov_b32 s30, 0x3f803f80\nv_lshrrev_b32 v3, 3, v2\nv_and_b32 v4, 7, v2\nv_lshlrev_b32 v4, 4, v4\nv_mul_u32_u24 v5, 1280, v3\nv_add_u32 v5, v5, v4\ns_mul_i32 s12, s2, 10240")
        k("s_sub_u32 s28, s62, 9\ns_lshl_b32 s29, s28, 2\ns_lshr_b32 s13, s28, 1\ns_sub_u32 s29, s29, s13\ns_lshl_b32 s29, s29, 7\ns_add_u32 s13, s12, s29")
        k("s_mov_b32 s36, s8\ns_mov_b32 s37, s9\ns_cmp_eq_u32 s28, 0\ns_cselect_b32 s38, s10, 0\ns_mov_b32 s39, s11")
        X = 16; TR = 64
        for j in range(4): k(f"buffer_load_dwordx4 {vr(X+4*j,4)}, v5, s[{8 if j < 3 else 36}:{11 if j < 3 else 39}], s13 offen offset:{128*j}{NT('x')}")
        for i in range(4): k(f"v_mov_b32 v{112+i}, -1")
        k(f"s_mul_i32 s26, s61, 3\ns_add_u32 s26, s26, s28\ns_lshl_b32 s25, s60, 3\ns_add_u32 s25, s25, s26\ns_mul_i32 s25, s25, 3072\ns_add_u32 s25, s25, {LY.KP}")
        k("s_mov_b32 s32, s4\ns_mov_b32 s33, s5\ns_cmp_lt_u32 s26, 8\ns_cselect_b32 s34, s6, 0\ns_mov_b32 s35, s7")
        sen = "\n".join(f"buffer_store_dwordx4 v[112:115], v9, s[32:35], s25 offen offset:{1024*j} sc1" for j in range(3))
        SQ = opt.get("sq", 2)
        if SQ == 0: k(sen)
        codepf()
        k(f"v_lshlrev_b32 v119, 3, v2\nv_add_u32 v119, {PS}, v119\ns_lshl_b32 s26, s28, 9\nv_add_u32 v111, s26, v119\nds_write_b64 v111, v[112:113]")
        k(f"v_mov_b32 v10, 0\nv_mov_b32 v11, 0\nv_mov_b32 v12, 0\nv_mov_b32 v13, 0\ns_lshl_b32 s26, s28, 2\ns_add_u32 s26, s26, {MBX-4}\ns_cmp_lg_u32 s28, 0\ns_cselect_b32 s26, s26, {MBX}\nv_mov_b32 v116, s26\ns_cbranch_scc1 F_l3a\n!ds_write_b128 v116, v[10:13]\nF_l3a:")
        k(f"s_add_u32 s29, s29, {LNB}\nv_mul_u32_u24 v6, 1344, v3\nv_add3_u32 v6, v6, v4, s29")
        k(f"v_bfe_u32 v7, v2, 2, 2\nv_mul_u32_u24 v7, 1344, v7\nv_and_b32 v8, 3, v2\nv_lshl_add_u32 v7, v8, 3, v7\nv_bfe_u32 v8, v2, 4, 2\nv_lshl_add_u32 v7, v8, 5, v7\nv_add_u32 v7, s29, v7")
        k(f"s_sub_u32 s29, s29, {LNB}\ns_lshl_b32 s29, s29, 3\ns_add_u32 s12, s12, s29\ns_and_b32 s23, s2, 63\ns_lshl_b32 s23, s23, 7\ns_lshr_b32 s24, s2, 6\ns_lshl_b32 s24, s24, 2\ns_add_u32 s23, s23, s24\ns_add_u32 s23, s23, {LNF}\ns_mov_b32 s24, {LNF}\nv_lshlrev_b32 v8, 7, v2")
        UP = 120
        k("s_waitcnt lgkmcnt(0)\ns_barrier")
        for q in range(16):
            k(f"v_dot2c_f32_bf16 v{10+2*(q&1)}, s30, v{X+q}\nv_dot2c_f32_bf16 v{11+2*(q&1)}, v{X+q}, v{X+q}")
            if q < 16: k(f"v_lshlrev_b32 v{UP+2*q}, 16, v{X+q}\nv_and_b32 v{UP+2*q+1}, 0xffff0000, v{X+q}")
        k.stamp(1)
        tr = lambda r, o: f"ds_read_b64_tr_b16 {vr(r,2)}, v7 offset:{o}\nds_read_b64_tr_b16 {vr(r+2,2)}, v7 offset:{o+4*1344}"
        k("v_add_f32 v10, v10, v12\nv_add_f32 v11, v11, v13")
        for m in ("quad_perm:[1,0,3,2]", "quad_perm:[2,3,0,1]", "row_half_mirror"):
            k(f"v_add_f32_dpp v10, v10, v10 {m} row_mask:0xf bank_mask:0xf\nv_add_f32_dpp v11, v11, v11 {m} row_mask:0xf bank_mask:0xf")
        k("ds_write_b64 v111, v[10:11]")
        if SQ == 1: k(sen)
        k("s_mov_b32 s67, 0\nF_ps:\n!ds_read_b64 v[10:11], v119\n!ds_read_b64 v[12:13], v119 offset:512\n!ds_read_b64 v[14:15], v119 offset:1024\n!s_add_u32 s67, s67, 1\n!s_waitcnt lgkmcnt(0)\n!v_max3_u32 v110, v11, v13, v15\n!v_cmp_eq_u32 vcc, -1, v110\n!v_add_f32 v10, v10, v12\n!v_add_f32 v11, v11, v13\n!s_cmp_eq_u64 vcc, 0\n!s_cbranch_scc1 F_ps_ok\n!s_cmp_lt_u32 s67, 0xffff\n!s_cbranch_scc1 F_ps\nF_ps_ok:\nv_add_f32 v10, v10, v14\nv_add_f32 v11, v11, v15")
        k(f"v_mul_f32 v10, {fbits(-1/640)}, v10\nv_mul_f32 v11, {fbits(1/640)}, v11\nv_fma_f32 v11, -v10, v10, v11\nv_max_f32 v11, 0, v11")
        k(f"v_cvt_pk_bf16_f32 v11, v10, v11\nv_lshlrev_b32 v10, 16, v11\nv_and_b32 v11, 0xffff0000, v11\nv_add_f32 v11, {fbits(1e-5)}, v11")
        k("v_cvt_pk_bf16_f32 v11, v11, v11\nv_and_b32 v11, 0xffff0000, v11\nv_sqrt_f32 v11, v11\nv_cvt_pk_bf16_f32 v11, v11, v11\nv_and_b32 v11, 0xffff0000, v11")
        k("v_rcp_f32 v12, v11\nv_mul_f32 v14, v10, v12")
        def chunk(j):
            for q in range(4): k(f"v_pk_fma_f32 {vr(UP+8*j+2*q,2)}, {vr(UP+8*j+2*q,2)}, v[12:13], v[14:15] op_sel_hi:[1,0,0]")
            for q in range(4): k(f"v_cvt_pk_bf16_f32 v{X+4*j+q}, v{UP+8*j+2*q}, v{UP+8*j+2*q+1}")
            k(f"ds_write_b128 v6, {vr(X+4*j,4)} offset:{128*j}")
            k(tr(TR + 4 * j, 128 * j))
        ust = lambda j: k(f"buffer_store_dwordx4 {vr(TR+4*j,4)}, v9, s[4:7], s12 offen offset:{1024*j} sc1")
        chunk(0); chunk(1); ust(0); chunk(2); ust(1)
        k("s_cmp_eq_u32 s28, 0\ns_cbranch_scc1 F_l3b\n!s_waitcnt lgkmcnt(0)")
        k(f"!buffer_store_dwordx4 {vr(TR+8,4)}, v9, s[4:7], s12 offen offset:2048 sc1" + ("\n!" + sen.replace("\n", "\n!") if SQ == 2 else "") + f"\n!v_mov_b32 v3, 1\n!s_waitcnt vmcnt(0)\n!ds_write_b32 v116, v3\n!s_setprio 0\n!s_waitcnt lgkmcnt(0)\n!s_branch F_shuf\nF_l3b:")
        chunk(3); ust(2); ust(3)
        if SQ == 2: k(sen)
        k("v_mov_b32 v3, 1")
        k.stamp(2)
        k("s_lshl_b32 s12, s61, 9\ns_add_u32 s12, s12, 512\ns_cmp_eq_u32 s61, 0\ns_cselect_b32 s12, 0, s12\ns_mul_i32 s12, s12, 1280\ns_lshl_b32 s14, s60, 4\ns_add_u32 s12, s12, s14\nv_mul_u32_u24 v21, 1280, v2")
        spin(k, "F_go", "buffer_load_dword v10, off, s[16:19], 0 sc1", ["v_readfirstlane_b32 s66, v10", "s_cmp_lg_u32 s66, 1"])
        k("s_mov_b32 s67, 0\nF_mb:\n!ds_read_b64 v[10:11], v116\n!s_add_u32 s67, s67, 1\n!s_waitcnt lgkmcnt(0)\n!v_and_b32 v10, v10, v11\n!s_nop 0\n!v_readfirstlane_b32 s66, v10\n!s_cmp_eq_u32 s66, 1\n!s_cbranch_scc1 F_mb_ok\n!s_cmp_lt_u32 s67, 0xffff\n!s_cbranch_scc1 F_mb\nF_mb_ok:")
        k("s_mov_b64 exec, 1\nbuffer_store_dword v3, off, s[4:7], s23 sc1\ns_mov_b64 exec, -1")
        k.stamp(3)
        k("s_cmp_ge_u32 s2, 240\ns_cbranch_scc1 F_send")
        for j in range(16):
            if j == 8: k("s_cmp_lg_u32 s61, 0\ns_cbranch_scc1 F_l3c")
            k(f"s_mov_b32 m0, {XRB+1024*j}\ns_add_u32 s14, s12, {64*1280*j}\n!buffer_load_dwordx4 v21, s[8:11], s14 offen lds")
        k("F_l3c:")
        LP = opt.get("lp", 0)
        k("s_barrier\n" * (2 - LP))
        if LP: k("!buffer_load_dwordx4 v[12:15], v8, s[4:7], s24 offen sc1\n" + "s_barrier\n" * LP)
        k.stamp(4)
        if LP: k("!s_waitcnt vmcnt(0)\n!v_and_b32 v12, v12, v13\n!v_and_b32 v14, v14, v15\n!v_and_b32 v12, v12, v14\n!v_cmp_ne_u32 vcc, 1, v12\n!s_nop 1\n!s_cmp_eq_u64 vcc, 0\n!s_cbranch_scc1 F_ln_ok")
        spin(k, "F_ln", "buffer_load_dwordx4 v[12:15], v8, s[4:7], s24 offen sc1",
             ["v_and_b32 v12, v12, v13", "v_and_b32 v14, v14, v15", "v_and_b32 v12, v12, v14", "v_cmp_ne_u32 vcc, 1, v12", "s_nop 1", "s_cmp_lg_u64 vcc, 0"])
        k.stamp(5)
        k("s_barrier\nF_send:")
        k.end()
    else:
        k("F_side:"); k.reset()
        k("v_lshlrev_b32 v9, 4, v2\ns_mov_b32 s30, 0x3f803f80\ns_cmp_lg_u32 s62, 9\ns_cbranch_scc1 F_shuf")
        if opt.get("prio", 3): k(f"s_setprio {opt.get('prio', 3)}")
        mksrd(k, 8, 0, 2621440); mksrd(k, 16, 96, 256)
        if opt.get("pf", 0): k("s_load_dwordx4 s[40:43], s[0:1], 64\ns_load_dwordx2 s[44:45], s[0:1], 80")
        k("v_lshrrev_b32 v3, 3, v2\nv_and_b32 v4, 7, v2\nv_lshlrev_b32 v4, 4, v4\nv_mul_u32_u24 v5, 1280, v3\nv_add_u32 v5, v5, v4\ns_mul_i32 s12, s2, 10240")
        X = 16; TR = 64
        for j in range(10): k(f"buffer_load_dwordx4 {vr(X+4*j,4)}, v5, s[8:11], s12 offen offset:{128*j}{NT('x')}")
        k(f"v_mul_u32_u24 v6, 1344, v3\nv_add_u32 v6, v6, v4\nv_add_u32 v6, {LNB}, v6")
        k(f"v_bfe_u32 v7, v2, 2, 2\nv_mul_u32_u24 v7, 1344, v7\nv_and_b32 v8, 3, v2\nv_lshl_add_u32 v7, v8, 3, v7\nv_bfe_u32 v8, v2, 4, 2\nv_lshl_add_u32 v7, v8, 5, v7\nv_add_u32 v7, {LNB}, v7")
        k(f"s_add_u32 s13, s12, 4096\ns_add_u32 s14, s12, 8192\ns_add_u32 s20, s12, {LY.XT}\ns_add_u32 s21, s13, {LY.XT}\ns_add_u32 s22, s14, {LY.XT}\ns_and_b32 s23, s2, 63\ns_lshl_b32 s23, s23, 7\ns_lshr_b32 s24, s2, 6\ns_lshl_b32 s24, s24, 2\ns_add_u32 s23, s23, s24\ns_add_u32 s23, s23, {LNF}\ns_mov_b32 s24, {LNF}\nv_lshlrev_b32 v8, 7, v2")
        k("v_mov_b32 v10, 0\nv_mov_b32 v11, 0\nv_mov_b32 v12, 0\nv_mov_b32 v13, 0")
        if KS:
            assert XR
            for i in range(4): k(f"v_mov_b32 v{112+i}, -1")
            SQ = opt.get("sq", 0)
            k(f"s_lshl_b32 s25, s60, 3\ns_mul_i32 s26, s61, 3\ns_add_u32 s25, s25, s26\ns_mul_i32 s25, s25, 3072\ns_add_u32 s25, s25, {LY.KP}\ns_add_u32 s26, s25, 3072\ns_add_u32 s27, s25, 6144")
            for d, c in ((32, 3), (36, 2)): k(f"s_mov_b32 s{d}, s4\ns_mov_b32 s{d+1}, s5\ns_cmp_lt_u32 s61, {c}\ns_cselect_b32 s{d+2}, s6, 0\ns_mov_b32 s{d+3}, s7")
        for q in range(40):
            if KS and q == SQ and SQ <= 36:
                for j in range(9): k(f"buffer_store_dwordx4 v[112:115], v9, s[{32+4*(j//6)}:{35+4*(j//6)}], s{25+j//3} offen offset:{1024*(j%3)} sc1")
            if UR and q == opt.get("gq", 1): k("buffer_load_dword v60, off, s[16:19], 0 sc1")
            k(f"v_dot2c_f32_bf16 v{10+2*(q&1)}, s30, v{X+q}\nv_dot2c_f32_bf16 v{11+2*(q&1)}, v{X+q}, v{X+q}")
            if KS and q == 37 and SQ > 36:
                k(f"s_cmp_ge_u32 s2, 240\ns_cbranch_scc1 F_nos\ns_lshl_b32 s25, s60, 3\ns_mul_i32 s26, s61, 3\ns_add_u32 s25, s25, s26\ns_mul_i32 s25, s25, 3072\ns_add_u32 s25, s25, {LY.KP}")
                for c in range(3):
                    if c == 2: k("s_cmp_eq_u32 s61, 2\ns_cbranch_scc1 F_nos")
                    for j in range(3): k(f"!buffer_store_dwordx4 v[112:115], v9, s[4:7], s25 offen offset:{1024*j} sc1")
                    if c < 2: k("s_add_u32 s25, s25, 3072")
                k("F_nos:")
            if q % 4 == 3 and not XR: k(f"ds_write_b128 v6, {vr(X+q-3,4)} offset:{XS+32*(q-3)}")
        k.stamp(1)
        tr = lambda r, o: f"ds_read_b64_tr_b16 {vr(r,2)}, v7 offset:{o}\nds_read_b64_tr_b16 {vr(r+2,2)}, v7 offset:{o+4*1344}"
        k("v_add_f32 v10, v10, v12\nv_add_f32 v11, v11, v13")
        for j in range(0 if XR else 10): k(tr(TR + 40 + 4 * j, XS + 128 * j))
        for m in ("quad_perm:[1,0,3,2]", "quad_perm:[2,3,0,1]", "row_half_mirror"):
            k(f"v_add_f32_dpp v10, v10, v10 {m} row_mask:0xf bank_mask:0xf\nv_add_f32_dpp v11, v11, v11 {m} row_mask:0xf bank_mask:0xf")
        k(f"v_mul_f32 v10, {fbits(-1/640)}, v10\nv_mul_f32 v11, {fbits(1/640)}, v11\nv_fma_f32 v11, -v10, v10, v11\nv_max_f32 v11, 0, v11")
        k(f"v_cvt_pk_bf16_f32 v11, v10, v11\nv_lshlrev_b32 v10, 16, v11\nv_and_b32 v11, 0xffff0000, v11\nv_add_f32 v11, {fbits(1e-5)}, v11")
        k("v_cvt_pk_bf16_f32 v11, v11, v11\nv_and_b32 v11, 0xffff0000, v11\nv_sqrt_f32 v11, v11\nv_cvt_pk_bf16_f32 v11, v11, v11\nv_and_b32 v11, 0xffff0000, v11")
        if UR:
            k(f"v_lshrrev_b32 v10, 16, v10\nv_or_b32 v10, v10, v11\nv_lshlrev_b32 v3, 4, v3\ns_lshr_b32 s23, s2, 5\ns_lshl_b32 s23, s23, 10\ns_and_b32 s24, s2, 7\ns_lshl_b32 s24, s24, 7\ns_add_u32 s23, s23, s24\ns_bfe_u32 s24, s2, 0x20003\ns_lshl_b32 s24, s24, 2\ns_add_u32 s23, s23, s24\ns_add_u32 s23, s23, {LNF}")
            k("!s_waitcnt vmcnt(0)\n!v_readfirstlane_b32 s66, v60\ns_cmp_eq_u32 s66, 1\ns_cbranch_scc1 F_go_ok")
            spin(k, "F_go", "buffer_load_dword v60, off, s[16:19], 0 sc1", ["v_readfirstlane_b32 s66, v60", "s_cmp_lg_u32 s66, 1"])
            k("s_mov_b32 exec_lo, 0x01010101\ns_mov_b32 exec_hi, 0x01010101\nbuffer_store_dword v10, v3, s[4:7], s23 offen sc1\ns_mov_b64 exec, -1")
            k.stamp(2)
            k("s_cmp_ge_u32 s2, 240\ns_cbranch_scc1 F_send")
            if XS_: k(f"v_mov_b32 v12, 1\nv_mov_b32 v13, 1\nv_mov_b32 v11, {MBX}\nds_write_b64 v11, v[12:13]")
            h_setup(2); h_gather("F_hl"); h_proc("F_hl")
            k("F_send:")
            k.end()
        else:
            k("v_rcp_f32 v12, v11\nv_mul_f32 v14, v10, v12")
            for j in range(10):
                for q in range(4): k(f"v_lshlrev_b32 v{56+2*q}, 16, v{X+4*j+q}\nv_and_b32 v{57+2*q}, 0xffff0000, v{X+4*j+q}")
                for q in range(4): k(f"v_pk_fma_f32 {vr(56+2*q,2)}, {vr(56+2*q,2)}, v[12:13], v[14:15] op_sel_hi:[1,0,0]")
                for q in range(4): k(f"v_cvt_pk_bf16_f32 v{X+4*j+q}, v{56+2*q}, v{57+2*q}")
                k(f"ds_write_b128 v6, {vr(X+4*j,4)} offset:{128*j}")
                k(tr(TR + 4 * j, 128 * j))
                if not XR: k(f"buffer_store_dwordx4 {vr(TR+40+4*j,4)}, v9, s[4:7], s{20+j//4} offen offset:{1024*(j%4)} sc1")
                if j: k(f"buffer_store_dwordx4 {vr(TR+4*j-4,4)}, v9, s[4:7], s{12+(j-1)//4} offen offset:{1024*((j-1)%4)} sc1")
            k(f"buffer_store_dwordx4 {vr(TR+36,4)}, v9, s[4:7], s14 offen offset:1024 sc1\nv_mov_b32 v3, 1")
            k.stamp(2)
            spin(k, "F_go", "buffer_load_dword v10, off, s[16:19], 0 sc1", ["v_readfirstlane_b32 s66, v10", "s_cmp_lg_u32 s66, 1"])
            k("s_mov_b64 exec, 1\nbuffer_store_dword v3, off, s[4:7], s23 sc1\ns_mov_b64 exec, -1")
            if opt.get("pf", 0):
                k("s_mul_i32 s25, s2, 7680\nv_min_u32 v4, 59, v2\nv_lshlrev_b32 v4, 7, v4\nv_add_u32 v4, s25, v4")
                for i in range(3): k(f"global_load_dword v{16+i}, v4, s[{40+2*i}:{41+2*i}]")
            k.stamp(3)
            LP = opt.get("lp", 0)
            k("s_cmp_ge_u32 s2, 240\ns_cbranch_scc1 F_send\ns_barrier")
            if LP: k("!buffer_load_dwordx4 v[12:15], v8, s[4:7], s24 offen sc1")
            k("s_barrier")
            k.stamp(4)
            if LP: k("!s_waitcnt vmcnt(0)\n!v_and_b32 v12, v12, v13\n!v_and_b32 v14, v14, v15\n!v_and_b32 v12, v12, v14\n!v_cmp_ne_u32 vcc, 1, v12\n!s_nop 1\n!s_cmp_eq_u64 vcc, 0\n!s_cbranch_scc1 F_ln_ok")
            spin(k, "F_ln", "buffer_load_dwordx4 v[12:15], v8, s[4:7], s24 offen sc1",
                 ["v_and_b32 v12, v12, v13", "v_and_b32 v14, v14, v15", "v_and_b32 v12, v12, v14", "v_cmp_ne_u32 vcc, 1, v12", "s_nop 1", "s_cmp_lg_u64 vcc, 0"])
            k.stamp(5)
            k("s_barrier\nF_send:")
            k.end()
    k("F_shuf:"); k.reset()
    if I0: k("s_lshl_b32 s20, s2, 4\ns_add_u32 s20, s20, s62\ns_cmp_eq_u32 s20, 11\ns_cbranch_scc1 F_init0\nF_shuf2:")
    k("s_load_dwordx4 s[40:43], s[0:1], 64\ns_load_dwordx2 s[44:45], s[0:1], 80")
    if not L3:
        k("s_getpc_b64 s[20:21]\nA_pc0:\ns_add_u32 s20, s20, kA_kernel-A_pc0\ns_addc_u32 s21, s21, -1")
        k("s_lshr_b32 s22, s2, 3\ns_lshl_b32 s22, s22, 1\ns_add_u32 s22, s22, s62\ns_sub_u32 s22, s22, 10\ns_lshl_b32 s22, s22, 12\nv_lshlrev_b32 v3, 6, v2\nv_add_u32 v4, s22, v3")
        k("v_min_u32 v4, code_end-kA_kernel, v4\nglobal_load_dword v20, v4, s[20:21]")
    NB = 0
    if UR:
        mksrd(k, 8, 0, 2621440); mksrd(k, 16, 96, 256)
        k("s_cmp_ge_u32 s2, 240\ns_cbranch_scc1 F_nox\ns_sub_u32 s28, s62, 10")
        if opt.get("hprio"): k(f"s_setprio {opt['hprio']}")
        if XS_: k(f"s_lshl_b32 s14, s28, 2\ns_add_u32 s14, s14, {MBX}\nv_mov_b32 v27, s14\nv_mov_b32 v28, 0\nds_write_b32 v27, v28")
        h_setup("s28")
        k("s_waitcnt lgkmcnt(0)" + ("\ns_waitcnt vmcnt(0)" if opt.get("xw", 0) >= 0 else ""))
        go2 = lambda: spin(k, "F_go2", "buffer_load_dword v60, off, s[16:19], 0 sc1", ["v_readfirstlane_b32 s66, v60", "s_cmp_lg_u32 s66, 1"])
        if XS_:
            k("s_mov_b32 s67, 0\nF_mb:\n!ds_read_b32 v28, v27\n!s_add_u32 s67, s67, 1\n!s_waitcnt lgkmcnt(0)\n!v_readfirstlane_b32 s66, v28\n!s_cmp_eq_u32 s66, 1\n!s_cbranch_scc1 F_go2_ok\n!s_cmp_lt_u32 s67, 256\n!s_cbranch_scc1 F_mb")
            go2()
        k.stamp(5)
        h_gather("F_hs")
        if not XS_: go2()
        NB = h_proc("F_hs")
        if NB: k("s_branch F_nox2\nF_nox:\ns_barrier\ns_barrier\nF_nox2:\n!s_waitcnt lgkmcnt(0)")
        else: k("F_nox:\n!s_waitcnt lgkmcnt(0)")
    elif XR and not L3:
        mksrd(k, 8, 0, 2621440)
        k("s_cmp_ge_u32 s2, 240\ns_cbranch_scc1 F_nox")
        k("s_lshl_b32 s12, s61, 9\ns_add_u32 s12, s12, 512\ns_cmp_eq_u32 s61, 0\ns_cselect_b32 s12, 0, s12\ns_sub_u32 s13, s62, 10\ns_lshl_b32 s14, s13, 6\ns_add_u32 s12, s12, s14\ns_mul_i32 s12, s12, 1280\ns_lshl_b32 s14, s60, 4\ns_add_u32 s12, s12, s14")
        k(f"s_lshl_b32 s13, s13, 10\ns_add_u32 s13, s13, {XRB}\nv_mul_u32_u24 v21, 1280, v2\ns_waitcnt lgkmcnt(0)")
        if opt.get("xw", 0) >= 0: k("s_waitcnt vmcnt(0)")
        for j in range(8):
            if j == 4: k("s_cmp_lg_u32 s61, 0\ns_cbranch_scc1 F_nox")
            k(f"s_add_u32 m0, s13, {2048*j}\ns_add_u32 s14, s12, {128*1280*j}\n!buffer_load_dwordx4 v21, s[8:11], s14 offen lds")
        k("F_nox:\n!s_waitcnt lgkmcnt(0)")
    LD = 64; FR = 16
    k(f"v_lshrrev_b32 v4, 3, v2\nv_and_b32 v5, 7, v2\ns_sub_u32 s20, s62, 10\ns_mul_i32 s20, s20, 20480\ns_add_u32 s20, s20, {SB}")
    k("s_mov_b32 s26, 1966080\ns_mov_b32 s27, 0x00020000\ns_mov_b32 s34, 1966080\ns_mov_b32 s35, 0x00020000")
    SW = opt.get("shw", 4); SP = opt.get("shp", 5)
    k(f"s_cmp_eq_u32 s2, 255\ns_cbranch_scc1 {'F_ez' if I1 else 'F_send2'}\ns_cmp_eq_u32 s62, 11\ns_cbranch_scc1 F_wd\ns_cmp_lt_u32 s2, 63\ns_cbranch_scc1 F_send2")
    k("s_sub_u32 s21, s2, 63\ns_and_b32 s22, s21, 7\ns_lshr_b32 s21, s21, 3\ns_mul_i32 s23, s22, 5")
    k("s_mov_b32 s24, s40\ns_mov_b32 s25, s41\ns_mov_b32 s32, s42\ns_mov_b32 s33, s43")
    k("v_and_b32 v10, 2, v4\nv_xor_b32 v10, v10, v5\nv_mul_u32_u24 v11, 3072, v4\nv_lshl_add_u32 v10, v10, 4, v11\nv_xor_b32 v11, 64, v10")
    k(f"s_mul_i32 s36, s23, {16*3072}\ns_lshl_b32 s37, s21, 7\ns_add_u32 s36, s36, s37")
    k("v_bfe_u32 v3, v2, 4, 1\nv_lshrrev_b32 v6, 5, v2\nv_bfe_u32 v7, v2, 2, 2\nv_and_b32 v8, 3, v2")
    k("v_mul_u32_u24 v48, 2112, v3\nv_lshl_add_u32 v48, v6, 10, v48\nv_lshl_add_u32 v48, v7, 7, v48\nv_lshl_add_u32 v48, v8, 3, v48\nv_and_b32 v7, 2, v7\nv_lshl_add_u32 v48, v7, 4, v48\nv_add_u32 v48, s20, v48")
    for w in range(1, 4): k(f"v_xor_b32 v{48+w}, {32*w}, v48")
    for w in range(4): k(f"v_mov_b32 v{52+w}, 0")
    if UR: k("!s_waitcnt vmcnt(0)" + "\ns_barrier" * (SW - NB))
    elif XR: k("s_barrier\ns_barrier\n!s_waitcnt vmcnt(0)" + "\ns_barrier" * (SW - 2))
    elif SW >= 0: k("s_waitcnt vmcnt(0)" + "\ns_barrier" * SW)
    k.stamp(1)
    for t in range(5):
        for h in range(2):
            if t or h: k(f"s_add_u32 s36, s36, {8*3072}")
            for g in range(2): k(f"s_add_u32 m0, s20, {4096*t+2048*g+1024*h}\nbuffer_load_dwordx4 v{10+g}, s[{24+8*g}:{27+8*g}], s36 offen{NT('w')} lds")
        k.tag(f"w{t}")
    k(f"s_mul_i32 s47, s21, {4*41984}\ns_lshl_b32 s36, s23, 10\ns_add_u32 s47, s47, {LY.W1P}\ns_add_u32 s36, s36, s47\ns_add_u32 s37, s36, 41984\ns_add_u32 s38, s37, 41984\ns_add_u32 s39, s38, 41984\nv_add_u32 v12, 4096, v9")
    k("s_barrier\n" * (SP - max(SW, 0)) + f"s_setprio {opt.get('sprio', 3)}")
    k.stamp(2)
    def rd(t):
        k.waitvm(f"w{t}")
        for w in range(4):
            for e in range(2): k(f"ds_read_b64_tr_b16 {vr(LD+16*t+4*w+2*e,2)}, v{48+w} offset:{4096*t+512*e}")
    rd(0)
    for t in range(5):
        if t < 4: rd(t + 1)
        for w in range(4): k(f"buffer_store_dwordx4 {vr(LD+16*t+4*w,4)}, v{9 if t < 4 else 12}, s[4:7], s{36+w} offen offset:{1024*(t%4)} sc1")
    for t in range(5):
        for q in range(4):
            for w in range(4): k(f"v_dot2c_f32_bf16 v{52+w}, s30, v{LD+16*t+4*w+q}")
    k("v_and_b32 v4, 31, v2\nv_lshlrev_b32 v4, 4, v4\nv_mul_u32_u24 v5, 41984, v6\nv_add_u32 v4, v4, v5")
    k(f"s_lshr_b32 s36, s22, 2\ns_lshl_b32 s36, s36, 9\ns_and_b32 s37, s22, 3\ns_lshl_b32 s37, s37, 2\ns_add_u32 s36, s36, s37\ns_add_u32 s36, s36, s47\ns_add_u32 s36, s36, 40960\ns_add_u32 s37, s36, {2*41984}")
    for w in (0, 2):
        a = 52 + w
        k(f"v_permlane32_swap_b32 v{a}, v{a+1}\nv_add_f32 v{a}, v{a}, v{a+1}\nv_cvt_pk_bf16_f32 v{a+1}, v{a}, v{a}\nv_and_b32 v{a+1}, 0xffff0000, v{a+1}\nv_sub_f32 v{a}, v{a}, v{a+1}\nv_cvt_pk_bf16_f32 v{a}, v{a+1}, v{a}")
        k(f"buffer_store_dword v{a}, v4, s[4:7], s{36+w//2} offen")
    k("F_send2:\n!s_waitcnt vmcnt(0)")
    k.end()
    k("F_wd:"); k.reset()
    k("s_cmp_lt_u32 s2, 15\ns_cbranch_scc1 F_send2\ns_waitcnt lgkmcnt(0)")
    k(f"s_mov_b32 s24, s44\ns_mov_b32 s25, s45\ns_mov_b32 s39, {LY.WDP}")
    k("v_and_b32 v10, 2, v4\nv_lshlrev_b32 v10, 1, v10\nv_bfe_u32 v11, v4, 2, 1\nv_lshl_add_u32 v10, v11, 1, v10\nv_xor_b32 v10, v10, v5\nv_mul_u32_u24 v11, 1280, v4\nv_lshl_add_u32 v10, v10, 4, v11")
    k("s_sub_u32 s21, s2, 15\ns_mul_i32 s50, s21, 13108\ns_lshr_b32 s50, s50, 16\ns_mul_i32 s23, s50, 5\ns_sub_u32 s51, s21, s23\ns_lshl_b32 s51, s51, 1")
    k(f"s_mul_i32 s36, s50, {32*1280}\ns_lshl_b32 s37, s51, 7\ns_add_u32 s36, s36, s37")
    k("v_bfe_u32 v7, v2, 2, 2\nv_and_b32 v8, 3, v2\nv_lshrrev_b32 v6, 5, v2\nv_bfe_u32 v3, v2, 4, 1")
    k("v_lshlrev_b32 v48, 11, v6\nv_lshl_add_u32 v48, v3, 9, v48\nv_lshl_add_u32 v48, v7, 7, v48\nv_add_u32 v48, s20, v48")
    k("v_and_b32 v7, 2, v7\nv_lshlrev_b32 v7, 5, v7\nv_lshl_add_u32 v7, v3, 5, v7")
    if UR: k("!s_waitcnt vmcnt(0)" + "\ns_barrier" * (SW - NB))
    elif XR: k("s_barrier\ns_barrier\n!s_waitcnt vmcnt(0)" + "\ns_barrier" * (SW - 2))
    elif SW >= 0: k("s_waitcnt vmcnt(0)" + "\ns_barrier" * SW)
    k.stamp(1)
    for i in range(4):
        if i: k(f"s_add_u32 s36, s36, {8*1280}")
        for t in range(2): k(f"s_add_u32 m0, s20, {4096*t+1024*i-128*t}\nbuffer_load_dwordx4 v10, s[24:27], s36 offen offset:{128*t}{NT('w')} lds")
    for t in range(2):
        for vv in range(2):
            k(f"s_lshl_b32 s36, s51, 1\ns_add_u32 s36, s36, {2*t+vv}\ns_mul_i32 s37, s36, 52\ns_lshr_b32 s37, s37, 8\ns_mul_i32 s37, s37, 5\ns_sub_u32 s36, s36, s37\ns_cmp_eq_u32 s36, 2\ns_cselect_b32 s36, 3, 4\ns_cselect_b32 s37, 32, 8")
            a = 49 + 4 * t + 2 * vv
            k(f"v_lshlrev_b32 v{a}, s36, v8\nv_add_u32 v{a}, {64*vv}, v{a}\nv_add_u32 v{a+1}, s37, v{a}\nv_xor_b32 v{a}, v{a}, v7\nv_xor_b32 v{a+1}, v{a+1}, v7\nv_add_u32 v{a}, v{a}, v48\nv_add_u32 v{a+1}, v{a+1}, v48")
        for i in range(4):
            k(f"s_lshl_b32 s36, s51, 2\ns_add_u32 s36, s36, {4*t+i}\ns_mul_i32 s37, s36, 52\ns_lshr_b32 s37, s37, 8\ns_mul_i32 s38, s37, 5\ns_sub_u32 s36, s36, s38")
            k(f"s_and_b32 s38, s37, 1\ns_sub_u32 s36, s36, s38\ns_cselect_b32 s36, 4, s36\ns_mul_i32 s37, s37, 48\ns_add_u32 s37, s37, s50\ns_mul_i32 s37, s37, 5\ns_add_u32 s37, s37, s36\ns_lshl_b32 s37, s37, 10\ns_add_u32 s{52+4*t+i}, s37, s39")
    k("s_barrier\n" * (SP - max(SW, 0)) + f"s_setprio {opt.get('sprio', 3)}")
    k.stamp(2)
    k("s_waitcnt vmcnt(0)")
    for t in range(2):
        for i in range(4):
            for e2 in range(2): k(f"ds_read_b64_tr_b16 {vr(LD+16*t+4*i+2*e2,2)}, v{49+4*t+i} offset:{4096*t+1024*e2}")
    for i in range(8): k(f"buffer_store_dwordx4 {vr(LD+4*i,4)}, v9, s[4:7], s{52+i} offen sc1")
    k.end()
    k("F_end:\ns_endpgm")
    data = [".p2align 7", "A_tab:"] + [f".long 0x{x:08x}" for x in LY.gather_table(0)]
    return dict(name="kA_kernel", code=k.finish(), data=data, grid=256, block=768, lds=LDSZ, vgpr=opt.get("nv", 168), agpr=0)
```

```python
from asmlib import K, vr
import layout as LY
import math
from gen_cd import fbits
from gen_ab import mksrd, LOG2E
BIG = 0x7000000

def kgen(k, opt, PBASE, early, mid):
    RS = 288; PB = 16 * RS; WB = 2 * PB
    k("s_load_dwordx8 s[8:15], s[0:1], 8\ns_load_dwordx4 s[16:19], s[0:1], 40")
    k(f"s_mul_i32 s20, s2, 384\nv_lshlrev_b32 v3, 1, v0\nv_add_u32 v3, s20, v3\ns_lshl_b32 s21, s2, 1\nv_mov_b32 v4, s21")
    k("s_getpc_b64 s[22:23]\nA_pc1:\ns_add_u32 s22, s22, A_tab-A_pc1\ns_addc_u32 s23, s23, 0\nv_lshlrev_b32 v5, 4, v0")
    k("s_waitcnt lgkmcnt(0)")
    nt = " nt" if opt.get("ntx", 0) else ""
    k(f"global_load_ushort v10, v4, s[16:17]\nglobal_load_ushort v6, v3, s[8:9]{nt}\nglobal_load_ushort v7, v3, s[10:11]{nt}\nglobal_load_ushort v8, v3, s[12:13]{nt}\nglobal_load_ushort v9, v3, s[14:15]{nt}\nglobal_load_ushort v11, v4, s[18:19]")
    k("global_load_dwordx4 v[12:15], v5, s[22:23]")
    early()
    k(f"s_mul_i32 s27, s26, {3*WB}\ns_add_u32 s27, s27, {PBASE}\ns_mul_i32 s24, s3, {WB}\ns_add_u32 s24, s24, s27\ns_mul_i32 s28, s26, 1600\ns_mul_i32 s29, s28, 0x10001")
    k(f"v_lshl_add_u32 v16, v2, 2, s24\nv_and_b32 v17, 15, v2\nv_mul_u32_u24 v17, {RS}, v17\nv_lshrrev_b32 v18, 4, v2\nv_lshl_add_u32 v17, v18, 4, v17\nv_add_u32 v17, s24, v17")
    k(f"v_mov_b32 v18, 0x3f80\nds_write_b32 v16, v18 offset:{PB}\nv_mov_b32 v18, 0\nv_mov_b32 v19, s28\nds_write_b32 v19, v18 offset:1536")
    k(f"s_mul_i32 s25, s2, 3072\ns_add_u32 s25, s25, {LY.KP}")
    k(f"v_lshlrev_b32 v10, 16, v10\nv_lshlrev_b32 v6, 16, v6\nv_mul_f32 v10, {fbits(LOG2E)}, v10\nv_mul_f32 v6, {fbits(LOG2E)}, v6\nv_exp_f32 v10, v10\nv_exp_f32 v6, v6")
    k("v_lshlrev_b32 v7, 16, v7\nv_cvt_pk_bf16_f32 v6, v6, v10\nv_and_b32 v10, 0xffff0000, v6\nv_lshlrev_b32 v6, 16, v6")
    k(f"v_mul_f32 v6, v6, v10\nv_mul_f32 v7, v7, v10\nv_mul_f32 v6, {fbits(-LOG2E)}, v6\nv_mul_f32 v7, 0.15915494, v7")
    k(f"v_mul_f32 v18, 0x43000000, v6\nv_mul_f32 v19, 0x43000000, v7\nv_fract_f32 v7, v7\nv_fract_f32 v19, v19")
    k.stamp(1)
    W = {n: 20 + 2 * i for i, n in enumerate((1, 2, 4, 8, 3, 5, 6, 7))}
    G = {m: 36 + 2 * (m - 1) for m in range(1, 8)}
    k(f"v_exp_f32 v6, v6\nv_exp_f32 v18, v18\nv_cos_f32 v{W[1]}, v7\nv_sin_f32 v{W[1]+1}, v7\nv_cos_f32 v{G[1]}, v19\nv_sin_f32 v{G[1]+1}, v19")
    k("v_lshlrev_b32 v8, 16, v8\nv_lshlrev_b32 v9, 16, v9\nv_add_f32 v10, v10, v10")
    k(f"v_pk_mul_f32 {vr(W[1],2)}, {vr(W[1],2)}, v[6:7] op_sel_hi:[1,0]\nv_pk_mul_f32 {vr(G[1],2)}, {vr(G[1],2)}, v[18:19] op_sel_hi:[1,0]")
    k("v_pk_mul_f32 v[8:9], v[8:9], v[10:11] op_sel_hi:[1,0]")
    tmp = [50, 52, 54, 56]; ti = [0]; cv = [58, 59, 60, 61]; ci = [0]; chain = [0]
    def cm(d, x, y):
        t = tmp[2 * chain[0] + ti[0] % 2]; ti[0] += 1
        return [f"v_pk_mul_f32 {vr(t,2)}, {vr(x,2)}, {vr(y,2)} op_sel:[0,0] op_sel_hi:[0,1]",
                f"v_pk_fma_f32 {vr(d,2)}, {vr(x,2)}, {vr(y,2)}, {vr(t,2)} op_sel:[1,1,0] op_sel_hi:[1,0,1] neg_lo:[0,1,0]"]
    def wr(x, buf, row, neg=False):
        c = cv[2 * chain[0] + ci[0] % 2]; ci[0] += 1
        return [f"v_cvt_pk_bf16_f32 v{c}, v{x}, {'-' if neg else ''}v{x+1}", f"ds_write_b32 v16, v{c} offset:{buf*PB+row*RS}"]
    def zipl(*ls):
        for i in range(max(len(l) for l in ls)):
            for l in ls:
                if i < len(l): k(l[i])
    GA, GB, VA, VB = 62, 64, 66, 68
    gl = wr(G[1], 1, 1); prev = G[1]
    for m in range(2, 17):
        d = G.get(m, GA if m & 1 else GB)
        gl += cm(d, prev, G[1]); prev = d
        if m < 16: gl += wr(d, 1, m)
    G16 = prev
    chain[0] = 1
    vl = cm(W[2], W[1], W[1]) + cm(W[4], W[2], W[2]) + cm(W[8], W[4], W[4]) + wr(8, 0, 0, True); prev = 8
    for b in range(1, 16):
        d = VA if b & 1 else VB
        vl += cm(d, prev, W[8]) + wr(d, 0, b, True); prev = d
    zipl(vl, gl)
    VF = 72; UF = 88; D = [104, 108, 112]
    for s in range(4): k(f"ds_read_b128 {vr(VF+4*s,4)}, v17 offset:{64*s}\nds_read_b128 {vr(UF+4*s,4)}, v17 offset:{PB+64*s}")
    a = wr(G16, 0, 0) + wr(W[4], 0, 1) + wr(W[2], 0, 9) + cm(W[6], W[2], W[4]) + wr(W[6], 0, 13)
    chain[0] = 0
    b = cm(W[3], W[1], W[2]) + cm(W[5], W[1], W[4]) + cm(W[7], W[3], W[4])
    zipl(a, b)
    def mm(t, uf):
        for s in range(4): k(f"v_mfma_f32_16x16x32_bf16 {vr(D[t],4)}, {vr(uf+4*s,4)}, {vr(VF+4*s,4)}, {'0' if s==0 else vr(D[t],4)}")
    mm(0, UF)
    jobs = [(W[4], m, 0, 1 + m) for m in range(1, 8)] + [(W[2], m, 0, 9 + m) for m in range(1, 4)] + [(W[6], m, 0, 13 + m) for m in range(1, 3)]
    def run(jobs):
        for i in range(0, len(jobs), 2):
            ls = []
            for j, (w, m, buf, row) in enumerate(jobs[i:i+2]):
                d = (GA, VA)[j]; chain[0] = j
                ls.append(cm(d, w, G[m]) + wr(d, buf, row))
            zipl(*ls)
    run(jobs)
    for s in range(4): k(f"ds_read_b128 {vr(UF+4*s,4)}, v17 offset:{64*s}")
    chain[0] = 0; a = wr(W[1], 1, 1) + wr(W[5], 1, 3)
    chain[0] = 1; b = wr(W[3], 1, 2) + wr(W[7], 1, 4)
    zipl(a, b)
    run([(W[6], 3, 1, 0)] + [(W[o], 1, 1, 5 + i) for i, o in enumerate((1, 3, 5, 7))])
    for s in range(4): k(f"ds_read_b128 {vr(32+4*s,4)}, v17 offset:{PB+64*s}")
    mm(1, UF)
    mm(2, 32)
    k("v_lshl_add_u32 v16, v2, 4, s24\nv_lshl_add_u32 v17, v0, 4, s27")
    for i in range(4): k(f"v_add_u32 v{12+i}, s29, v{12+i}")
    for t in range(3): k(f"ds_write_b128 v16, {vr(D[t],4)} offset:{1024*t}")
    for i in range(4): k(f"v_and_b32 v{20+2*i}, 0xffff, v{12+i}\nv_lshrrev_b32 v{21+2*i}, 16, v{12+i}")
    k("v_lshlrev_b32 v11, 16, v11\nv_cmp_eq_u32 vcc, 0, v0\nv_lshl_add_u32 v18, v0, 3, s28\nv_cndmask_b32 v11, 0, v11, vcc")
    k.stamp(2)
    k("s_waitcnt lgkmcnt(0)\ns_barrier")
    for w in range(3): k(f"ds_read_b128 {vr(72+4*w,4)}, v17 offset:{w*WB}")
    k("v_add_f32 v72, v72, v11")
    k("v_pk_add_f32 v[72:73], v[72:73], v[76:77]\nv_pk_add_f32 v[74:75], v[74:75], v[78:79]\nv_pk_add_f32 v[72:73], v[72:73], v[80:81]\nv_pk_add_f32 v[74:75], v[74:75], v[82:83]")
    k(f"v_cvt_pk_bf16_f32 v72, v72, v73\nv_cvt_pk_bf16_f32 v73, v74, v75\nds_write_b64 v18, v[72:73]")
    k("s_waitcnt lgkmcnt(0)\ns_barrier")
    for i in range(8): k(f"ds_read_u16 v{28+i}, v{20+i}")
    for i in range(4): k(f"v_lshl_or_b32 v{12+i}, v{29+2*i}, 16, v{28+2*i}")
    k("buffer_store_dwordx4 v[12:15], v5, s[4:7], s25 offen sc1")
    mid()
    return PBASE + 9 * WB

def spin(k, nm, load, test):
    k(f"s_mov_b32 s67, 0\n{nm}:\n!{load}\n!s_add_u32 s67, s67, 1\n!s_waitcnt vmcnt(0)")
    k(f"!s_cmp_gt_u32 s67, 0xffff\n!s_cbranch_scc1 {nm}_ok")
    for t in test: k("!" + t)
    k(f"!s_cbranch_scc1 {nm}\n{nm}_ok:")
    k.reset()

def kF(opt):
    k = K()
    NT = lambda n: " nt" if opt.get("nt" + n, 0) else ""
    LNF = LY.FLG + 8192; KF = LY.FLG + 16384
    UB = 0; KB = 36864; XB = 61440; SH = XB + 16384; RS = 2112
    LNB = 4864 + 9 * 9216; XS = 10752; SB = LNB + 2 * XS
    XR = opt.get("xr", 0); XRB = SB + 28672; LDSZ = SB + 28672 + (16384 if XR else 0)
    LDSZ0 = LDSZ
    UD = opt.get("ud", 0)
    if UD: UB = LNB + XS; SB = 5120
    UR = opt.get("ur", 0); XS_ = opt.get("xs", 1)
    if UR: XR = 1; UB = LNB; XRB = UB + 36864; MBX = XRB + 32768; LDSZ = MBX + 64; SB = 5120; SH = 61440
    k("s_cmp_ge_u32 s2, 256\ns_cbranch_scc1 F_end")
    if opt.get("rot1"): k("s_add_u32 s2, s2, 255\ns_and_b32 s2, s2, 255")
    if opt.get("st"): k("s_lshl_b32 s2, s2, 1")
    k.st_init(opt.get("st"), 0)
    if opt.get("st"): k("s_lshr_b32 s2, s2, 1")
    mksrd(k, 4, 104, LY.WS_END)
    k("v_lshrrev_b32 v1, 6, v0\nv_and_b32 v2, 63, v0\nv_readfirstlane_b32 s62, v1")
    k("s_lshr_b32 s60, s2, 3\ns_mul_i32 s61, s60, 26\ns_lshr_b32 s61, s61, 8\ns_mul_i32 s14, s61, 10\ns_sub_u32 s60, s60, s14\ns_and_b32 s14, s2, 7\ns_mul_i32 s14, s14, 10\ns_add_u32 s60, s60, s14")
    k("s_cmp_ge_u32 s62, 9\ns_cbranch_scc1 F_side\ns_cmp_ge_u32 s2, 240\ns_cbranch_scc1 F_init")
    k("s_mul_i32 s26, s62, 86\ns_lshr_b32 s26, s26, 8\ns_mul_i32 s3, s26, 3\ns_sub_u32 s3, s62, s3\ns_mul_i32 s14, s61, 3\ns_add_u32 s14, s14, s26\ns_cmp_eq_u32 s14, 8\ns_cbranch_scc1 F_idle")
    k("s_lshl_b32 s2, s60, 3\ns_add_u32 s2, s2, s14\ns_lshl_b32 s14, s3, 6\nv_add_u32 v0, s14, v2")
    AU = 120; XA = 130; HV = 131; UV = 156; L16 = 157; UW = 158; KW = 159; XW = 160; ZA = 161; UL = 88
    MK = {n: 132 + 4 * i for i, n in enumerate("abcoes")}; MK["d"] = MK["b"]
    def early(skip8=False):
        k("v_mov_b32 v21, s62\nv_lshl_add_u32 v20, v21, 6, v2")
        k(f"v_lshrrev_b32 v24, 3, v2\nv_and_b32 v25, 7, v2\nv_lshrrev_b32 v26, 4, v2\nv_and_b32 v27, 1, v21\nv_lshl_add_u32 v27, v27, 2, v26\nv_xor_b32 v27, v25, v27\nv_mul_u32_u24 v24, 10240, v24\nv_lshl_add_u32 v{UV}, v27, 4, v24")
        k(f"s_lshl_b32 s32, s60, 7\ns_add_u32 s64, s32, {KF}\ns_mul_i32 s56, s62, 81920\ns_add_u32 s32, s32, s56\ns_lshl_b32 s56, s62, 10")
        k(f"v_lshlrev_b32 v{L16}, 4, v2\nv_add_u32 v{UW}, s56, v{L16}\nv_add_u32 v{XW}, {XB}, v{UW}\nv_lshlrev_b32 v{ZA}, 3, v20")
        k(f"s_lshl_b32 s52, s60, 3\ns_add_u32 s52, s52, s62\ns_mul_i32 s52, s52, 3072\ns_add_u32 s52, s52, {LY.KP}\ns_mul_i32 s53, s62, 3072\ns_add_u32 s53, s53, {KB}\nv_add_u32 v{KW}, s53, v{L16}")
        k("s_lshl_b32 s65, s61, 2\ns_add_u32 s65, s65, s64\ns_lshl_b32 s56, s26, 2\ns_add_u32 s64, s64, s56")
        for d, c in ((40, "s_cmp_ge_u32 s61, 1"), (44, "s_cmp_eq_u32 s61, 2"), (48, "s_cmp_eq_u32 s61, 0")):
            k(f"s_mov_b32 s{d}, s4\ns_mov_b32 s{d+1}, s5\n{c}\ns_cselect_b32 s{d+2}, s6, 0\ns_mov_b32 s{d+3}, s7")
        k("s_lshl_b32 s57, s61, 9\ns_add_u32 s57, s57, 512\ns_cmp_eq_u32 s61, 0\ns_cselect_b32 s57, 0, s57")
        k(f"s_mul_i32 s36, s57, 1280\ns_add_u32 s36, s36, s32\ns_add_u32 s36, s36, {LY.XT}\ns_add_u32 s37, s36, {8*81920}")
        k(f"s_add_u32 s33, s32, {8*81920}\ns_add_u32 s34, s32, {16*81920}\ns_add_u32 s35, s32, {24*81920}")
        k(f"v_add_u32 v22, s57, v20\nv_lshlrev_b32 v{HV}, 4, v22")
        k(f"s_lshl_b32 s54, s60, 15\ns_add_u32 s54, s54, {LY.H}\ns_add_u32 s55, s54, 8192")
        if opt.get("fb"): k(f"v_mov_b32 v162, {LDSZ0}\nv_mov_b32 v163, 1")
        if skip8: k("s_cmp_eq_u32 s62, 8\ns_cbranch_scc1 F_e8")
        k("v_and_b32 v23, 15, v2\nv_lshl_add_u32 v22, v23, 1, v26")
        for m in range(5):
            off = 32 - 2 + 4 * m if m < 4 else 32 - 3
            k(f"v_add_u32 v25, {off}, v22\nv_bfe_u32 v24, v25, 1, 3\nv_xor_b32 v24, v24, v21\nv_lshlrev_b32 v25, 7, v25\nv_lshl_add_u32 v{AU+m}, v24, 4, v25")
            if UR or UD: k(f"v_add_u32 v{AU+m}, {UB}, v{AU+m}")
        if UR or UD: k(f"v_mov_b32 v28, 0\nv_mov_b32 v29, 0\nv_add_u32 v{ZA}, {UB}, v{ZA}\nds_write_b64 v{ZA}, v[28:29]")
        k(f"v_sub_u32 v25, 15, v23\nv_lshrrev_b32 v25, 1, v25\nv_lshl_add_u32 v25, v26, 2, v25\nv_and_b32 v24, 1, v23\nv_xor_b32 v24, 1, v24\nv_mul_u32_u24 v24, 464, v24\nv_add_u32 v25, v25, v24\nv_lshl_add_u32 v{AU+5}, v25, 2, s53\nv_add_u32 v{AU+6}, 512, v{AU+5}")
        k(f"v_sub_u32 v25, 295, v23\nv_lshl_add_u32 v25, v26, 2, v25\nv_lshl_add_u32 v{AU+7}, v25, 2, s53")
        k(f"s_mul_i32 s56, s62, {RS}\ns_add_u32 s56, s56, {SH}\nv_lshlrev_b32 v25, 5, v23\nv_lshl_add_u32 v25, v26, 3, v25\nv_add_u32 v{AU+8}, s56, v25")
        k(f"v_bfe_u32 v25, v2, 2, 2\nv_mul_u32_u24 v25, {RS}, v25\nv_and_b32 v24, 3, v2\nv_lshl_add_u32 v25, v24, 3, v25\nv_lshrrev_b32 v24, 4, v20\nv_lshl_add_u32 v25, v24, 5, v25\nv_add_u32 v{AU+9}, {SH}, v25")
        F = 40
        k("v_lshlrev_b32 v25, 3, v26\nv_sub_u32 v25, v23, v25\nv_add_u32 v24, 15, v25\nv_add_u32 v25, 16, v25\nv_and_b32 v25, 0xffff, v25\nv_lshl_or_b32 v25, v24, 16, v25\ns_mov_b32 s39, 0x3f803f80")
        for c in range(3, 21): k(f"v_pk_sub_i16 v{F+c-3}, v25, {c} op_sel_hi:[1,0]")
        for c in range(3, 21): k(f"v_pk_ashrrev_i16 v{F+c-3}, 15, v{F+c-3} op_sel_hi:[0,1]")
        win = dict(a=(3, 6), b=(6, 11), c=(11, 14), o=(5, 12), e=(4, 13))
        for n in "abcoe":
            lo, hi = win[n]
            for p in range(4): k(f"v_bitop3_b32 v{MK[n]+p}, v{F+lo+2*p-3}, v{F+hi+2*p-3}, s39 bitop3:0x28")
        for p in range(4): k(f"v_xor_b32 v{MK['s']+p}, v{F+2*p}, v{F+2+2*p}")
        if UR: k(f"v_add_u32 v{XA}, {XRB}, v{HV}")
        elif XR: k(f"v_lshlrev_b32 v{XA}, 4, v20\nv_add_u32 v{XA}, {XRB}, v{XA}")
        else: k(f"v_lshrrev_b32 v25, 1, v26\nv_lshl_add_u32 v25, v23, 1, v25\nv_lshlrev_b32 v25, 7, v25\nv_and_b32 v24, 7, v23\nv_xor_b32 v24, v24, v21\nv_lshl_add_u32 v25, v24, 4, v25\nv_and_b32 v24, 1, v26\nv_lshl_add_u32 v25, v24, 3, v25\nv_add_u32 v{XA}, {XB}, v25")
    def early8():
        early(True); k("F_e8:")
        if opt.get("l3"): k("s_barrier")
    def uxl():
        for i, (srd, so) in enumerate(((4, 32), (4, 33), (40, 34), (44, 35)) if XR else ((4, 32), (4, 33), (4, 36), (40, 34), (44, 35), (48, 37))):
            k(f"!buffer_load_dwordx4 {vr(UL+4*i,4)}, v{UV}, s[{srd}:{srd+3}], s{so} offen sc1")
    def mid():
        k("s_cmp_eq_u32 s62, 8\ns_cbranch_scc1 F_m8\nF_b:")
    assert kgen(k, opt, 4864, early8, mid) == LNB
    k("v_mov_b32 v4, 1\nv_mov_b32 v6, 0\nv_mov_b32 v7, 0\ns_mov_b32 s63, 0")
    KS = opt.get("ks", 0)
    k("s_barrier" if KS and not opt.get("yw") else "s_waitcnt vmcnt(0)\ns_barrier")
    if not KS: k("s_cmp_lg_u32 s62, 0\ns_cbranch_scc1 F_nf\n!s_mov_b64 exec, 1\n!buffer_store_dword v4, off, s[4:7], s65 sc1\n!s_mov_b64 exec, -1\nF_nf:")
    k.stamp(3)
    KL = 76
    kld = "\n".join(f"!buffer_load_dwordx4 {vr(KL+4*j,4)}, v{L16}, s[4:7], s52 offen offset:{1024*j} sc1" for j in range(3))
    def kchk(nm):
        k(f"s_mov_b32 s67, 0\n{nm}:\n!s_waitcnt vmcnt(0)\n!v_max3_u32 v5, v{KL}, v{KL+1}, v{KL+2}\n!v_max3_u32 v4, v{KL+3}, v{KL+4}, v{KL+5}\n!v_max3_u32 v5, v5, v{KL+6}, v{KL+7}\n!v_max3_u32 v4, v4, v{KL+8}, v{KL+9}\n!v_max3_u32 v5, v5, v{KL+10}, v{KL+11}\n!v_max_u32 v5, v5, v4")
        k(f"!v_cmp_eq_u32 vcc, -1, v5\n!s_add_u32 s67, s67, 1\n!s_nop 0\n!s_cmp_eq_u64 vcc, 0\n!s_cbranch_scc1 {nm}_ok\n!s_cmp_gt_u32 s67, 0x3fff\n!s_cbranch_scc1 {nm}_ok\n{kld}\n!s_branch {nm}\n{nm}_ok:")
    if UD:
        assert KS == 2 and opt.get("zb") and opt.get("l3")
        k(kld)
        if opt.get("zb") == 2: k("s_barrier")
    elif KS:
        uxl()
        k(f"ds_write_b64 v{ZA}, v[6:7]")
        KQ = opt.get("kq", 0)
        for i in range(4):
            if i == KQ: k(kld)
            k(f"!s_waitcnt vmcnt({3-i+3*(i>=KQ)})\nds_write_b128 v{UW}, {vr(UL+4*i,4)} offset:{4096+8192*i}")
        if KQ == 4: k(kld)
        if KS == 1:
            kchk("F_kc")
            k("s_waitcnt lgkmcnt(0)")
            for j in range(3): k(f"ds_write_b128 v{KW}, {vr(KL+4*j,4)} offset:{1024*j}")
            k("s_barrier")
        else: k("s_waitcnt lgkmcnt(0)\ns_barrier")
        k.stamp(4); k("s_waitcnt lgkmcnt(0)" if k.on else "")
    elif not UR:
        uxl()
        k(f"ds_write_b64 v{ZA}, v[6:7]")
        P1 = opt.get("kp1", 1)
        UXW = ((UW, 4096), (UW, 12288), (XW, 0), (UW, 20480), (UW, 28672), (XW, 8192))
        if XR: UXW = [x for x in UXW if x[0] == UW]
        for i, (a, o) in enumerate(UXW):
            if i == P1: k("!buffer_load_dword v5, off, s[4:7], s64 sc1")
            k(f"!s_waitcnt vmcnt({len(UXW)-1-i+(i>=P1)})\nds_write_b128 v{a}, {vr(UL+4*i,4)} offset:{o}")
        k("!s_waitcnt vmcnt(0)\nv_readfirstlane_b32 s66, v5\ns_cmp_lg_u32 s66, 1\ns_cbranch_scc1 F_k0")
        for j in range(3): k(f"!buffer_load_dwordx4 {vr(KL+4*j,4)}, v{L16}, s[4:7], s52 offen offset:{1024*j} sc1")
        k("s_mov_b32 s63, 1\nF_k0:\ns_waitcnt lgkmcnt(0)\ns_barrier")
        k.stamp(4); k("s_waitcnt lgkmcnt(0)" if k.on else "")
    if opt.get("cp") == 1: k("s_setprio 1")
    if opt.get("cp") == 2: k("s_setprio 1\ns_cmp_lt_u32 s62, 4\ns_cbranch_scc1 F_cp\ns_setprio 2\nF_cp:")
    k("F_dry:")
    k("s_cmp_eq_u32 s61, 1\ns_cbranch_scc1 B_t1\ns_cmp_eq_u32 s61, 2\ns_cbranch_scc1 B_t2")
    for third, tiles in enumerate(([0, 1, 2, 3], [4, 5], [6, 7])):
        k(f"B_t{third}:"); k.reset()
        ACC = {T: 8 + 4 * i for i, T in enumerate(tiles)}
        pool = [r for r in range(8 + 4 * len(tiles), 120, 4) if not KL <= r < KL + 12] + [164]
        def ld(v, r):
            if v[0] == "B":
                b = v[1]; return [f"ds_read_b128 {vr(r,4)}, v{AU+b%4} offset:{(b//4)*2048}"] if b >= 0 else [f"ds_read_b128 {vr(r,4)}, v{NEG+b%4} offset:{(b//4+2)*2048 if b%4 else 0}"]
            if v[0] == "B24": return [f"ds_read_b128 {vr(r,4)}, v{AU+4} offset:{v[1]*4096}"]
            if v[0] == "A":
                o = 16 * (16 - v[1]); a = AU + 5
                if o >= 128: o -= 128; a = AU + 6
            else:
                o = {"oe": 112, "ab": 128, "cd": 176}[v[0]] - 16 * v[1]; a = AU + 7
            return [f"ds_read2_b32 {vr(r,2)}, v{a} offset0:{o} offset1:{o+1}", f"ds_read2_b32 {vr(r+2,2)}, v{a} offset0:{o+2} offset1:{o+3}"]
        if third == 0:
            NEG = pool.pop()
            for m in range(4): k(f"v_subrev_u32 v{NEG+m}, {4096 if m else 2048}, v{AU+m}")
        full = []
        for q in range(17):
            for T in reversed(tiles):
                if 8 * T - q >= -7: full.append(("M", T, ("A", q), ("B", 8 * T - q)))
        if third == 0: full.sort(key=lambda o: -o[3][1])
        sops = []; tops = []
        for Tp in range(8):
            for pr, Ds in (("ab", (2, 3, 4)), ("cd", (2, 3, 4)), ("oe", (4, 5, 6, 7))):
                us = [T for T in tiles if T - Tp in Ds]
                if not us: continue
                sops.append((pr, Tp))
                for T in us: tops.append(("M", T, ("P", pr, Tp), (pr, T - Tp)))
        spec = [("M", T, ("spec",), ("B", 8 * (T - 4))) for T in tiles if T >= 4]
        ops = []
        for i, (pr, Tp) in enumerate(sops):
            for n in pr: ops.append(("S", n, Tp, ("B24", Tp) if n in "de" else ("B", 8 * Tp, "s")))
            if i: ops.append(("cvt",) + sops[i - 1])
        ops.append(("K",)); ops.append(("cvt",) + sops[-1])
        ops.insert(min(opt.get(f"kt{third}", opt.get("kp", 2)), len(ops) - 2), ("poll",))
        ops += tops + spec + full
        KI = ops.index(("K",))
        def vals(o):
            if o[0] == "M": return [v for v in o[2:] if v[0] not in ("P", "spec")]
            if o[0] == "S": return [o[3]]
            return []
        last = {}
        for i, o in enumerate(ops):
            for v in vals(o): last[v] = i
            if o[0] == "M" and o[2][0] == "P": last[o[2]] = i
        reg = {}; LA = opt.get("bla", 5); mn = [99]
        def prefetch(i, cur):
            if i < len(ops) and (KS == 1 or not (cur < KI < i)):
                for v in vals(ops[i]):
                    if v not in reg:
                        reg[v] = pool.pop(0); mn[0] = min(mn[0], len(pool))
                        for s in ld(v, reg[v]): k(s)
        for i in range(LA): prefetch(i, 0)
        if not XR:
            for i, T in enumerate(tiles): k(f"ds_read_b64 {vr(ACC[T]+2,2)}, v{XA} offset:{4096*i}")
        seen = set() if XR else set(tiles)
        specdone = False
        for i, o in enumerate(ops):
            if o[0] == "poll" and KS:
                if KS == 2:
                    kchk(f"F_kc{third}")
                    if opt.get("zb") == 1: k("s_barrier")
                    if UD: k.stamp(4); k("s_waitcnt lgkmcnt(0)" if k.on else "")
            elif o[0] == "poll":
                k("s_waitcnt lgkmcnt(0)" if UR else f"s_waitcnt lgkmcnt(0)\ns_cmp_lg_u32 s63, 0\ns_cbranch_scc1 F_k1{third}")
                spin(k, f"F_pk{third}", "buffer_load_dword v5, off, s[4:7], s64 sc1", ["v_readfirstlane_b32 s66, v5", "s_cmp_lg_u32 s66, 1"])
                for j in range(3): k(f"!buffer_load_dwordx4 {vr(KL+4*j,4)}, v{L16}, s[4:7], s52 offen offset:{1024*j} sc1")
                k(f"F_k1{third}:")
                if UR: k("s_barrier"); k.stamp(4); k("s_waitcnt lgkmcnt(0)" if k.on else "")
                elif opt.get("zb"): k("s_barrier")
            elif o[0] == "K":
                for T in ([] if XR else tiles):
                    a = ACC[T]
                    k(f"v_lshlrev_b32 v{a}, 16, v{a+2}\nv_and_b32 v{a+1}, 0xffff0000, v{a+2}\nv_lshlrev_b32 v{a+2}, 16, v{a+3}\nv_and_b32 v{a+3}, 0xffff0000, v{a+3}")
                for j in range(0 if KS == 1 else 3): k(f"s_waitcnt vmcnt({2-j})\nds_write_b128 v{KW}, {vr(KL+4*j,4)} offset:{1024*j}")
                k.stamp(5); k("s_waitcnt lgkmcnt(0)" if k.on else "")
                pool += [KL, KL + 4, KL + 8]
                if third: k(f"v_mov_b32 v4, s53\nds_read_b32 v4, v4 offset:{456*4}")
                for j in range(1, LA): prefetch(i + j, i)
            elif o[0] == "S":
                r = pool.pop(0); reg[("S", o[1], o[2])] = r; mn[0] = min(mn[0], len(pool))
                k(f"v_mfma_f32_16x16x32_bf16 {vr(r,4)}, {vr(reg[o[3]],4)}, {vr(MK[o[1]],4)}, 0")
            elif o[0] == "cvt":
                r0 = reg.pop(("S", o[1][0], o[2])); r1 = reg.pop(("S", o[1][1], o[2]))
                for p in range(4): k(f"v_cvt_pk_bf16_f32 v{r0+p}, v{r0+p}, v{r1+p}")
                reg[("P", o[1], o[2])] = r0; pool.append(r1)
            else:
                T = o[1]
                if o[2][0] == "spec":
                    if not specdone:
                        for p in range(4): k(f"v_and_b32 v{MK['s']+p}, v{MK['s']+p}, v4")
                        specdone = True
                    a = MK["s"]
                else: a = reg[o[2]]
                k(f"v_mfma_f32_16x16x32_bf16 {vr(ACC[T],4)}, {vr(a,4)}, {vr(reg[o[3]],4)}, {vr(ACC[T],4) if T in seen else 0}")
                seen.add(T)
            if XR and i == len(ops) - opt.get("xl", 6):
                XQ = [pool.pop(0) for _ in range(1 if opt.get("g2") else len(tiles) // 2)]
                for rnd, r in enumerate(XQ): k(f"ds_read_b128 {vr(r,4)}, v{XA} offset:{8192*rnd}")
            for v in list(reg):
                if last.get(v) == i: pool.append(reg.pop(v))
            prefetch(i + LA, i)
        if XR:
            XF = 132
            k("s_mov_b32 s38, 0x3f80\ns_mov_b32 s39, 0x3f800000")
            for rnd, r in enumerate(XQ):
                for q in range(4): k(f"v_lshlrev_b32 v{XF+8*rnd+2*q}, 16, v{r+q}\nv_and_b32 v{XF+8*rnd+2*q+1}, 0xffff0000, v{r+q}")
        print("third", third, "ops", len(ops), "S", 2 * len(sops), "min pool", mn[0])
        for i, T in enumerate(tiles):
            a = ACC[T]
            k(f"v_cvt_pk_bf16_f32 v{a}, v{a}, v{a+1}\nv_cvt_pk_bf16_f32 v{a+1}, v{a+2}, v{a+3}\nds_write_b64 v{AU+8}, {vr(a,2)} offset:{512*i}")
        if opt.get("dry"): k("s_cbranch_execz F_end")
        nr = len(tiles) // 2
        if opt.get("fb"):
            assert opt.get("l3")
            if opt.get("cp"): k("s_setprio 0")
            k(f"s_mov_b64 exec, 1\n!ds_add_u32 v162, v163 offset:8\ns_mov_b64 exec, -1\ns_mov_b32 s67, 0\nF_fb{third}:\n!ds_read_b32 v4, v162 offset:8\n!s_add_u32 s67, s67, 1\n!s_waitcnt lgkmcnt(0)\n!v_readfirstlane_b32 s66, v4\n!s_cmp_ge_u32 s66, {9 if opt.get('g2') and third == 0 else 8}\n!s_cbranch_scc1 F_fb{third}_ok\n!s_cmp_lt_u32 s67, 0xfffff\n!s_cbranch_scc1 F_fb{third}\nF_fb{third}_ok:")
            k.reset()
        else: k("s_waitcnt lgkmcnt(0)\ns_barrier")
        for rnd in range(nr):
            k(f"ds_read_b64_tr_b16 {vr(80+4*rnd,2)}, v{AU+9} offset:{1024*rnd}\nds_read_b64_tr_b16 {vr(82+4*rnd,2)}, v{AU+9} offset:{1024*rnd+4*RS}")
        if opt.get("g2") and nr == 2: k(f"ds_read_b128 v[88:91], v{XA} offset:8192")
        for rnd in range(nr):
            if opt.get("g2") and rnd:
                for q in range(4): k(f"v_lshlrev_b32 v{XF+8+2*q}, 16, v{88+q}\nv_and_b32 v{XF+9+2*q}, 0xffff0000, v{88+q}")
            if XR:
                for q in range(4): k(f"v_dot2c_f32_bf16 v{XF+8*rnd+2*q}, s38, v{80+4*rnd+q}\nv_dot2c_f32_bf16 v{XF+8*rnd+2*q+1}, s39, v{80+4*rnd+q}")
                for q in range(4): k(f"v_cvt_pk_bf16_f32 v{80+4*rnd+q}, v{XF+8*rnd+2*q}, v{XF+8*rnd+2*q+1}")
            k(f"buffer_store_dwordx4 {vr(80+4*rnd,4)}, v{HV}, s[4:7], s{54+rnd} offen sc1")
        k.end()
    k("F_idle:"); k.reset()
    k("s_cmp_eq_u32 s62, 8\ns_cbranch_scc1 F_end\ns_waitcnt lgkmcnt(0)")
    early(); k("!s_waitcnt lgkmcnt(0)"); k("s_barrier\n" * (3 if opt.get("l3") else 2) + "s_branch F_b")
    k("F_m8:"); k.reset()
    k("s_barrier\ns_barrier" if KS else "s_waitcnt vmcnt(0)\ns_barrier")
    k("s_mov_b32 s63, 1\ns_mov_b64 exec, 0\ns_branch F_dry" if opt.get("dry") else "s_endpgm")
    k("F_init:"); k.reset()
    I0 = opt.get("i0", 0)
    k("s_endpgm\nF_init0:" if I0 else f"s_cmp_lg_u32 s2, 255\ns_cbranch_scc1 {'F_wd2' if opt.get('wd2') else 'F_end'}\ns_cmp_lg_u32 s62, 0\ns_cbranch_scc1 F_end")
    mksrd(k, 8, 96, 256)
    k(f"v_mov_b32 v8, 0\nv_mov_b32 v9, 0\nv_mov_b32 v10, 0\nv_mov_b32 v11, 0\nv_lshlrev_b32 v4, 4, v2\nv_lshlrev_b32 v5, 7, v2\ns_mov_b32 s12, {LY.FLG}\ns_mov_b32 s15, {LNF}\ns_mov_b32 s13, {KF}\ns_mov_b32 s14, {KF+2048}\nv_mov_b32 v6, 1\ns_waitcnt lgkmcnt(0)")
    if UR:
        k("v_add_u32 v7, 4096, v4\nbuffer_load_dword v12, off, s[8:11], 0 sc1")
        for j in range(8): k(f"buffer_store_dwordx4 v[8:11], v{4 if j < 4 else 7}, s[4:7], s15 offen offset:{1024*(j%4)} sc1")
    I1 = opt.get("i1", 0)
    if I1 == 2:
        k("v_add_u32 v7, 4096, v4")
        for j in range(8): k(f"buffer_store_dwordx4 v[8:11], v{4 if j < 4 else 7}, s[4:7], s15 offen offset:{1024*(j%4)} sc1")
    else: k("buffer_store_dwordx4 v[8:11], v5, s[4:7], s15 offen sc1")
    if not KS: k("buffer_store_dwordx4 v[8:11], v5, s[4:7], s13 offen sc1\nbuffer_store_dwordx4 v[8:11], v5, s[4:7], s14 offen sc1")
    k("s_waitcnt vmcnt(0)\ns_mov_b64 exec, 1\nbuffer_store_dword v6, off, s[8:11], 0 sc1\ns_mov_b64 exec, -1")
    if I1: k(f"s_endpgm\nF_ez:\nv_mov_b32 v8, 0\nv_mov_b32 v9, 0\nv_mov_b32 v10, 0\nv_mov_b32 v11, 0\nv_lshlrev_b32 v5, 7, v2\ns_mov_b32 s12, {LY.FLG}\ns_cmp_eq_u32 s62, 11\ns_cbranch_scc1 F_end")
    k("buffer_store_dwordx4 v[8:11], v5, s[4:7], s12 offen sc1\n" + ("s_nop 1\nv_lshlrev_b32 v9, 4, v2\ns_branch F_shuf2" if I0 else "s_endpgm"))
    GX = 64; GS = 40
    def h_setup(w):
        k(f"s_lshl_b32 s13, s61, 1\ns_add_u32 s13, s13, 4\ns_mul_i32 s12, {w}, {256*1280}\ns_lshl_b32 s14, s60, 4\ns_add_u32 s12, s12, s14\nv_mul_u32_u24 v21, 1280, v2\ns_sub_u32 s14, s13, 1")
        for j in range(3): k(f"s_add_u32 s15, {w}, {3*j}\ns_min_u32 s15, s15, s14\ns_lshl_b32 s15, s15, 10\ns_add_u32 s{48+j}, s15, {LNF}")
        k(f"s_sub_u32 s13, s13, {w}\ns_lshl_b32 s14, {w}, 12\ns_add_u32 s15, s14, {XRB}\ns_add_u32 s14, s14, {UB+4096}\nv_add_u32 v22, s15, v9\nv_add_u32 v23, s14, v9")
        k("v_lshrrev_b32 v26, 4, v2\nv_bfe_u32 v24, v2, 1, 1\nv_lshl_add_u32 v24, v26, 1, v24\nv_bfe_u32 v25, v2, 2, 2\nv_lshl_add_u32 v24, v24, 3, v25\nv_and_b32 v25, 1, v2\nv_lshl_add_u32 v24, v24, 1, v25\nv_lshl_add_u32 v24, v24, 3, s14")
        k("v_lshlrev_b32 v26, 4, v26\nv_xor_b32 v25, v26, v23\nv_xor_b32 v26, 64, v25")
    def h_gather(nm):
        for j in range(3):
            if j: k(f"s_cmp_le_u32 s13, {3*j}\ns_cbranch_scc1 {nm}_g")
            for q in range(4): k(f"s_add_u32 s14, s12, {(768*j+64*q)*1280}\n!buffer_load_dwordx4 {vr(GX+16*j+4*q,4)}, v21, s[8:11], s14 offen" + ["", " nt", " sc0", " sc1", " sc0 sc1"][opt.get("gm", 0)])
        k(f"{nm}_g:")
    def h_proc(nm):
        spin(k, nm + "_s", "\n!".join(f"buffer_load_dwordx4 {vr(GS+4*j,4)}, v9, s[4:7], s{48+j} offen sc1" for j in range(3)),
             [f"v_min3_u32 v28, v{GS}, v{GS+1}, v{GS+2}"] + [f"v_min3_u32 v28, v28, v{GS+i}, v{GS+i+1}" for i in range(3, 11, 2)] + [f"v_min_u32 v28, v28, v{GS+11}", "v_cmp_eq_u32 vcc, 0, v28", "s_nop 1", "s_cmp_lg_u64 vcc, 0"])
        k.stamp(3)
        HB = opt.get("hb", 0)
        for j in range(3):
            if j: k(f"s_cmp_le_u32 s13, {3*j}\ns_cbranch_scc1 {nm}_p")
            if HB: k(f"s_cmp_gt_u32 s13, {3*j+3}\ns_cbranch_scc1 {nm}_b{j}\ns_barrier\ns_barrier\n{nm}_b{j}:")
            for q in range(4): k(f"ds_write_b128 v22, {vr(GX+16*j+4*q,4)} offset:{12288*j+1024*q}\nv_and_b32 v{112+2*q}, 0xffff0000, v{GS+4*j+q}\nv_rcp_f32 v{112+2*q}, v{112+2*q}\nv_lshlrev_b32 v{GS+4*j+q}, 16, v{GS+4*j+q}")
            for q in range(4): k(f"v_mul_f32 v{120+2*q}, v{GS+4*j+q}, v{112+2*q}")
            for q in range(5):
                if q < 4:
                    x = GX + 16 * j + 4 * q; o = 12288 * j + 1024 * q
                    for e in range(4): k(f"v_lshlrev_b32 v{28+2*e}, 16, v{x+e}\nv_and_b32 v{29+2*e}, 0xffff0000, v{x+e}")
                    for e in range(4): k(f"v_pk_fma_f32 {vr(28+2*e,2)}, {vr(28+2*e,2)}, {vr(112+2*q,2)}, {vr(120+2*q,2)} op_sel_hi:[1,0,0]")
                    for e in range(4): k(f"v_cvt_pk_bf16_f32 v{128+4*q+e}, v{28+2*e}, v{29+2*e}")
                    k(f"ds_write_b128 v23, {vr(128+4*q,4)} offset:{o}\nds_read_b64_tr_b16 {vr(144+4*q,2)}, v24 offset:{o}\nds_read_b64_tr_b16 {vr(146+4*q,2)}, v24 offset:{o+64}")
                if q: k(f"ds_write_b128 v{25+((q-1)&1)}, {vr(144+4*(q-1),4)} offset:{12288*j+1024*(q-1)}")
            k("s_waitcnt lgkmcnt(0)")
        k(f"{nm}_p:"); k.reset()
        k.stamp(4)
        return 2 if HB else 0
    L3 = opt.get("l3", 0)
    def codepf():
        k("s_getpc_b64 s[20:21]\nA_pc0:\ns_add_u32 s20, s20, kA_kernel-A_pc0\ns_addc_u32 s21, s21, -1")
        k("s_lshr_b32 s22, s2, 3\ns_lshl_b32 s22, s22, 1\ns_and_b32 s23, s62, 1\ns_add_u32 s22, s22, s23\ns_lshl_b32 s22, s22, 12\nv_lshlrev_b32 v118, 6, v2\nv_add_u32 v118, s22, v118")
        k("v_min_u32 v118, code_end-kA_kernel, v118\nglobal_load_dword v117, v118, s[20:21]")
    if L3:
        assert KS and XR and not UR
        MBX = LDSZ; PS = MBX + 64; LDSZ += 64 + 1536
        k("F_side:"); k.reset()
        k(f"s_setprio {opt.get('prio', 3)}")
        mksrd(k, 8, 0, 2621440); mksrd(k, 16, 96, 256)
        k("v_lshlrev_b32 v9, 4, v2\ns_mov_b32 s30, 0x3f803f80\nv_lshrrev_b32 v3, 3, v2\nv_and_b32 v4, 7, v2\nv_lshlrev_b32 v4, 4, v4\nv_mul_u32_u24 v5, 1280, v3\nv_add_u32 v5, v5, v4\ns_mul_i32 s12, s2, 10240")
        k("s_sub_u32 s28, s62, 9\ns_lshl_b32 s29, s28, 2\ns_lshr_b32 s13, s28, 1\ns_sub_u32 s29, s29, s13\ns_lshl_b32 s29, s29, 7\ns_add_u32 s13, s12, s29")
        k("s_mov_b32 s36, s8\ns_mov_b32 s37, s9\ns_cmp_eq_u32 s28, 0\ns_cselect_b32 s38, s10, 0\ns_mov_b32 s39, s11")
        X = 16; TR = 64
        for j in range(4): k(f"buffer_load_dwordx4 {vr(X+4*j,4)}, v5, s[{8 if j < 3 else 36}:{11 if j < 3 else 39}], s13 offen offset:{128*j}{NT('x')}")
        for i in range(4): k(f"v_mov_b32 v{112+i}, -1")
        k(f"s_mul_i32 s26, s61, 3\ns_add_u32 s26, s26, s28\ns_lshl_b32 s25, s60, 3\ns_add_u32 s25, s25, s26\ns_mul_i32 s25, s25, 3072\ns_add_u32 s25, s25, {LY.KP}")
        k("s_mov_b32 s32, s4\ns_mov_b32 s33, s5\ns_cmp_lt_u32 s26, 8\ns_cselect_b32 s34, s6, 0\ns_mov_b32 s35, s7")
        sen = "\n".join(f"buffer_store_dwordx4 v[112:115], v9, s[32:35], s25 offen offset:{1024*j} sc1" for j in range(3))
        SQ = opt.get("sq", 2)
        if SQ == 0: k(sen)
        codepf()
        k(f"v_lshlrev_b32 v119, 3, v2\nv_add_u32 v119, {PS}, v119\ns_lshl_b32 s26, s28, 9\nv_add_u32 v111, s26, v119\nds_write_b64 v111, v[112:113]")
        k(f"v_mov_b32 v10, 0\nv_mov_b32 v11, 0\nv_mov_b32 v12, 0\nv_mov_b32 v13, 0\ns_lshl_b32 s26, s28, 2\ns_add_u32 s26, s26, {MBX-4}\ns_cmp_lg_u32 s28, 0\ns_cselect_b32 s26, s26, {MBX}\nv_mov_b32 v116, s26\ns_cbranch_scc1 F_l3a\n!ds_write_b128 v116, v[10:13]\nF_l3a:")
        k(f"s_add_u32 s29, s29, {LNB}\nv_mul_u32_u24 v6, 1344, v3\nv_add3_u32 v6, v6, v4, s29")
        k(f"v_bfe_u32 v7, v2, 2, 2\nv_mul_u32_u24 v7, 1344, v7\nv_and_b32 v8, 3, v2\nv_lshl_add_u32 v7, v8, 3, v7\nv_bfe_u32 v8, v2, 4, 2\nv_lshl_add_u32 v7, v8, 5, v7\nv_add_u32 v7, s29, v7")
        k(f"s_sub_u32 s29, s29, {LNB}\ns_lshl_b32 s29, s29, 3\ns_add_u32 s12, s12, s29\ns_and_b32 s23, s2, 63\ns_lshl_b32 s23, s23, 7\ns_lshr_b32 s24, s2, 6\ns_lshl_b32 s24, s24, 2\ns_add_u32 s23, s23, s24\ns_add_u32 s23, s23, {LNF}\ns_mov_b32 s24, {LNF}\nv_lshlrev_b32 v8, 7, v2")
        UP = 120
        k("s_waitcnt lgkmcnt(0)\ns_barrier")
        for q in range(16):
            k(f"v_dot2c_f32_bf16 v{10+2*(q&1)}, s30, v{X+q}\nv_dot2c_f32_bf16 v{11+2*(q&1)}, v{X+q}, v{X+q}")
            if q < 16: k(f"v_lshlrev_b32 v{UP+2*q}, 16, v{X+q}\nv_and_b32 v{UP+2*q+1}, 0xffff0000, v{X+q}")
        k.stamp(1)
        tr = lambda r, o: f"ds_read_b64_tr_b16 {vr(r,2)}, v7 offset:{o}\nds_read_b64_tr_b16 {vr(r+2,2)}, v7 offset:{o+4*1344}"
        k("v_add_f32 v10, v10, v12\nv_add_f32 v11, v11, v13")
        for m in ("quad_perm:[1,0,3,2]", "quad_perm:[2,3,0,1]", "row_half_mirror"):
            k(f"v_add_f32_dpp v10, v10, v10 {m} row_mask:0xf bank_mask:0xf\nv_add_f32_dpp v11, v11, v11 {m} row_mask:0xf bank_mask:0xf")
        k("ds_write_b64 v111, v[10:11]")
        if SQ == 1: k(sen)
        k("s_mov_b32 s67, 0\nF_ps:\n!ds_read_b64 v[10:11], v119\n!ds_read_b64 v[12:13], v119 offset:512\n!ds_read_b64 v[14:15], v119 offset:1024\n!s_add_u32 s67, s67, 1\n!s_waitcnt lgkmcnt(0)\n!v_max3_u32 v110, v11, v13, v15\n!v_cmp_eq_u32 vcc, -1, v110\n!v_add_f32 v10, v10, v12\n!v_add_f32 v11, v11, v13\n!s_cmp_eq_u64 vcc, 0\n!s_cbranch_scc1 F_ps_ok\n!s_cmp_lt_u32 s67, 0xffff\n!s_cbranch_scc1 F_ps\nF_ps_ok:\nv_add_f32 v10, v10, v14\nv_add_f32 v11, v11, v15")
        k(f"v_mul_f32 v10, {fbits(-1/640)}, v10\nv_mul_f32 v11, {fbits(1/640)}, v11\nv_fma_f32 v11, -v10, v10, v11\nv_max_f32 v11, 0, v11")
        k(f"v_cvt_pk_bf16_f32 v11, v10, v11\nv_lshlrev_b32 v10, 16, v11\nv_and_b32 v11, 0xffff0000, v11\nv_add_f32 v11, {fbits(1e-5)}, v11")
        k("v_cvt_pk_bf16_f32 v11, v11, v11\nv_and_b32 v11, 0xffff0000, v11\nv_sqrt_f32 v11, v11\nv_cvt_pk_bf16_f32 v11, v11, v11\nv_and_b32 v11, 0xffff0000, v11")
        k("v_rcp_f32 v12, v11\nv_mul_f32 v14, v10, v12")
        def chunk(j):
            for q in range(4): k(f"v_pk_fma_f32 {vr(UP+8*j+2*q,2)}, {vr(UP+8*j+2*q,2)}, v[12:13], v[14:15] op_sel_hi:[1,0,0]")
            for q in range(4): k(f"v_cvt_pk_bf16_f32 v{X+4*j+q}, v{UP+8*j+2*q}, v{UP+8*j+2*q+1}")
            k(f"ds_write_b128 v6, {vr(X+4*j,4)} offset:{128*j}")
            k(tr(TR + 4 * j, 128 * j))
        ust = lambda j: k(f"buffer_store_dwordx4 {vr(TR+4*j,4)}, v9, s[4:7], s12 offen offset:{1024*j} sc1")
        GE = opt.get("ge", 0)
        if GE: k("s_cmp_lg_u32 s28, 0\ns_cbranch_scc1 F_ge0\n!buffer_load_dword v108, off, s[16:19], 0 sc1\nF_ge0:")
        chunk(0); chunk(1); ust(0); chunk(2); ust(1)
        k("s_cmp_eq_u32 s28, 0\ns_cbranch_scc1 F_l3b\n!s_waitcnt lgkmcnt(0)")
        k(f"!buffer_store_dwordx4 {vr(TR+8,4)}, v9, s[4:7], s12 offen offset:2048 sc1" + ("\n!" + sen.replace("\n", "\n!") if SQ == 2 else "") + f"\n!v_mov_b32 v3, 1\n!s_waitcnt vmcnt(0)\n!ds_write_b32 v116, v3\n!s_setprio 0\n!s_waitcnt lgkmcnt(0)\n!s_branch F_shuf\nF_l3b:")
        chunk(3); ust(2); ust(3)
        if SQ == 2: k(sen)
        k("v_mov_b32 v3, 1")
        k.stamp(2)
        k("s_lshl_b32 s12, s61, 9\ns_add_u32 s12, s12, 512\ns_cmp_eq_u32 s61, 0\ns_cselect_b32 s12, 0, s12\ns_mul_i32 s12, s12, 1280\ns_lshl_b32 s14, s60, 4\ns_add_u32 s12, s12, s14\nv_mul_u32_u24 v21, 1280, v2")
        if GE: k("!buffer_load_dword v109, off, s[16:19], 0 sc1\n!s_waitcnt vmcnt(1)\n!v_readfirstlane_b32 s66, v108\n!s_cmp_eq_u32 s66, 1\n!s_cbranch_scc1 F_go_ok\n!s_waitcnt vmcnt(0)\n!v_readfirstlane_b32 s66, v109\n!s_cmp_eq_u32 s66, 1\n!s_cbranch_scc1 F_go_ok")
        spin(k, "F_go", "buffer_load_dword v10, off, s[16:19], 0 sc1", ["v_readfirstlane_b32 s66, v10", "s_cmp_lg_u32 s66, 1"])
        k("s_mov_b32 s67, 0\nF_mb:\n!ds_read_b64 v[10:11], v116\n!s_add_u32 s67, s67, 1\n!s_waitcnt lgkmcnt(0)\n!v_and_b32 v10, v10, v11\n!s_nop 0\n!v_readfirstlane_b32 s66, v10\n!s_cmp_eq_u32 s66, 1\n!s_cbranch_scc1 F_mb_ok\n!s_cmp_lt_u32 s67, 0xffff\n!s_cbranch_scc1 F_mb\nF_mb_ok:")
        k("s_mov_b64 exec, 1\nbuffer_store_dword v3, off, s[4:7], s23 sc1\ns_mov_b64 exec, -1")
        k.stamp(3)
        k("s_cmp_ge_u32 s2, 240\ns_cbranch_scc1 F_send")
        gth = lambda j: k(f"s_mov_b32 m0, {XRB+1024*j}\ns_add_u32 s14, s12, {64*1280*j}\n!buffer_load_dwordx4 v21, s[8:11], s14 offen lds")
        for j in range(8 if opt.get("g2") else 16):
            if j == 8: k("s_cmp_lg_u32 s61, 0\ns_cbranch_scc1 F_l3c")
            gth(j)
        k("F_l3c:")
        LP = opt.get("lp", 0)
        if UD:
            k("v_lshrrev_b32 v22, 3, v2\nv_mul_u32_u24 v22, 10240, v22\nv_and_b32 v23, 7, v2\nv_lshrrev_b32 v24, 4, v2\nv_xor_b32 v23, v23, v24\nv_lshl_add_u32 v22, v23, 4, v22\nv_xor_b32 v23, 64, v22\ns_lshl_b32 s12, s60, 7")
        if UD == 2: k("s_cmp_lg_u32 s61, 0\ns_cbranch_scc1 F_lne")
        k("s_barrier\n" * (2 - LP))
        if LP: k("!buffer_load_dwordx4 v[12:15], v8, s[4:7], s24 offen sc1\n" + "s_barrier\n" * LP)
        k.stamp(4)
        if LP: k("!s_waitcnt vmcnt(0)\n!v_and_b32 v12, v12, v13\n!v_and_b32 v14, v14, v15\n!v_and_b32 v12, v12, v14\n!v_cmp_ne_u32 vcc, 1, v12\n!s_nop 1\n!s_cmp_eq_u64 vcc, 0\n!s_cbranch_scc1 F_ln_ok")
        if UD == 2: k("F_lne:")
        spin(k, "F_ln", "buffer_load_dwordx4 v[12:15], v8, s[4:7], s24 offen sc1",
             ["v_and_b32 v12, v12, v13", "v_and_b32 v14, v14, v15", "v_and_b32 v12, v12, v14", "v_cmp_ne_u32 vcc, 1, v12", "s_nop 1", "s_cmp_lg_u64 vcc, 0"])
        k.stamp(5)
        if UD:
            for i in range(32):
                if i in (16, 24): k(f"s_cmp_lt_u32 s61, {i//8-1}\ns_cbranch_scc1 F_ude")
                k(f"s_mov_b32 m0, {UB+4096+1024*i}\ns_add_u32 s14, s12, {81920*i}\n!buffer_load_dwordx4 v{22+(i&1)}, s[4:7], s14 offen sc1 lds")
            k("F_ude:")
            if UD == 2: k("s_cmp_eq_u32 s61, 0\ns_cbranch_scc1 F_udb\ns_barrier\ns_barrier\nF_udb:")
            k("!s_waitcnt vmcnt(0)")
        k("s_barrier")
        if opt.get("g2"):
            assert opt.get("fb") and KS == 1
            k("s_cmp_lg_u32 s61, 0\ns_cbranch_scc1 F_send\ns_barrier")
            for j in range(8, 16): gth(j)
            k("!s_waitcnt vmcnt(0)\ns_mov_b64 exec, 1\n!ds_add_u32 v116, v3 offset:8\ns_mov_b64 exec, -1\n!s_waitcnt lgkmcnt(0)")
        k("F_send:")
        k.end()
    else:
        k("F_side:"); k.reset()
        k("v_lshlrev_b32 v9, 4, v2\ns_mov_b32 s30, 0x3f803f80\ns_cmp_lg_u32 s62, 9\ns_cbranch_scc1 F_shuf")
        if opt.get("prio", 3): k(f"s_setprio {opt.get('prio', 3)}")
        mksrd(k, 8, 0, 2621440); mksrd(k, 16, 96, 256)
        if opt.get("pf", 0): k("s_load_dwordx4 s[40:43], s[0:1], 64\ns_load_dwordx2 s[44:45], s[0:1], 80")
        k("v_lshrrev_b32 v3, 3, v2\nv_and_b32 v4, 7, v2\nv_lshlrev_b32 v4, 4, v4\nv_mul_u32_u24 v5, 1280, v3\nv_add_u32 v5, v5, v4\ns_mul_i32 s12, s2, 10240")
        X = 16; TR = 64
        for j in range(10): k(f"buffer_load_dwordx4 {vr(X+4*j,4)}, v5, s[8:11], s12 offen offset:{128*j}{NT('x')}")
        k(f"v_mul_u32_u24 v6, 1344, v3\nv_add_u32 v6, v6, v4\nv_add_u32 v6, {LNB}, v6")
        k(f"v_bfe_u32 v7, v2, 2, 2\nv_mul_u32_u24 v7, 1344, v7\nv_and_b32 v8, 3, v2\nv_lshl_add_u32 v7, v8, 3, v7\nv_bfe_u32 v8, v2, 4, 2\nv_lshl_add_u32 v7, v8, 5, v7\nv_add_u32 v7, {LNB}, v7")
        k(f"s_add_u32 s13, s12, 4096\ns_add_u32 s14, s12, 8192\ns_add_u32 s20, s12, {LY.XT}\ns_add_u32 s21, s13, {LY.XT}\ns_add_u32 s22, s14, {LY.XT}\ns_and_b32 s23, s2, 63\ns_lshl_b32 s23, s23, 7\ns_lshr_b32 s24, s2, 6\ns_lshl_b32 s24, s24, 2\ns_add_u32 s23, s23, s24\ns_add_u32 s23, s23, {LNF}\ns_mov_b32 s24, {LNF}\nv_lshlrev_b32 v8, 7, v2")
        k("v_mov_b32 v10, 0\nv_mov_b32 v11, 0\nv_mov_b32 v12, 0\nv_mov_b32 v13, 0")
        if KS:
            assert XR
            for i in range(4): k(f"v_mov_b32 v{112+i}, -1")
            SQ = opt.get("sq", 0)
            k(f"s_lshl_b32 s25, s60, 3\ns_mul_i32 s26, s61, 3\ns_add_u32 s25, s25, s26\ns_mul_i32 s25, s25, 3072\ns_add_u32 s25, s25, {LY.KP}\ns_add_u32 s26, s25, 3072\ns_add_u32 s27, s25, 6144")
            for d, c in ((32, 3), (36, 2)): k(f"s_mov_b32 s{d}, s4\ns_mov_b32 s{d+1}, s5\ns_cmp_lt_u32 s61, {c}\ns_cselect_b32 s{d+2}, s6, 0\ns_mov_b32 s{d+3}, s7")
        for q in range(40):
            if KS and q == SQ and SQ <= 36:
                for j in range(9): k(f"buffer_store_dwordx4 v[112:115], v9, s[{32+4*(j//6)}:{35+4*(j//6)}], s{25+j//3} offen offset:{1024*(j%3)} sc1")
            if UR and q == opt.get("gq", 1): k("buffer_load_dword v60, off, s[16:19], 0 sc1")
            k(f"v_dot2c_f32_bf16 v{10+2*(q&1)}, s30, v{X+q}\nv_dot2c_f32_bf16 v{11+2*(q&1)}, v{X+q}, v{X+q}")
            if KS and q == 37 and SQ > 36:
                k(f"s_cmp_ge_u32 s2, 240\ns_cbranch_scc1 F_nos\ns_lshl_b32 s25, s60, 3\ns_mul_i32 s26, s61, 3\ns_add_u32 s25, s25, s26\ns_mul_i32 s25, s25, 3072\ns_add_u32 s25, s25, {LY.KP}")
                for c in range(3):
                    if c == 2: k("s_cmp_eq_u32 s61, 2\ns_cbranch_scc1 F_nos")
                    for j in range(3): k(f"!buffer_store_dwordx4 v[112:115], v9, s[4:7], s25 offen offset:{1024*j} sc1")
                    if c < 2: k("s_add_u32 s25, s25, 3072")
                k("F_nos:")
            if q % 4 == 3 and not XR: k(f"ds_write_b128 v6, {vr(X+q-3,4)} offset:{XS+32*(q-3)}")
        k.stamp(1)
        tr = lambda r, o: f"ds_read_b64_tr_b16 {vr(r,2)}, v7 offset:{o}\nds_read_b64_tr_b16 {vr(r+2,2)}, v7 offset:{o+4*1344}"
        k("v_add_f32 v10, v10, v12\nv_add_f32 v11, v11, v13")
        for j in range(0 if XR else 10): k(tr(TR + 40 + 4 * j, XS + 128 * j))
        for m in ("quad_perm:[1,0,3,2]", "quad_perm:[2,3,0,1]", "row_half_mirror"):
            k(f"v_add_f32_dpp v10, v10, v10 {m} row_mask:0xf bank_mask:0xf\nv_add_f32_dpp v11, v11, v11 {m} row_mask:0xf bank_mask:0xf")
        k(f"v_mul_f32 v10, {fbits(-1/640)}, v10\nv_mul_f32 v11, {fbits(1/640)}, v11\nv_fma_f32 v11, -v10, v10, v11\nv_max_f32 v11, 0, v11")
        k(f"v_cvt_pk_bf16_f32 v11, v10, v11\nv_lshlrev_b32 v10, 16, v11\nv_and_b32 v11, 0xffff0000, v11\nv_add_f32 v11, {fbits(1e-5)}, v11")
        k("v_cvt_pk_bf16_f32 v11, v11, v11\nv_and_b32 v11, 0xffff0000, v11\nv_sqrt_f32 v11, v11\nv_cvt_pk_bf16_f32 v11, v11, v11\nv_and_b32 v11, 0xffff0000, v11")
        if UR:
            k(f"v_lshrrev_b32 v10, 16, v10\nv_or_b32 v10, v10, v11\nv_lshlrev_b32 v3, 4, v3\ns_lshr_b32 s23, s2, 5\ns_lshl_b32 s23, s23, 10\ns_and_b32 s24, s2, 7\ns_lshl_b32 s24, s24, 7\ns_add_u32 s23, s23, s24\ns_bfe_u32 s24, s2, 0x20003\ns_lshl_b32 s24, s24, 2\ns_add_u32 s23, s23, s24\ns_add_u32 s23, s23, {LNF}")
            k("!s_waitcnt vmcnt(0)\n!v_readfirstlane_b32 s66, v60\ns_cmp_eq_u32 s66, 1\ns_cbranch_scc1 F_go_ok")
            spin(k, "F_go", "buffer_load_dword v60, off, s[16:19], 0 sc1", ["v_readfirstlane_b32 s66, v60", "s_cmp_lg_u32 s66, 1"])
            k("s_mov_b32 exec_lo, 0x01010101\ns_mov_b32 exec_hi, 0x01010101\nbuffer_store_dword v10, v3, s[4:7], s23 offen sc1\ns_mov_b64 exec, -1")
            k.stamp(2)
            k("s_cmp_ge_u32 s2, 240\ns_cbranch_scc1 F_send")
            if XS_: k(f"v_mov_b32 v12, 1\nv_mov_b32 v13, 1\nv_mov_b32 v11, {MBX}\nds_write_b64 v11, v[12:13]")
            h_setup(2); h_gather("F_hl"); h_proc("F_hl")
            k("F_send:")
            k.end()
        else:
            k("v_rcp_f32 v12, v11\nv_mul_f32 v14, v10, v12")
            for j in range(10):
                for q in range(4): k(f"v_lshlrev_b32 v{56+2*q}, 16, v{X+4*j+q}\nv_and_b32 v{57+2*q}, 0xffff0000, v{X+4*j+q}")
                for q in range(4): k(f"v_pk_fma_f32 {vr(56+2*q,2)}, {vr(56+2*q,2)}, v[12:13], v[14:15] op_sel_hi:[1,0,0]")
                for q in range(4): k(f"v_cvt_pk_bf16_f32 v{X+4*j+q}, v{56+2*q}, v{57+2*q}")
                k(f"ds_write_b128 v6, {vr(X+4*j,4)} offset:{128*j}")
                k(tr(TR + 4 * j, 128 * j))
                if not XR: k(f"buffer_store_dwordx4 {vr(TR+40+4*j,4)}, v9, s[4:7], s{20+j//4} offen offset:{1024*(j%4)} sc1")
                if j: k(f"buffer_store_dwordx4 {vr(TR+4*j-4,4)}, v9, s[4:7], s{12+(j-1)//4} offen offset:{1024*((j-1)%4)} sc1")
            k(f"buffer_store_dwordx4 {vr(TR+36,4)}, v9, s[4:7], s14 offen offset:1024 sc1\nv_mov_b32 v3, 1")
            k.stamp(2)
            spin(k, "F_go", "buffer_load_dword v10, off, s[16:19], 0 sc1", ["v_readfirstlane_b32 s66, v10", "s_cmp_lg_u32 s66, 1"])
            k("s_mov_b64 exec, 1\nbuffer_store_dword v3, off, s[4:7], s23 sc1\ns_mov_b64 exec, -1")
            if opt.get("pf", 0):
                k("s_mul_i32 s25, s2, 7680\nv_min_u32 v4, 59, v2\nv_lshlrev_b32 v4, 7, v4\nv_add_u32 v4, s25, v4")
                for i in range(3): k(f"global_load_dword v{16+i}, v4, s[{40+2*i}:{41+2*i}]")
            k.stamp(3)
            LP = opt.get("lp", 0)
            k("s_cmp_ge_u32 s2, 240\ns_cbranch_scc1 F_send\ns_barrier")
            if LP: k("!buffer_load_dwordx4 v[12:15], v8, s[4:7], s24 offen sc1")
            k("s_barrier")
            k.stamp(4)
            if LP: k("!s_waitcnt vmcnt(0)\n!v_and_b32 v12, v12, v13\n!v_and_b32 v14, v14, v15\n!v_and_b32 v12, v12, v14\n!v_cmp_ne_u32 vcc, 1, v12\n!s_nop 1\n!s_cmp_eq_u64 vcc, 0\n!s_cbranch_scc1 F_ln_ok")
            spin(k, "F_ln", "buffer_load_dwordx4 v[12:15], v8, s[4:7], s24 offen sc1",
                 ["v_and_b32 v12, v12, v13", "v_and_b32 v14, v14, v15", "v_and_b32 v12, v12, v14", "v_cmp_ne_u32 vcc, 1, v12", "s_nop 1", "s_cmp_lg_u64 vcc, 0"])
            k.stamp(5)
            k("s_barrier\nF_send:")
            k.end()
    k("F_shuf:"); k.reset()
    if I0: k("s_lshl_b32 s20, s2, 4\ns_add_u32 s20, s20, s62\ns_cmp_eq_u32 s20, 11\ns_cbranch_scc1 F_init0\nF_shuf2:")
    k("s_load_dwordx4 s[40:43], s[0:1], 64\ns_load_dwordx2 s[44:45], s[0:1], 80")
    if not L3:
        k("s_getpc_b64 s[20:21]\nA_pc0:\ns_add_u32 s20, s20, kA_kernel-A_pc0\ns_addc_u32 s21, s21, -1")
        k("s_lshr_b32 s22, s2, 3\ns_lshl_b32 s22, s22, 1\ns_add_u32 s22, s22, s62\ns_sub_u32 s22, s22, 10\ns_lshl_b32 s22, s22, 12\nv_lshlrev_b32 v3, 6, v2\nv_add_u32 v4, s22, v3")
        k("v_min_u32 v4, code_end-kA_kernel, v4\nglobal_load_dword v20, v4, s[20:21]")
    NB = 0
    if UR:
        mksrd(k, 8, 0, 2621440); mksrd(k, 16, 96, 256)
        k("s_cmp_ge_u32 s2, 240\ns_cbranch_scc1 F_nox\ns_sub_u32 s28, s62, 10")
        if opt.get("hprio"): k(f"s_setprio {opt['hprio']}")
        if XS_: k(f"s_lshl_b32 s14, s28, 2\ns_add_u32 s14, s14, {MBX}\nv_mov_b32 v27, s14\nv_mov_b32 v28, 0\nds_write_b32 v27, v28")
        h_setup("s28")
        k("s_waitcnt lgkmcnt(0)" + ("\ns_waitcnt vmcnt(0)" if opt.get("xw", 0) >= 0 else ""))
        go2 = lambda: spin(k, "F_go2", "buffer_load_dword v60, off, s[16:19], 0 sc1", ["v_readfirstlane_b32 s66, v60", "s_cmp_lg_u32 s66, 1"])
        if XS_:
            k("s_mov_b32 s67, 0\nF_mb:\n!ds_read_b32 v28, v27\n!s_add_u32 s67, s67, 1\n!s_waitcnt lgkmcnt(0)\n!v_readfirstlane_b32 s66, v28\n!s_cmp_eq_u32 s66, 1\n!s_cbranch_scc1 F_go2_ok\n!s_cmp_lt_u32 s67, 256\n!s_cbranch_scc1 F_mb")
            go2()
        k.stamp(5)
        h_gather("F_hs")
        if not XS_: go2()
        NB = h_proc("F_hs")
        if NB: k("s_branch F_nox2\nF_nox:\ns_barrier\ns_barrier\nF_nox2:\n!s_waitcnt lgkmcnt(0)")
        else: k("F_nox:\n!s_waitcnt lgkmcnt(0)")
    elif XR and not L3:
        mksrd(k, 8, 0, 2621440)
        k("s_cmp_ge_u32 s2, 240\ns_cbranch_scc1 F_nox")
        k("s_lshl_b32 s12, s61, 9\ns_add_u32 s12, s12, 512\ns_cmp_eq_u32 s61, 0\ns_cselect_b32 s12, 0, s12\ns_sub_u32 s13, s62, 10\ns_lshl_b32 s14, s13, 6\ns_add_u32 s12, s12, s14\ns_mul_i32 s12, s12, 1280\ns_lshl_b32 s14, s60, 4\ns_add_u32 s12, s12, s14")
        k(f"s_lshl_b32 s13, s13, 10\ns_add_u32 s13, s13, {XRB}\nv_mul_u32_u24 v21, 1280, v2\ns_waitcnt lgkmcnt(0)")
        if opt.get("xw", 0) >= 0: k("s_waitcnt vmcnt(0)")
        for j in range(8):
            if j == 4: k("s_cmp_lg_u32 s61, 0\ns_cbranch_scc1 F_nox")
            k(f"s_add_u32 m0, s13, {2048*j}\ns_add_u32 s14, s12, {128*1280*j}\n!buffer_load_dwordx4 v21, s[8:11], s14 offen lds")
        k("F_nox:\n!s_waitcnt lgkmcnt(0)")
    LD = 64; FR = 16
    k(f"v_lshrrev_b32 v4, 3, v2\nv_and_b32 v5, 7, v2\ns_sub_u32 s20, s62, 10\ns_mul_i32 s20, s20, 20480\ns_add_u32 s20, s20, {SB}")
    k("s_mov_b32 s26, 1966080\ns_mov_b32 s27, 0x00020000\ns_mov_b32 s34, 1966080\ns_mov_b32 s35, 0x00020000")
    SW = opt.get("shw", 4); SP = opt.get("shp", 5)
    k(f"s_cmp_eq_u32 s2, 255\ns_cbranch_scc1 {'F_ez' if I1 else 'F_send2'}\ns_cmp_eq_u32 s62, 11\ns_cbranch_scc1 F_wd\ns_cmp_lt_u32 s2, 63\ns_cbranch_scc1 {'F_wd' if opt.get('wd2') else 'F_send2'}")
    k("s_sub_u32 s21, s2, 63\ns_and_b32 s22, s21, 7\ns_lshr_b32 s21, s21, 3\ns_mul_i32 s23, s22, 5")
    k("s_mov_b32 s24, s40\ns_mov_b32 s25, s41\ns_mov_b32 s32, s42\ns_mov_b32 s33, s43")
    k("v_and_b32 v10, 2, v4\nv_xor_b32 v10, v10, v5\nv_mul_u32_u24 v11, 3072, v4\nv_lshl_add_u32 v10, v10, 4, v11\nv_xor_b32 v11, 64, v10")
    k(f"s_mul_i32 s36, s23, {16*3072}\ns_lshl_b32 s37, s21, 7\ns_add_u32 s36, s36, s37")
    k("v_bfe_u32 v3, v2, 4, 1\nv_lshrrev_b32 v6, 5, v2\nv_bfe_u32 v7, v2, 2, 2\nv_and_b32 v8, 3, v2")
    k("v_mul_u32_u24 v48, 2112, v3\nv_lshl_add_u32 v48, v6, 10, v48\nv_lshl_add_u32 v48, v7, 7, v48\nv_lshl_add_u32 v48, v8, 3, v48\nv_and_b32 v7, 2, v7\nv_lshl_add_u32 v48, v7, 4, v48\nv_add_u32 v48, s20, v48")
    for w in range(1, 4): k(f"v_xor_b32 v{48+w}, {32*w}, v48")
    for w in range(4): k(f"v_mov_b32 v{52+w}, 0")
    if UR: k("!s_waitcnt vmcnt(0)" + "\ns_barrier" * (SW - NB))
    elif XR: k("s_barrier\ns_barrier\n!s_waitcnt vmcnt(0)" + "\ns_barrier" * (SW - 2))
    elif SW >= 0: k("s_waitcnt vmcnt(0)" + "\ns_barrier" * SW)
    k.stamp(1)
    for t in range(5):
        for h in range(2):
            if t or h: k(f"s_add_u32 s36, s36, {8*3072}")
            for g in range(2): k(f"s_add_u32 m0, s20, {4096*t+2048*g+1024*h}\nbuffer_load_dwordx4 v{10+g}, s[{24+8*g}:{27+8*g}], s36 offen{NT('w')} lds")
        k.tag(f"w{t}")
    k(f"s_mul_i32 s47, s21, {4*41984}\ns_lshl_b32 s36, s23, 10\ns_add_u32 s47, s47, {LY.W1P}\ns_add_u32 s36, s36, s47\ns_add_u32 s37, s36, 41984\ns_add_u32 s38, s37, 41984\ns_add_u32 s39, s38, 41984\nv_add_u32 v12, 4096, v9")
    k("s_barrier\n" * (SP - max(SW, 0)) + f"s_setprio {opt.get('sprio', 3)}")
    k.stamp(2)
    def rd(t):
        k.waitvm(f"w{t}")
        for w in range(4):
            for e in range(2): k(f"ds_read_b64_tr_b16 {vr(LD+16*t+4*w+2*e,2)}, v{48+w} offset:{4096*t+512*e}")
    rd(0)
    for t in range(5):
        if t < 4: rd(t + 1)
        for w in range(4): k(f"buffer_store_dwordx4 {vr(LD+16*t+4*w,4)}, v{9 if t < 4 else 12}, s[4:7], s{36+w} offen offset:{1024*(t%4)} sc1")
    for t in range(5):
        for q in range(4):
            for w in range(4): k(f"v_dot2c_f32_bf16 v{52+w}, s30, v{LD+16*t+4*w+q}")
    k("v_and_b32 v4, 31, v2\nv_lshlrev_b32 v4, 4, v4\nv_mul_u32_u24 v5, 41984, v6\nv_add_u32 v4, v4, v5")
    k(f"s_lshr_b32 s36, s22, 2\ns_lshl_b32 s36, s36, 9\ns_and_b32 s37, s22, 3\ns_lshl_b32 s37, s37, 2\ns_add_u32 s36, s36, s37\ns_add_u32 s36, s36, s47\ns_add_u32 s36, s36, 40960\ns_add_u32 s37, s36, {2*41984}")
    for w in (0, 2):
        a = 52 + w
        k(f"v_permlane32_swap_b32 v{a}, v{a+1}\nv_add_f32 v{a}, v{a}, v{a+1}\nv_cvt_pk_bf16_f32 v{a+1}, v{a}, v{a}\nv_and_b32 v{a+1}, 0xffff0000, v{a+1}\nv_sub_f32 v{a}, v{a}, v{a+1}\nv_cvt_pk_bf16_f32 v{a}, v{a+1}, v{a}")
        k(f"buffer_store_dword v{a}, v4, s[4:7], s{36+w//2} offen")
    k("F_send2:\n!s_waitcnt vmcnt(0)")
    k.end()
    k("F_wd:"); k.reset()
    WD2 = opt.get("wd2", 0)
    if WD2:
        assert L3
        k("s_cmp_ge_u32 s2, 60\ns_cbranch_scc1 F_send2\ns_lshl_b32 s21, s2, 1\ns_add_u32 s21, s21, s62\ns_add_u32 s21, s21, 110\ns_waitcnt lgkmcnt(0)\ns_branch F_wdl\nF_wd2:\ns_cmp_eq_u32 s62, 8\ns_cbranch_scc1 F_end\ns_load_dwordx2 s[44:45], s[0:1], 80")
        k("v_lshrrev_b32 v4, 3, v2\nv_and_b32 v5, 7, v2\nv_lshlrev_b32 v9, 4, v2\ns_lshl_b32 s20, s62, 13\ns_mov_b32 s26, 1966080\ns_mov_b32 s27, 0x00020000")
        k("s_sub_u32 s21, s2, 240\ns_lshl_b32 s21, s21, 3\ns_add_u32 s21, s21, s62\ns_waitcnt lgkmcnt(0)\n" + "s_barrier\nF_wdl:")
    else: k("s_cmp_lt_u32 s2, 15\ns_cbranch_scc1 F_send2\ns_waitcnt lgkmcnt(0)")
    k(f"s_mov_b32 s24, s44\ns_mov_b32 s25, s45\ns_mov_b32 s39, {LY.WDP}")
    k("v_and_b32 v10, 2, v4\nv_lshlrev_b32 v10, 1, v10\nv_bfe_u32 v11, v4, 2, 1\nv_lshl_add_u32 v10, v11, 1, v10\nv_xor_b32 v10, v10, v5\nv_mul_u32_u24 v11, 1280, v4\nv_lshl_add_u32 v10, v10, 4, v11")
    k(("" if WD2 else "s_sub_u32 s21, s2, 15\n") + "s_mul_i32 s50, s21, 13108\ns_lshr_b32 s50, s50, 16\ns_mul_i32 s23, s50, 5\ns_sub_u32 s51, s21, s23\ns_lshl_b32 s51, s51, 1")
    k(f"s_mul_i32 s36, s50, {32*1280}\ns_lshl_b32 s37, s51, 7\ns_add_u32 s36, s36, s37")
    k("v_bfe_u32 v7, v2, 2, 2\nv_and_b32 v8, 3, v2\nv_lshrrev_b32 v6, 5, v2\nv_bfe_u32 v3, v2, 4, 1")
    k("v_lshlrev_b32 v48, 11, v6\nv_lshl_add_u32 v48, v3, 9, v48\nv_lshl_add_u32 v48, v7, 7, v48\nv_add_u32 v48, s20, v48")
    k("v_and_b32 v7, 2, v7\nv_lshlrev_b32 v7, 5, v7\nv_lshl_add_u32 v7, v3, 5, v7")
    if WD2: k("s_barrier\n" * 4); assert SW == 4 and SP == 4
    elif UR: k("!s_waitcnt vmcnt(0)" + "\ns_barrier" * (SW - NB))
    elif XR: k("s_barrier\ns_barrier\n!s_waitcnt vmcnt(0)" + "\ns_barrier" * (SW - 2))
    elif SW >= 0: k("s_waitcnt vmcnt(0)" + "\ns_barrier" * SW)
    k.stamp(1)
    for i in range(4):
        if i: k(f"s_add_u32 s36, s36, {8*1280}")
        for t in range(2): k(f"s_add_u32 m0, s20, {4096*t+1024*i-128*t}\nbuffer_load_dwordx4 v10, s[24:27], s36 offen offset:{128*t}{NT('w')} lds")
    for t in range(2):
        for vv in range(2):
            k(f"s_lshl_b32 s36, s51, 1\ns_add_u32 s36, s36, {2*t+vv}\ns_mul_i32 s37, s36, 52\ns_lshr_b32 s37, s37, 8\ns_mul_i32 s37, s37, 5\ns_sub_u32 s36, s36, s37\ns_cmp_eq_u32 s36, 2\ns_cselect_b32 s36, 3, 4\ns_cselect_b32 s37, 32, 8")
            a = 49 + 4 * t + 2 * vv
            k(f"v_lshlrev_b32 v{a}, s36, v8\nv_add_u32 v{a}, {64*vv}, v{a}\nv_add_u32 v{a+1}, s37, v{a}\nv_xor_b32 v{a}, v{a}, v7\nv_xor_b32 v{a+1}, v{a+1}, v7\nv_add_u32 v{a}, v{a}, v48\nv_add_u32 v{a+1}, v{a+1}, v48")
        for i in range(4):
            k(f"s_lshl_b32 s36, s51, 2\ns_add_u32 s36, s36, {4*t+i}\ns_mul_i32 s37, s36, 52\ns_lshr_b32 s37, s37, 8\ns_mul_i32 s38, s37, 5\ns_sub_u32 s36, s36, s38")
            k(f"s_and_b32 s38, s37, 1\ns_sub_u32 s36, s36, s38\ns_cselect_b32 s36, 4, s36\ns_mul_i32 s37, s37, 48\ns_add_u32 s37, s37, s50\ns_mul_i32 s37, s37, 5\ns_add_u32 s37, s37, s36\ns_lshl_b32 s37, s37, 10\ns_add_u32 s{52+4*t+i}, s37, s39")
    k("s_barrier\n" * (SP - max(SW, 0)) + f"s_setprio {opt.get('sprio', 3)}")
    k.stamp(2)
    k("s_waitcnt vmcnt(0)")
    for t in range(2):
        for i in range(4):
            for e2 in range(2): k(f"ds_read_b64_tr_b16 {vr(LD+16*t+4*i+2*e2,2)}, v{49+4*t+i} offset:{4096*t+1024*e2}")
    for i in range(8): k(f"buffer_store_dwordx4 {vr(LD+4*i,4)}, v9, s[4:7], s{52+i} offen sc1")
    k.end()
    k("F_end:\ns_endpgm")
    data = [".p2align 7", "A_tab:"] + [f".long 0x{x:08x}" for x in LY.gather_table(0)]
    return dict(name="kA_kernel", code=k.finish(), data=data, grid=256, block=768, lds=LDSZ, vgpr=opt.get("nv", 168), agpr=0)
```
